```python
import torch

def _softmax(x, axis=-1):
    return torch.softmax(x, dim=axis)
def _gelu(x):
    return torch.nn.functional.gelu(x, approximate="tanh")
def _silu(x):
    return torch.nn.functional.silu(x)
def _sigmoid(x):
    return torch.sigmoid(x)
def _layernorm(x, axis=-1, eps=1e-5):
    m = x.mean(dim=axis, keepdim=True)
    v = x.var(dim=axis, keepdim=True, unbiased=False)
    return (x - m) / torch.sqrt(v + eps)
def _scatter_add(tgt, idx, src, axis=0):
    return tgt.clone().index_add_(axis, idx, src)
def _segment_sum(src, seg, n):
    out = torch.zeros((n,) + src.shape[1:], dtype=src.dtype)
    return out.index_add_(0, seg, src)
def _pad(x, pw):
    flat = tuple(v for pair in reversed(pw) for v in pair)
    return torch.nn.functional.pad(x, flat)

kernel_name = 'standalone__paged_block_table_kv_radixattention__decode'

def setup_inputs():

    _w = (lambda a: (lambda t: t.to(torch.bfloat16) if t.is_floating_point() else t)(torch.as_tensor(a)))
    B, H, Hkv, Dh = 8, 32, 8, 128
    Lk = 4096
    bs = 16
    nb = max(2, Lk // bs)
    P = max(1, nb // 2)
    n_phys = P + B * (nb - P)
    shared = torch.arange(P, dtype=torch.int64)
    priv = P + torch.arange(B * (nb - P), dtype=torch.int64).reshape(B, nb - P)
    bt = torch.cat([torch.tile(shared[None, :], (B, 1)), priv], dim=1)
    ctx = nb * bs - (torch.arange(1, B + 1, dtype=torch.int64) * 2654435761) % max(1, (nb * bs - P * bs) // 2)
    return {
        "q": _w((lambda *s: torch.randn(*s, dtype=torch.bfloat16) * 0.8)(B, H, Dh)),
        "k_cache": _w((lambda *s: torch.randn(*s, dtype=torch.bfloat16) * 0.8)(n_phys, bs, Hkv, Dh)),
        "v_cache": _w((lambda *s: torch.randn(*s, dtype=torch.bfloat16) * 0.05)(n_phys, bs, Hkv, Dh)),
        "block_table": _w(bt.to(torch.int64)),
        "ctx_lens": _w(torch.as_tensor(ctx).to(torch.int64)),
    }

def reference(q, k_cache, v_cache, block_table, ctx_lens):
    B, H, Dh = q.shape
    n_phys, bs, Hkv, _ = k_cache.shape
    nb = block_table.shape[1]
    Lk = nb * bs
    rep = H // Hkv
    k = k_cache[block_table].reshape(B, Lk, Hkv, Dh)
    v = v_cache[block_table].reshape(B, Lk, Hkv, Dh)
    k = (lambda x, n, axis: torch.repeat_interleave(x, n, dim=axis))(k, rep, axis=2)
    v = (lambda x, n, axis: torch.repeat_interleave(x, n, dim=axis))(v, rep, axis=2)
    scores = torch.einsum("bhd,bkhd->bhk", q, k) * (Dh ** -0.5)
    pos = torch.arange(Lk)
    valid = pos[None, :] < ctx_lens[:, None]
    scores = torch.where(valid[:, None, :], scores, -1e9)
    p = _softmax(scores, axis=-1)
    return torch.einsum("bhk,bkhd->bhd", p, v)
```

```python
import struct, sys, math

NAME = "standalone__paged_block_table_kv_radixattention__decode"

def f32bits(x):
    return struct.unpack("<I", struct.pack("<f", x))[0]

class Asm:
    def __init__(self):
        self.lines = []
    def __call__(self, s):
        self.lines.append("  " + s)
    def label(self, s):
        self.lines.append(s + ":")
    def nop(self, n):
        while n > 0:
            k = min(n, 16)
            self.lines.append("  s_nop %d" % (k - 1))
            n -= k
    def c(self, s):
        self.lines.append("  ; " + s)
    def text(self):
        return "\n".join(self.lines) + "\n"

KV_BYTES = 1152 * 32768
NEG = 0xF1800000
CSCALE = f32bits((128 ** -0.5) * math.log2(math.e))
LDS_KV = 0
LDS_P = 131072
LDS_TBL = LDS_P
LDS_SW = LDS_P + 8192
LDS_M = LDS_P + 24576
LDS_L = LDS_M + 1024
LDS_TOTAL = LDS_L + 1024
WS_O = 0
WS_ML = 2 << 20
WS_CNT = WS_ML + 65536

S_W = 3
S_Q, S_K, S_V, S_BT, S_CTX, S_OUT, S_DBG, S_WS = 8, 10, 12, 14, 16, 18, 20, 22
S_CTXV = 24
S_NBLK = 32
SRD_K, SRD_V, SRD_Q, SRD_WS = 40, 44, 48, 52
S_S, S_IT, S_KVH, S_SEG, S_CH, S_N, S_NC, S_LO, S_HI, S_START, S_SIG, S_LIM = 56, 57, 58, 59, 60, 61, 62, 63, 64, 65, 66, 67
S_SOFF = 68
S_NR = 72
S_REM = 76
S_T0, S_T1, S_T2, S_T3 = 80, 81, 82, 83
S_MSK = 84
S_NCSH, S_CUM, S_MINF, S_C, S_M0B, S_NEG = 92, 93, 94, 95, 96, 97
S_ROW = 98
S_TOT = 99

V_TID = 0
V_LANE, V_T0, V_T1, V_T2, V_T3 = 1, 2, 3, 4, 5
V_G, V_C = 6, 7
V_ROW = 8
V_ROW0 = 12
V_SW = 16
V_KOFF = 17
V_VOFF = 21
V_KRD = 25
V_VTLO, V_VTHI = 29, 30
V_PRD = 31
V_PWR = 32
V_MADDR = 33
V_TOK = 34
V_QOFFP, V_QOFFS = 38, 39
V_OOFF = 40
V_MLOFF = 41
V_MC = 42
V_L = 44
V_X = 46
V_Q = 56
V_KF = 88
V_S = 104
V_P = 136
V_A = 152
V_B = 168
V_ACC = 176
V_END = 184

def kernelA(a: Asm):
    a.label("attn_part_kernel")
    a("s_cmp_ge_u32 s2, 256")
    a("s_cbranch_scc1 A_END")
    a("s_load_dwordx16 s[8:23], s[0:1], 0")
    a(f"v_and_b32 v{V_LANE}, 63, v0")
    a(f"v_lshrrev_b32 v{V_T0}, 6, v0")
    a(f"v_lshlrev_b32 v{V_T1}, 4, v{V_LANE}")
    a(f"v_readfirstlane_b32 s{S_W}, v{V_T0}")
    a(f"v_lshlrev_b32 v{V_T2}, 4, v0")
    a(f"v_lshrrev_b32 v{V_G}, 4, v{V_LANE}")
    a(f"v_and_b32 v{V_C}, 15, v{V_LANE}")
    a(f"s_and_b32 s{S_KVH}, s2, 7")
    a(f"s_lshr_b32 s{S_IT}, s2, 3")
    a(f"s_mov_b32 s{S_C}, 0x{CSCALE:08x}")
    a(f"s_mov_b32 s{S_NEG}, 0x{NEG:08x}")
    a("s_waitcnt lgkmcnt(0)")
    a(f"global_load_dwordx4 v[{V_ROW}:{V_ROW+3}], v{V_T2}, s[{S_BT}:{S_BT+1}]")
    a(f"global_load_dwordx4 v[{V_ROW0}:{V_ROW0+3}], v{V_T1}, s[{S_BT}:{S_BT+1}]")
    a(f"s_load_dwordx8 s[{S_CTXV}:{S_CTXV+7}], s[{S_CTX}:{S_CTX+1}], 0")
    for srd, p, sz in ((SRD_K, S_K, KV_BYTES), (SRD_V, S_V, KV_BYTES), (SRD_Q, S_Q, 65536), (SRD_WS, S_WS, 4 << 20)):
        a(f"s_mov_b32 s{srd}, s{p}")
        a(f"s_and_b32 s{srd+1}, s{p+1}, 0xffff")
        a(f"s_mov_b32 s{srd+2}, 0x{sz:x}")
        a(f"s_mov_b32 s{srd+3}, 0x20000")
    for j in range(4):
        a(f"v_add_u32 v{V_T0}, {4*j}, v{V_G}")
        a(f"v_xor_b32 v{V_T3}, v{V_T0}, v{V_C}")
        a(f"v_lshlrev_b32 v{V_T3}, 4, v{V_T3}")
        a(f"v_lshl_add_u32 v{V_KOFF+j}, v{V_T0}, 11, v{V_T3}")
        if j:
            a(f"v_subrev_u32 v{V_KOFF+j}, {1024*j}, v{V_KOFF+j}")
        a(f"v_and_b32 v{V_T3}, 7, v{V_T0}")
        a(f"v_lshlrev_b32 v{V_T3}, 1, v{V_T3}")
        a(f"v_xor_b32 v{V_T3}, v{V_T3}, v{V_C}")
        a(f"v_lshlrev_b32 v{V_T3}, 4, v{V_T3}")
        a(f"v_lshl_add_u32 v{V_VOFF+j}, v{V_T0}, 11, v{V_T3}")
        if j:
            a(f"v_subrev_u32 v{V_VOFF+j}, {1024*j}, v{V_VOFF+j}")
    a(f"s_lshl_b32 s{S_M0B}, s{S_W}, 14")
    for j in range(4):
        a(f"v_add_u32 v{V_T0}, {4*j}, v{V_G}")
        a(f"v_xor_b32 v{V_T0}, v{V_T0}, v{V_C}")
        a(f"v_lshlrev_b32 v{V_T0}, 4, v{V_T0}")
        a(f"v_lshl_add_u32 v{V_T0}, v{V_C}, 8, v{V_T0}")
        a(f"v_add_u32 v{V_KRD+j}, s{S_M0B}, v{V_T0}")
    a(f"v_lshrrev_b32 v{V_T0}, 2, v{V_C}")
    a(f"v_lshl_add_u32 v{V_T0}, v{V_G}, 2, v{V_T0}")
    a(f"v_and_b32 v{V_T3}, 7, v{V_T0}")
    a(f"v_xor_b32 v{V_T3}, s{S_W}, v{V_T3}")
    a(f"v_lshlrev_b32 v{V_T3}, 5, v{V_T3}")
    a(f"v_lshl_add_u32 v{V_T3}, v{V_T0}, 8, v{V_T3}")
    a(f"v_and_b32 v{V_T0}, 3, v{V_C}")
    a(f"v_lshl_add_u32 v{V_VTLO}, v{V_T0}, 3, v{V_T3}")
    a(f"v_add_u32 v{V_VTHI}, 0x10000, v{V_VTLO}")
    a(f"v_add_u32 v{V_PRD}, 0x{LDS_P:x}, v{V_T1}")
    a(f"s_lshr_b32 s{S_T0}, s{S_W}, 1")
    a(f"s_lshl_b32 s{S_T0}, s{S_T0}, 10")
    a(f"s_and_b32 s{S_T1}, s{S_W}, 1")
    a(f"s_lshl_b32 s{S_T1}, s{S_T1}, 3")
    a(f"s_add_u32 s{S_T0}, s{S_T0}, s{S_T1}")
    a(f"v_add_u32 v{V_PWR}, s{S_T0}, v{V_PRD}")
    a(f"v_lshlrev_b32 v{V_MADDR}, 5, v{V_C}")
    a(f"v_add_u32 v{V_MADDR}, 0x{LDS_M:x}, v{V_MADDR}")
    for r in range(4):
        a(f"v_lshl_add_u32 v{V_TOK+r}, v{V_G}, 2, {r}")
    a(f"v_lshlrev_b32 v{V_T0}, 8, v{V_C}")
    a(f"v_lshl_add_u32 v{V_T0}, v{V_G}, 4, v{V_T0}")
    a(f"v_cmp_gt_u32 vcc, 4, v{V_C}")
    a(f"v_mov_b32 v{V_T3}, 0x40000000")
    a.nop(1)
    a(f"v_cndmask_b32 v{V_QOFFP}, v{V_T3}, v{V_T0}, vcc")
    a(f"v_lshrrev_b32 v{V_T0}, 2, v{V_C}")
    a(f"v_lshlrev_b32 v{V_T0}, 13, v{V_T0}")
    a(f"v_and_b32 v{V_T3}, 3, v{V_C}")
    a(f"v_lshl_add_u32 v{V_T0}, v{V_T3}, 8, v{V_T0}")
    a(f"v_lshl_add_u32 v{V_QOFFS}, v{V_G}, 4, v{V_T0}")
    a(f"v_lshlrev_b32 v{V_T0}, 18, v{V_G}")
    a(f"v_lshl_add_u32 v{V_OOFF}, v{V_C}, 2, v{V_T0}")
    a(f"v_lshrrev_b32 v{V_T0}, 2, v{V_C}")
    a(f"v_lshlrev_b32 v{V_T0}, 12, v{V_T0}")
    a(f"v_lshl_add_u32 v{V_MLOFF}, v{V_T3}, 3, v{V_T0}")
    a("s_waitcnt lgkmcnt(0)")
    a(f"s_movk_i32 s{S_MINF}, 256")
    for b in range(8):
        a(f"s_max_i32 s{S_CTXV+b}, s{S_CTXV+b}, 0")
        a(f"s_min_i32 s{S_CTXV+b}, s{S_CTXV+b}, 4096")
        a(f"s_add_u32 s{S_NBLK+b}, s{S_CTXV+b}, 15")
        a(f"s_lshr_b32 s{S_NBLK+b}, s{S_NBLK+b}, 4")
        a(f"s_lshr_b32 s{S_T0}, s{S_CTXV+b}, 4")
        a(f"s_min_u32 s{S_MINF}, s{S_MINF}, s{S_T0}")
    a("s_waitcnt vmcnt(0)")
    for e in range(4):
        a(f"v_cmp_ne_u32 s[{S_MSK+2*e}:{S_MSK+2*e+1}], v{V_ROW+e}, v{V_ROW0+e}")
    a(f"s_or_b64 s[{S_MSK}:{S_MSK+1}], s[{S_MSK}:{S_MSK+1}], s[{S_MSK+2}:{S_MSK+3}]")
    a(f"s_or_b64 s[{S_MSK+4}:{S_MSK+5}], s[{S_MSK+4}:{S_MSK+5}], s[{S_MSK+6}:{S_MSK+7}]")
    a(f"s_or_b64 s[{S_MSK}:{S_MSK+1}], s[{S_MSK}:{S_MSK+1}], s[{S_MSK+4}:{S_MSK+5}]")
    a(f"s_ff1_i32_b64 s{S_T0}, s[{S_MSK}:{S_MSK+1}]")
    a(f"s_lshl_b32 s{S_T0}, s{S_T0}, 2")
    a(f"s_min_u32 s{S_T0}, s{S_T0}, 256")
    a(f"v_mov_b32 v{V_SW}, s{S_T0}")
    a.label("A_ROUND")
    a(f"v_lshlrev_b32 v{V_T0}, 4, v0")
    a(f"v_add_u32 v{V_T0}, 0x{LDS_TBL:x}, v{V_T0}")
    a(f"ds_write_b128 v{V_T0}, v[{V_ROW}:{V_ROW+3}]")
    a(f"s_lshl_b32 s{S_T0}, s{S_W}, 2")
    a(f"s_add_u32 s{S_T0}, s{S_T0}, 0x{LDS_SW:x}")
    a(f"v_mov_b32 v{V_T3}, s{S_T0}")
    a(f"ds_write_b32 v{V_T3}, v{V_SW}")
    a(f"v_mov_b32 v{V_T3}, 0x{LDS_SW:x}")
    a("s_waitcnt lgkmcnt(0)")
    a("s_barrier")
    a(f"ds_read_b128 v[{V_X}:{V_X+3}], v{V_T3}")
    a(f"ds_read_b128 v[{V_X+4}:{V_X+7}], v{V_T3} offset:16")
    a("s_waitcnt lgkmcnt(0)")
    a(f"v_min3_u32 v{V_X}, v{V_X}, v{V_X+1}, v{V_X+2}")
    a(f"v_min3_u32 v{V_X+3}, v{V_X+3}, v{V_X+4}, v{V_X+5}")
    a(f"v_min3_u32 v{V_X+6}, v{V_X+6}, v{V_X+7}, v{V_X}")
    a(f"v_min_u32 v{V_X}, v{V_X+3}, v{V_X+6}")
    a.nop(1)
    a(f"v_readfirstlane_b32 s{S_S}, v{V_X}")
    a.nop(1)
    a(f"s_min_u32 s{S_S}, s{S_S}, s{S_MINF}")
    a(f"s_add_u32 s{S_NCSH}, s{S_S}, 31")
    a(f"s_lshr_b32 s{S_NCSH}, s{S_NCSH}, 5")
    a(f"s_mov_b32 s{S_CUM}, s{S_NCSH}")
    a(f"s_mov_b32 s{S_SEG}, -1")
    a(f"s_mov_b32 s{S_N}, s{S_S}")
    a(f"s_mov_b32 s{S_NC}, s{S_NCSH}")
    a(f"s_mov_b32 s{S_CH}, s{S_IT}")
    a(f"s_lshl_b32 s{S_LIM}, s{S_S}, 4")
    for b in range(8):
        a(f"s_sub_u32 s{S_T0}, s{S_NBLK+b}, s{S_S}")
        a(f"s_add_u32 s{S_T1}, s{S_T0}, 31")
        a(f"s_lshr_b32 s{S_T1}, s{S_T1}, 5")
        a(f"s_sub_u32 s{S_T2}, s{S_IT}, s{S_CUM}")
        a(f"s_add_u32 s{S_CUM}, s{S_CUM}, s{S_T1}")
        a(f"s_cmp_lt_u32 s{S_T2}, s{S_T1}")
        a(f"s_cselect_b32 s{S_SEG}, {b}, s{S_SEG}")
        a(f"s_cselect_b32 s{S_N}, s{S_T0}, s{S_N}")
        a(f"s_cselect_b32 s{S_NC}, s{S_T1}, s{S_NC}")
        a(f"s_cselect_b32 s{S_CH}, s{S_T2}, s{S_CH}")
        a(f"s_cselect_b32 s{S_LIM}, s{S_CTXV+b}, s{S_LIM}")
    a(f"s_mov_b32 s{S_TOT}, s{S_CUM}")
    a(f"s_cmp_ge_u32 s{S_IT}, s{S_TOT}")
    a("s_cbranch_scc1 A_FIN")
    tab = [-(-4096 // k) for k in range(1, 9)]
    lo64 = sum(tab[i] << (16 * i) for i in range(4))
    hi64 = sum(tab[4 + i] << (16 * i) for i in range(4))
    a(f"s_mov_b32 s{S_MSK}, 0x{lo64 & 0xffffffff:x}")
    a(f"s_mov_b32 s{S_MSK+1}, 0x{lo64 >> 32:x}")
    a(f"s_mov_b32 s{S_MSK+2}, 0x{hi64 & 0xffffffff:x}")
    a(f"s_mov_b32 s{S_MSK+3}, 0x{hi64 >> 32:x}")
    a(f"s_sub_u32 s{S_T0}, s{S_NC}, 1")
    a(f"s_cmp_lt_u32 s{S_T0}, 4")
    a(f"s_cselect_b64 s[{S_MSK}:{S_MSK+1}], s[{S_MSK}:{S_MSK+1}], s[{S_MSK+2}:{S_MSK+3}]")
    a(f"s_and_b32 s{S_T0}, s{S_T0}, 3")
    a(f"s_lshl_b32 s{S_T0}, s{S_T0}, 4")
    a(f"s_lshr_b64 s[{S_MSK}:{S_MSK+1}], s[{S_MSK}:{S_MSK+1}], s{S_T0}")
    a(f"s_and_b32 s{S_T0}, s{S_MSK}, 0xffff")
    a(f"s_add_u32 s{S_T1}, s{S_N}, s{S_NC}")
    a(f"s_sub_u32 s{S_T1}, s{S_T1}, 1")
    a(f"s_mul_i32 s{S_T1}, s{S_T1}, s{S_T0}")
    a(f"s_lshr_b32 s{S_T1}, s{S_T1}, 12")
    a(f"s_mul_i32 s{S_LO}, s{S_CH}, s{S_T1}")
    a(f"s_add_u32 s{S_HI}, s{S_LO}, s{S_T1}")
    a(f"s_min_u32 s{S_HI}, s{S_HI}, s{S_N}")
    a(f"s_cmp_eq_u32 s{S_SEG}, -1")
    a(f"s_cselect_b32 s{S_T0}, 0, s{S_S}")
    a(f"s_cselect_b32 s{S_ROW}, 0, s{S_SEG}")
    a(f"s_cselect_b32 s{S_T1}, 0, s{S_NCSH}")
    a(f"s_add_u32 s{S_SIG}, s{S_CH}, s{S_T1}")
    a(f"s_add_u32 s{S_START}, s{S_T0}, s{S_LO}")
    a(f"s_add_u32 s{S_START}, s{S_START}, s{S_W}")
    a(f"s_add_u32 s{S_HI}, s{S_HI}, s{S_T0}")
    a(f"v_lshlrev_b32 v{V_T0}, 3, v{V_LANE}")
    a(f"v_add_u32 v{V_T0}, s{S_START}, v{V_T0}")
    a(f"v_min_u32 v{V_T0}, 255, v{V_T0}")
    a(f"s_lshl_b32 s{S_T0}, s{S_ROW}, 10")
    a(f"s_add_u32 s{S_T0}, s{S_T0}, 0x{LDS_TBL:x}")
    a(f"v_lshl_add_u32 v{V_T0}, v{V_T0}, 2, s{S_T0}")
    a(f"ds_read_b32 v{V_T3}, v{V_T0}")
    for i in range(4):
        a(f"s_add_u32 s{S_T0}, s{S_START}, {8*i}")
        a(f"s_lshl_b32 s{S_T1}, s{S_T0}, 4")
        a(f"s_sub_i32 s{S_T1}, s{S_LIM}, s{S_T1}")
        a(f"s_cmp_lt_u32 s{S_T0}, s{S_HI}")
        a(f"s_cselect_b32 s{S_NR+i}, 0x{KV_BYTES:x}, 0")
        a(f"s_cselect_b32 s{S_REM+i}, s{S_T1}, 0")
    a(f"s_lshl_b32 s{S_T2}, s{S_KVH}, 8")
    a("s_waitcnt lgkmcnt(0)")
    for i in range(4):
        a(f"v_readlane_b32 s{S_SOFF+i}, v{V_T3}, {i}")
    a.nop(1)
    for i in range(4):
        a(f"s_lshl_b32 s{S_SOFF+i}, s{S_SOFF+i}, 15")
        a(f"s_add_u32 s{S_SOFF+i}, s{S_SOFF+i}, s{S_T2}")
        a(f"s_cmp_eq_u32 s{S_NR+i}, 0")
        a(f"s_cselect_b32 s{S_SOFF+i}, 0, s{S_SOFF+i}")
    a(f"s_cmp_eq_u32 s{S_SEG}, -1")
    a("s_cbranch_scc1 A_SHARED")
    body(a, 1)
    a("s_branch A_NEXT")
    a.label("A_SHARED")
    body(a, 2)
    a.label("A_NEXT")
    a("s_cmp_lg_u32 s2, 0")
    a("s_cbranch_scc1 A_NOPLAN")
    a(f"s_cmp_lg_u32 s{S_W}, 0")
    a("s_cbranch_scc1 A_NOPLAN")
    a(f"s_cmp_lg_u32 s{S_IT}, 0")
    a("s_cbranch_scc1 A_NOPLAN")
    plan(a)
    a.label("A_NOPLAN")
    a(f"s_add_u32 s{S_IT}, s{S_IT}, 32")
    a(f"s_cmp_ge_u32 s{S_IT}, s{S_TOT}")
    a("s_cbranch_scc1 A_END")
    a("s_waitcnt lgkmcnt(0)")
    a("s_barrier")
    a("s_branch A_ROUND")
    a.label("A_FIN")
    a("s_cmp_lg_u32 s2, 0")
    a("s_cbranch_scc1 A_END")
    a(f"s_cmp_lg_u32 s{S_W}, 0")
    a("s_cbranch_scc1 A_END")
    a(f"s_cmp_lg_u32 s{S_IT}, 0")
    a("s_cbranch_scc1 A_END")
    plan(a)
    a.label("A_END")
    a("s_endpgm")

def plan(a):
    for b in range(8):
        a(f"s_sub_u32 s{S_T0}, s{S_NBLK+b}, s{S_S}")
        a(f"s_add_u32 s{S_T0}, s{S_T0}, 31")
        a(f"s_lshr_b32 s{S_T0}, s{S_T0}, 5")
        a(f"s_add_u32 s{S_T0}, s{S_T0}, s{S_NCSH}")
        a(f"v_writelane_b32 v{V_X}, s{S_T0}, {b}")
    a(f"v_lshlrev_b32 v{V_T0}, 2, v{V_LANE}")
    a("s_mov_b64 exec, 0xff")
    a(f"s_mov_b32 s{S_T0}, 0x{WS_CNT:x}")
    a(f"buffer_store_dword v{V_X}, v{V_T0}, s[{SRD_WS}:{SRD_WS+3}], s{S_T0} offen")
    a("s_mov_b64 exec, -1")

uid = [0]
def body(a: Asm, NG: int):
    uid[0] += 1
    tag = f"B{NG}"
    a.c(f"---- body NG={NG}")
    if NG == 1:
        a(f"s_lshl_b32 s{S_T0}, s{S_SEG}, 13")
        a(f"s_lshl_b32 s{S_T1}, s{S_KVH}, 10")
        a(f"s_add_u32 s{S_T0}, s{S_T0}, s{S_T1}")
        for j in range(4):
            a(f"buffer_load_dwordx4 v[{V_Q+4*j}:{V_Q+4*j+3}], v{V_QOFFP}, s[{SRD_Q}:{SRD_Q+3}], s{S_T0} offen offset:{64*j}")
    else:
        a(f"s_lshl_b32 s{S_T0}, s{S_KVH}, 10")
        a(f"s_add_u32 s{S_T1}, s{S_T0}, 32768")
        for g in range(2):
            for j in range(4):
                a(f"buffer_load_dwordx4 v[{V_Q+16*g+4*j}:{V_Q+16*g+4*j+3}], v{V_QOFFS}, s[{SRD_Q}:{SRD_Q+3}], s{S_T0+g} offen offset:{64*j}")
    for i in range(4):
        a(f"s_add_u32 m0, s{S_M0B}, {i*4096}")
        a(f"s_mov_b32 s{SRD_K+2}, s{S_NR+i}")
        for j in range(4):
            a(f"buffer_load_dwordx4 v{V_KOFF+j}, s[{SRD_K}:{SRD_K+3}], s{S_SOFF+i} offen offset:{1024*j} lds")
    for i in range(4):
        a("s_waitcnt vmcnt(12)")
        for j in range(4):
            a(f"ds_read_b128 v[{V_KF+4*j}:{V_KF+4*j+3}], v{V_KRD+j} offset:{i*4096}")
        a(f"s_add_u32 m0, s{S_M0B}, {i*4096}")
        a(f"s_mov_b32 s{SRD_V+2}, s{S_NR+i}")
        a("s_waitcnt lgkmcnt(0)")
        for j in range(4):
            a(f"buffer_load_dwordx4 v{V_VOFF+j}, s[{SRD_V}:{SRD_V+3}], s{S_SOFF+i} offen offset:{1024*j} lds")
        for g in range(NG):
            s = V_S + 16 * g + 4 * i
            for j in range(4):
                c = "0" if j == 0 else f"v[{s}:{s+3}]"
                a(f"v_mfma_f32_16x16x32_bf16 v[{s}:{s+3}], v[{V_KF+4*j}:{V_KF+4*j+3}], v[{V_Q+16*g+4*j}:{V_Q+16*g+4*j+3}], {c}")
    a.nop(8)
    a(f"v_mov_b32 v{V_X}, s{S_NEG}")
    for i in range(4):
        for r in range(4):
            a(f"v_cmp_gt_i32 s[{S_MSK+2*r}:{S_MSK+2*r+1}], s{S_REM+i}, v{V_TOK+r}")
        a.nop(1)
        for g in range(NG):
            for r in range(4):
                s = V_S + 16 * g + 4 * i + r
                a(f"v_cndmask_b32 v{s}, v{V_X}, v{s}, s[{S_MSK+2*r}:{S_MSK+2*r+1}]")
    for g in range(NG):
        s = V_S + 16 * g
        x = V_X + 1 + 2 * g
        a(f"v_max3_f32 v{x}, v{s}, v{s+1}, v{s+2}")
        for k in range(3, 15, 2):
            a(f"v_max3_f32 v{x}, v{x}, v{s+k}, v{s+k+1}")
        a(f"v_max_f32 v{x}, v{x}, v{s+15}")
    for swap in ("v_permlane16_swap_b32", "v_permlane32_swap_b32"):
        for g in range(NG):
            x = V_X + 1 + 2 * g
            a(f"v_mov_b32 v{x+1}, v{x}")
        a.nop(2)
        for g in range(NG):
            x = V_X + 1 + 2 * g
            a(f"{swap} v{x}, v{x+1}")
        a.nop(1)
        for g in range(NG):
            x = V_X + 1 + 2 * g
            a(f"v_max_f32 v{x}, v{x}, v{x+1}")
    a(f"s_lshl_b32 s{S_T0}, s{S_W}, 2")
    a(f"v_add_u32 v{V_T0}, s{S_T0}, v{V_MADDR}")
    for g in range(NG):
        a(f"ds_write_b32 v{V_T0}, v{V_X+1+2*g} offset:{g*512}")
    a("s_waitcnt lgkmcnt(0)")
    a("s_barrier")
    for g in range(NG):
        k = V_KF + 8 * g
        a(f"ds_read_b128 v[{k}:{k+3}], v{V_MADDR} offset:{g*512}")
        a(f"ds_read_b128 v[{k+4}:{k+7}], v{V_MADDR} offset:{g*512+16}")
    a("s_waitcnt lgkmcnt(0)")
    for g in range(NG):
        k = V_KF + 8 * g
        a(f"v_max3_f32 v{k}, v{k}, v{k+1}, v{k+2}")
        a(f"v_max3_f32 v{k+3}, v{k+3}, v{k+4}, v{k+5}")
        a(f"v_max3_f32 v{k}, v{k}, v{k+6}, v{k+7}")
        a(f"v_max_f32 v{k}, v{k}, v{k+3}")
        a(f"v_mul_f32 v{V_MC+g}, s{S_C}, v{k}")
    for g in range(NG):
        for k in range(16):
            s = V_S + 16 * g + k
            a(f"v_fma_f32 v{s}, v{s}, s{S_C}, -v{V_MC+g}")
        for k in range(16):
            s = V_S + 16 * g + k
            a(f"v_exp_f32 v{s}, v{s}")
    a.nop(1)
    for g in range(NG):
        for i in range(4):
            s = V_S + 16 * g + 4 * i
            p = V_P + 8 * g + 2 * i
            a(f"v_cvt_pk_bf16_f32 v{p}, v{s}, v{s+1}")
            a(f"v_cvt_pk_bf16_f32 v{p+1}, v{s+2}, v{s+3}")
    def prow_off(i, g):
        if NG == 1:
            return i * 4096
        return (i % 3) * 8192 + g * 4096
    nrows0 = 4 if NG == 1 else 3
    for i in range(nrows0):
        for g in range(NG):
            p = V_P + 8 * g + 2 * i
            a(f"ds_write_b64 v{V_PWR}, v[{p}:{p+1}] offset:{prow_off(i, g)}")
    for g in range(NG):
        s = V_S + 16 * g
        x = V_X + 1 + 2 * g
        for k in range(0, 16, 2):
            a(f"v_add_f32 v{s+k}, v{s+k}, v{s+k+1}")
        for k in range(0, 16, 4):
            a(f"v_add_f32 v{s+k}, v{s+k}, v{s+k+2}")
        a(f"v_add_f32 v{s}, v{s}, v{s+4}")
        a(f"v_add_f32 v{s+8}, v{s+8}, v{s+12}")
        a(f"v_add_f32 v{x}, v{s}, v{s+8}")
    for swap in ("v_permlane16_swap_b32", "v_permlane32_swap_b32"):
        for g in range(NG):
            x = V_X + 1 + 2 * g
            a(f"v_mov_b32 v{x+1}, v{x}")
        a.nop(2)
        for g in range(NG):
            x = V_X + 1 + 2 * g
            a(f"{swap} v{x}, v{x+1}")
        a.nop(1)
        for g in range(NG):
            x = V_X + 1 + 2 * g
            a(f"v_add_f32 v{x}, v{x}, v{x+1}")
    a(f"v_add_u32 v{V_T0}, 1024, v{V_T0}")
    for g in range(NG):
        a(f"ds_write_b32 v{V_T0}, v{V_X+1+2*g} offset:{g*512}")
    for i in range(4):
        a(f"s_waitcnt vmcnt({12-4*i}) lgkmcnt(0)")
        a("s_barrier")
        if NG == 2 and i == 2:
            pass
        def rd(u):
            buf = u & 1
            for g in range(NG):
                A = V_A + 8 * buf + 4 * g
                a(f"ds_read_b128 v[{A}:{A+3}], v{V_PRD} offset:{prow_off(i, g) + u*1024}")
            B = V_B + 4 * buf
            for h in range(2):
                wv = 2 * u + h
                base = V_VTLO if wv < 4 else V_VTHI
                off = (wv & 3) * 16384 + i * 4096
                a(f"ds_read_b64_tr_b16 v[{B+2*h}:{B+2*h+1}], v{base} offset:{off}")
        per = NG + 2
        rd(0)
        if i == 0:
            for g in range(NG):
                k = V_KF + 8 * g
                a(f"ds_read_b128 v[{k}:{k+3}], v{V_MADDR} offset:{1024+g*512}")
                a(f"ds_read_b128 v[{k+4}:{k+7}], v{V_MADDR} offset:{1024+g*512+16}")
            a("s_waitcnt lgkmcnt(0)")
            for g in range(NG):
                k = V_KF + 8 * g
                for t in range(4):
                    a(f"v_add_f32 v{k+t}, v{k+t}, v{k+t+4}")
                a(f"v_add_f32 v{k}, v{k}, v{k+1}")
                a(f"v_add_f32 v{k+2}, v{k+2}, v{k+3}")
                a(f"v_add_f32 v{V_L+g}, v{k}, v{k+2}")
        for u in range(4):
            if u < 3:
                rd(u + 1)
                a(f"s_waitcnt lgkmcnt({per})")
            else:
                a("s_waitcnt lgkmcnt(0)")
            buf = u & 1
            B = V_B + 4 * buf
            for g in range(NG):
                A = V_A + 8 * buf + 4 * g
                acc = V_ACC + 4 * g
                c = "0" if (i == 0 and u == 0) else f"v[{acc}:{acc+3}]"
                a(f"v_mfma_f32_16x16x32_bf16 v[{acc}:{acc+3}], v[{A}:{A+3}], v[{B}:{B+3}], {c}")
        if NG == 2 and i == 0:
            pass
        if NG == 2 and i == 1:
            for g in range(NG):
                p = V_P + 8 * g + 6
                a(f"ds_write_b64 v{V_PWR}, v[{p}:{p+1}] offset:{prow_off(3, g)}")
    a.nop(8)
    if NG == 1:
        a(f"s_lshl_b32 s{S_T0}, s{S_SEG}, 18")
    else:
        a(f"s_mov_b32 s{S_T0}, 0")
    a(f"s_lshl_b32 s{S_T1}, s{S_KVH}, 4")
    a(f"s_add_u32 s{S_T1}, s{S_T1}, s{S_SIG}")
    a(f"s_lshl_b32 s{S_T2}, s{S_T1}, 11")
    a(f"s_add_u32 s{S_T0}, s{S_T0}, s{S_T2}")
    a(f"s_lshl_b32 s{S_T2}, s{S_W}, 6")
    a(f"s_add_u32 s{S_T0}, s{S_T0}, s{S_T2}")
    if NG == 1:
        a("s_mov_b64 exec, 0xffff")
    for g in range(NG):
        if g == 1:
            a(f"s_add_u32 s{S_T0}, s{S_T0}, {4*262144}")
        for r in range(4):
            a(f"buffer_store_dword v{V_ACC+4*g+r}, v{V_OOFF}, s[{SRD_WS}:{SRD_WS+3}], s{S_T0} offen offset:{r*512}")
    a(f"s_cmp_lg_u32 s{S_W}, 0")
    a(f"s_cbranch_scc1 {tag}_NOML")
    a(f"s_lshl_b32 s{S_T1}, s{S_T1}, 5")
    a(f"s_add_u32 s{S_T1}, s{S_T1}, 0x{WS_ML:x}")
    if NG == 1:
        a(f"s_lshl_b32 s{S_T2}, s{S_SEG}, 12")
        a(f"s_add_u32 s{S_T1}, s{S_T1}, s{S_T2}")
        a("s_mov_b64 exec, 0xf")
    else:
        a("s_mov_b64 exec, 0xffff")
    for g in range(NG):
        a(f"v_mov_b32 v{V_X}, v{V_MC+g}")
        a(f"v_mov_b32 v{V_X+1}, v{V_L+g}")
        if g == 1:
            a(f"s_add_u32 s{S_T1}, s{S_T1}, 16384")
        a(f"buffer_store_dwordx2 v[{V_X}:{V_X+1}], v{V_MLOFF}, s[{SRD_WS}:{SRD_WS+3}], s{S_T1} offen")
        if g == 0 and NG == 2:
            a.nop(2)
    a.label(f"{tag}_NOML")
    a("s_mov_b64 exec, -1")

def kernelB(a: Asm):
    a.label("attn_comb_kernel")
    a("s_cmp_ge_u32 s2, 64")
    a("s_cbranch_scc1 B_END")
    a("s_load_dwordx4 s[4:7], s[0:1], 40")
    a("s_load_dwordx2 s[8:9], s[0:1], 56")
    a("v_lshrrev_b32 v1, 6, v0")
    a("v_and_b32 v2, 63, v0")
    a("v_readfirstlane_b32 s3, v1")
    a("v_lshlrev_b32 v3, 3, v2")
    a("s_lshl_b32 s10, s2, 4")
    a("s_waitcnt lgkmcnt(0)")
    a("s_mov_b32 s12, s8")
    a("s_and_b32 s13, s9, 0xffff")
    a(f"s_mov_b32 s14, 0x{4<<20:x}")
    a("s_mov_b32 s15, 0x20000")
    a("s_lshl_b32 s11, s10, 11")
    a("s_lshl_b32 s16, s3, 9")
    a("s_add_u32 s11, s11, s16")
    for sg in range(9):
        if sg == 2 or sg == 4 or sg == 6 or sg == 8:
            a("s_add_u32 s11, s11, 4096")
        a(f"buffer_load_dwordx2 v[{8+2*sg}:{9+2*sg}], v3, s[12:15], s11 offen offset:{(sg&1)*2048}")
    a("s_lshl_b32 s16, s10, 5")
    a("s_lshl_b32 s17, s3, 3")
    a("s_add_u32 s16, s16, s17")
    a(f"s_add_u32 s16, s16, 0x{WS_ML:x}")
    a("s_add_u32 s18, s8, s16")
    a("s_addc_u32 s19, s9, 0")
    for sg in range(9):
        a(f"s_load_dwordx2 s[{24+2*sg}:{25+2*sg}], s[18:19], {sg*32}")
    a("s_lshr_b32 s16, s2, 3")
    a("s_lshl_b32 s16, s16, 2")
    a(f"s_add_u32 s16, s16, 0x{WS_CNT:x}")
    a("s_add_u32 s20, s8, s16")
    a("s_addc_u32 s21, s9, 0")
    a("s_load_dword s22, s[20:21], 0")
    a("s_waitcnt lgkmcnt(0)")
    for sg in range(9):
        a(f"s_cmp_lt_u32 {sg}, s22")
        a(f"s_cselect_b32 s{24+2*sg}, s{24+2*sg}, 0x{NEG:x}")
        a(f"s_cselect_b32 s{25+2*sg}, s{25+2*sg}, 0")
    a("v_mov_b32 v4, s24")
    for sg in range(1, 9):
        a(f"v_max_f32 v4, s{24+2*sg}, v4")
    for sg in range(9):
        a(f"v_sub_f32 v{30+sg}, s{24+2*sg}, v4")
    for sg in range(9):
        a(f"v_exp_f32 v{30+sg}, v{30+sg}")
    a.nop(1)
    a("v_mul_f32 v5, s25, v30")
    for sg in range(1, 9):
        a(f"v_fmac_f32 v5, s{25+2*sg}, v{30+sg}")
    a("v_rcp_f32 v5, v5")
    a("v_mov_b32 v6, 0")
    a("v_mov_b32 v7, 0")
    a("s_waitcnt vmcnt(0)")
    for sg in range(9):
        a(f"s_cmp_lt_u32 {sg}, s22")
        a(f"s_cbranch_scc0 B_DONE")
        a(f"v_fmac_f32 v6, v{8+2*sg}, v{30+sg}")
        a(f"v_fmac_f32 v7, v{9+2*sg}, v{30+sg}")
    a.label("B_DONE")
    a("v_mul_f32 v6, v6, v5")
    a("v_mul_f32 v7, v7, v5")
    a("v_cvt_pk_bf16_f32 v6, v6, v7")
    a("s_lshl_b32 s16, s2, 2")
    a("s_add_u32 s16, s16, s3")
    a("s_lshl_b32 s16, s16, 8")
    a("v_lshlrev_b32 v3, 2, v2")
    a("v_add_u32 v3, s16, v3")
    a("global_store_dword v3, v6, s[4:5]")
    a.label("B_END")
    a("s_endpgm")

HEADER = """; paged decode attention, split-KV partial kernel + combine kernel
; @launch kernel=attn_part_kernel grid=(256,1,1) block=(512,1,1) lds={lds}
; @launch kernel=attn_comb_kernel grid=(64,1,1) block=(256,1,1) lds=0
.amdgcn_target "amdgcn-amd-amdhsa--gfx950"
.text
"""

def kd(name, vgpr, sgpr):
    acc = (vgpr + 3) // 4 * 4
    return f""".amdhsa_kernel {name}
  .amdhsa_next_free_vgpr {vgpr}
  .amdhsa_next_free_sgpr {sgpr}
  .amdhsa_accum_offset {acc}
  .amdhsa_group_segment_fixed_size 0
  .amdhsa_kernarg_size 64
  .amdhsa_user_sgpr_count 2
  .amdhsa_user_sgpr_kernarg_segment_ptr 1
  .amdhsa_system_sgpr_workgroup_id_x 1
.end_amdhsa_kernel
"""

def main(out):
    t = HEADER.format(lds=LDS_TOTAL)
    for name, fn in (("attn_part_kernel", kernelA), ("attn_comb_kernel", kernelB)):
        a = Asm()
        fn(a)
        t += f".globl {name}\n.p2align 8\n.type {name},@function\n" + a.text()
    t += '.section .rodata,"a"\n.p2align 6\n' + kd("attn_part_kernel", V_END, 102) + ".p2align 6\n" + kd("attn_comb_kernel", 40, 48)
    open(out, "w").write(t)

if __name__ == "__main__":
    main(sys.argv[1] if len(sys.argv) > 1 else f"cdna_kernels/{NAME}.s")
```

```python
import struct, sys, math

NAME = "standalone__paged_block_table_kv_radixattention__decode"

def f32bits(x):
    return struct.unpack("<I", struct.pack("<f", x))[0]

class Asm:
    def __init__(self):
        self.lines = []
    def __call__(self, s):
        self.lines.append("  " + s)
    def label(self, s):
        self.lines.append(s + ":")
    def nop(self, n):
        while n > 0:
            k = min(n, 16)
            self.lines.append("  s_nop %d" % (k - 1))
            n -= k
    def c(self, s):
        self.lines.append("  ; " + s)
    def text(self):
        return "\n".join(self.lines) + "\n"

import os
POL = os.environ.get('POL', '')
KV_BYTES = 1152 * 32768
NEG = 0xF1800000
CSCALE = f32bits((128 ** -0.5) * math.log2(math.e))
LDS_KV = 0
LDS_P = 131072
LDS_TBL = LDS_P
LDS_SW = LDS_P + 8192
LDS_M = LDS_P + 24576
LDS_L = LDS_M + 1024
LDS_TOTAL = LDS_L + 1024
WS_O = 0
WS_ML = 2 << 20
WS_CNT = WS_ML + 65536

S_W = 3
S_Q, S_K, S_V, S_BT, S_CTX, S_OUT, S_DBG, S_WS = 8, 10, 12, 14, 16, 18, 20, 22
S_CTXV = 24
S_NBLK = 32
SRD_K, SRD_V, SRD_Q, SRD_WS = 40, 44, 48, 52
S_S, S_IT, S_KVH, S_SEG, S_CH, S_N, S_NC, S_LO, S_HI, S_START, S_SIG, S_LIM = 56, 57, 58, 59, 60, 61, 62, 63, 64, 65, 66, 67
S_SOFF = 68
S_NR = 72
S_REM = 76
S_T0, S_T1, S_T2, S_T3 = 80, 81, 82, 83
S_MSK = 84
S_NCSH, S_CUM, S_MINF, S_C, S_M0B, S_NEG = 92, 93, 94, 95, 96, 97
S_ROW = 98
S_TOT = 99

V_TID = 0
V_LANE, V_T0, V_T1, V_T2, V_T3 = 1, 2, 3, 4, 5
V_G, V_C = 6, 7
V_ROW = 8
V_ROW0 = 12
V_SW = 16
V_KOFF = 17
V_VOFF = 21
V_KRD = 25
V_VTLO, V_VTHI = 29, 30
V_PRD = 31
V_PWR = 32
V_MADDR = 33
V_TOK = 34
V_QOFFP, V_QOFFS = 38, 39
V_OOFF = 40
V_MLOFF = 41
V_MC = 42
V_L = 44
V_X = 46
V_Q = 56
V_KF = 88
V_S = 104
V_P = 136
V_A = 152
V_B = 168
V_ACC = 176
V_END = 184

def kernelA(a: Asm):
    a.label("attn_part_kernel")
    a("s_cmp_ge_u32 s2, 256")
    a("s_cbranch_scc1 A_END")
    a("s_load_dwordx16 s[8:23], s[0:1], 0")
    a(f"v_and_b32 v{V_LANE}, 63, v0")
    a(f"v_lshrrev_b32 v{V_T0}, 6, v0")
    a(f"v_lshlrev_b32 v{V_T1}, 4, v{V_LANE}")
    a(f"v_readfirstlane_b32 s{S_W}, v{V_T0}")
    a(f"v_lshlrev_b32 v{V_T2}, 4, v0")
    a(f"v_lshrrev_b32 v{V_G}, 4, v{V_LANE}")
    a(f"v_and_b32 v{V_C}, 15, v{V_LANE}")
    a(f"s_and_b32 s{S_KVH}, s2, 7")
    a(f"s_lshr_b32 s{S_IT}, s2, 3")
    a(f"s_mov_b32 s{S_C}, 0x{CSCALE:08x}")
    a(f"s_mov_b32 s{S_NEG}, 0x{NEG:08x}")
    a("s_waitcnt lgkmcnt(0)")
    a(f"global_load_dwordx4 v[{V_ROW}:{V_ROW+3}], v{V_T2}, s[{S_BT}:{S_BT+1}]")
    a(f"global_load_dwordx4 v[{V_ROW0}:{V_ROW0+3}], v{V_T1}, s[{S_BT}:{S_BT+1}]")
    a(f"s_load_dwordx8 s[{S_CTXV}:{S_CTXV+7}], s[{S_CTX}:{S_CTX+1}], 0")
    for srd, p, sz in ((SRD_K, S_K, KV_BYTES), (SRD_V, S_V, KV_BYTES), (SRD_Q, S_Q, 65536), (SRD_WS, S_WS, 4 << 20)):
        a(f"s_mov_b32 s{srd}, s{p}")
        a(f"s_and_b32 s{srd+1}, s{p+1}, 0xffff")
        a(f"s_mov_b32 s{srd+2}, 0x{sz:x}")
        a(f"s_mov_b32 s{srd+3}, 0x20000")
    for j in range(4):
        a(f"v_add_u32 v{V_T0}, {4*j}, v{V_G}")
        a(f"v_xor_b32 v{V_T3}, v{V_T0}, v{V_C}")
        a(f"v_lshlrev_b32 v{V_T3}, 4, v{V_T3}")
        a(f"v_lshl_add_u32 v{V_KOFF+j}, v{V_T0}, 11, v{V_T3}")
        if j:
            a(f"v_subrev_u32 v{V_KOFF+j}, {1024*j}, v{V_KOFF+j}")
        a(f"v_and_b32 v{V_T3}, 7, v{V_T0}")
        a(f"v_lshlrev_b32 v{V_T3}, 1, v{V_T3}")
        a(f"v_xor_b32 v{V_T3}, v{V_T3}, v{V_C}")
        a(f"v_lshlrev_b32 v{V_T3}, 4, v{V_T3}")
        a(f"v_lshl_add_u32 v{V_VOFF+j}, v{V_T0}, 11, v{V_T3}")
        if j:
            a(f"v_subrev_u32 v{V_VOFF+j}, {1024*j}, v{V_VOFF+j}")
    a(f"s_lshl_b32 s{S_M0B}, s{S_W}, 14")
    for j in range(4):
        a(f"v_add_u32 v{V_T0}, {4*j}, v{V_G}")
        a(f"v_xor_b32 v{V_T0}, v{V_T0}, v{V_C}")
        a(f"v_lshlrev_b32 v{V_T0}, 4, v{V_T0}")
        a(f"v_lshl_add_u32 v{V_T0}, v{V_C}, 8, v{V_T0}")
        a(f"v_add_u32 v{V_KRD+j}, s{S_M0B}, v{V_T0}")
    a(f"v_lshrrev_b32 v{V_T0}, 2, v{V_C}")
    a(f"v_lshl_add_u32 v{V_T0}, v{V_G}, 2, v{V_T0}")
    a(f"v_and_b32 v{V_T3}, 7, v{V_T0}")
    a(f"v_xor_b32 v{V_T3}, s{S_W}, v{V_T3}")
    a(f"v_lshlrev_b32 v{V_T3}, 5, v{V_T3}")
    a(f"v_lshl_add_u32 v{V_T3}, v{V_T0}, 8, v{V_T3}")
    a(f"v_and_b32 v{V_T0}, 3, v{V_C}")
    a(f"v_lshl_add_u32 v{V_VTLO}, v{V_T0}, 3, v{V_T3}")
    a(f"v_add_u32 v{V_VTHI}, 0x10000, v{V_VTLO}")
    a(f"v_add_u32 v{V_PRD}, 0x{LDS_P:x}, v{V_T1}")
    a(f"s_lshr_b32 s{S_T0}, s{S_W}, 1")
    a(f"s_lshl_b32 s{S_T0}, s{S_T0}, 10")
    a(f"s_and_b32 s{S_T1}, s{S_W}, 1")
    a(f"s_lshl_b32 s{S_T1}, s{S_T1}, 3")
    a(f"s_add_u32 s{S_T0}, s{S_T0}, s{S_T1}")
    a(f"v_add_u32 v{V_PWR}, s{S_T0}, v{V_PRD}")
    a(f"v_lshlrev_b32 v{V_MADDR}, 5, v{V_C}")
    a(f"v_add_u32 v{V_MADDR}, 0x{LDS_M:x}, v{V_MADDR}")
    for r in range(4):
        a(f"v_lshl_add_u32 v{V_TOK+r}, v{V_G}, 2, {r}")
    a(f"v_lshlrev_b32 v{V_T0}, 8, v{V_C}")
    a(f"v_lshl_add_u32 v{V_T0}, v{V_G}, 4, v{V_T0}")
    a(f"v_cmp_gt_u32 vcc, 4, v{V_C}")
    a(f"v_mov_b32 v{V_T3}, 0x40000000")
    a.nop(1)
    a(f"v_cndmask_b32 v{V_QOFFP}, v{V_T3}, v{V_T0}, vcc")
    a(f"v_lshrrev_b32 v{V_T0}, 2, v{V_C}")
    a(f"v_lshlrev_b32 v{V_T0}, 13, v{V_T0}")
    a(f"v_and_b32 v{V_T3}, 3, v{V_C}")
    a(f"v_lshl_add_u32 v{V_T0}, v{V_T3}, 8, v{V_T0}")
    a(f"v_lshl_add_u32 v{V_QOFFS}, v{V_G}, 4, v{V_T0}")
    a(f"v_lshlrev_b32 v{V_T0}, 18, v{V_G}")
    a(f"v_lshl_add_u32 v{V_OOFF}, v{V_C}, 2, v{V_T0}")
    a(f"v_lshrrev_b32 v{V_T0}, 2, v{V_C}")
    a(f"v_lshlrev_b32 v{V_T0}, 12, v{V_T0}")
    a(f"v_lshl_add_u32 v{V_MLOFF}, v{V_T3}, 3, v{V_T0}")
    a("s_waitcnt lgkmcnt(0)")
    a(f"s_movk_i32 s{S_MINF}, 256")
    for b in range(8):
        a(f"s_max_i32 s{S_CTXV+b}, s{S_CTXV+b}, 0")
        a(f"s_min_i32 s{S_CTXV+b}, s{S_CTXV+b}, 4096")
        a(f"s_add_u32 s{S_NBLK+b}, s{S_CTXV+b}, 15")
        a(f"s_lshr_b32 s{S_NBLK+b}, s{S_NBLK+b}, 4")
        a(f"s_lshr_b32 s{S_T0}, s{S_CTXV+b}, 4")
        a(f"s_min_u32 s{S_MINF}, s{S_MINF}, s{S_T0}")
    a("s_waitcnt vmcnt(0)")
    for e in range(4):
        a(f"v_cmp_ne_u32 s[{S_MSK+2*e}:{S_MSK+2*e+1}], v{V_ROW+e}, v{V_ROW0+e}")
    a(f"s_or_b64 s[{S_MSK}:{S_MSK+1}], s[{S_MSK}:{S_MSK+1}], s[{S_MSK+2}:{S_MSK+3}]")
    a(f"s_or_b64 s[{S_MSK+4}:{S_MSK+5}], s[{S_MSK+4}:{S_MSK+5}], s[{S_MSK+6}:{S_MSK+7}]")
    a(f"s_or_b64 s[{S_MSK}:{S_MSK+1}], s[{S_MSK}:{S_MSK+1}], s[{S_MSK+4}:{S_MSK+5}]")
    a(f"s_ff1_i32_b64 s{S_T0}, s[{S_MSK}:{S_MSK+1}]")
    a(f"s_lshl_b32 s{S_T0}, s{S_T0}, 2")
    a(f"s_min_u32 s{S_T0}, s{S_T0}, 256")
    a(f"v_mov_b32 v{V_SW}, s{S_T0}")
    a.label("A_ROUND")
    a(f"v_lshlrev_b32 v{V_T0}, 4, v0")
    a(f"v_add_u32 v{V_T0}, 0x{LDS_TBL:x}, v{V_T0}")
    a(f"ds_write_b128 v{V_T0}, v[{V_ROW}:{V_ROW+3}]")
    a(f"s_lshl_b32 s{S_T0}, s{S_W}, 2")
    a(f"s_add_u32 s{S_T0}, s{S_T0}, 0x{LDS_SW:x}")
    a(f"v_mov_b32 v{V_T3}, s{S_T0}")
    a(f"ds_write_b32 v{V_T3}, v{V_SW}")
    a(f"v_mov_b32 v{V_T3}, 0x{LDS_SW:x}")
    a("s_waitcnt lgkmcnt(0)")
    a("s_barrier")
    a(f"ds_read_b128 v[{V_X}:{V_X+3}], v{V_T3}")
    a(f"ds_read_b128 v[{V_X+4}:{V_X+7}], v{V_T3} offset:16")
    a("s_waitcnt lgkmcnt(0)")
    a(f"v_min3_u32 v{V_X}, v{V_X}, v{V_X+1}, v{V_X+2}")
    a(f"v_min3_u32 v{V_X+3}, v{V_X+3}, v{V_X+4}, v{V_X+5}")
    a(f"v_min3_u32 v{V_X+6}, v{V_X+6}, v{V_X+7}, v{V_X}")
    a(f"v_min_u32 v{V_X}, v{V_X+3}, v{V_X+6}")
    a.nop(1)
    a(f"v_readfirstlane_b32 s{S_S}, v{V_X}")
    a.nop(1)
    a(f"s_min_u32 s{S_S}, s{S_S}, s{S_MINF}")
    a(f"s_add_u32 s{S_NCSH}, s{S_S}, 31")
    a(f"s_lshr_b32 s{S_NCSH}, s{S_NCSH}, 5")
    a(f"s_mov_b32 s{S_CUM}, s{S_NCSH}")
    a(f"s_mov_b32 s{S_SEG}, -1")
    a(f"s_mov_b32 s{S_N}, s{S_S}")
    a(f"s_mov_b32 s{S_NC}, s{S_NCSH}")
    a(f"s_mov_b32 s{S_CH}, s{S_IT}")
    a(f"s_lshl_b32 s{S_LIM}, s{S_S}, 4")
    for b in range(8):
        a(f"s_sub_u32 s{S_T0}, s{S_NBLK+b}, s{S_S}")
        a(f"s_add_u32 s{S_T1}, s{S_T0}, 31")
        a(f"s_lshr_b32 s{S_T1}, s{S_T1}, 5")
        a(f"s_sub_u32 s{S_T2}, s{S_IT}, s{S_CUM}")
        a(f"s_add_u32 s{S_CUM}, s{S_CUM}, s{S_T1}")
        a(f"s_cmp_lt_u32 s{S_T2}, s{S_T1}")
        a(f"s_cselect_b32 s{S_SEG}, {b}, s{S_SEG}")
        a(f"s_cselect_b32 s{S_N}, s{S_T0}, s{S_N}")
        a(f"s_cselect_b32 s{S_NC}, s{S_T1}, s{S_NC}")
        a(f"s_cselect_b32 s{S_CH}, s{S_T2}, s{S_CH}")
        a(f"s_cselect_b32 s{S_LIM}, s{S_CTXV+b}, s{S_LIM}")
    a(f"s_mov_b32 s{S_TOT}, s{S_CUM}")
    a(f"s_cmp_ge_u32 s{S_IT}, s{S_TOT}")
    a("s_cbranch_scc1 A_FIN")
    tab = [-(-4096 // k) for k in range(1, 9)]
    lo64 = sum(tab[i] << (16 * i) for i in range(4))
    hi64 = sum(tab[4 + i] << (16 * i) for i in range(4))
    a(f"s_mov_b32 s{S_MSK}, 0x{lo64 & 0xffffffff:x}")
    a(f"s_mov_b32 s{S_MSK+1}, 0x{lo64 >> 32:x}")
    a(f"s_mov_b32 s{S_MSK+2}, 0x{hi64 & 0xffffffff:x}")
    a(f"s_mov_b32 s{S_MSK+3}, 0x{hi64 >> 32:x}")
    a(f"s_sub_u32 s{S_T0}, s{S_NC}, 1")
    a(f"s_cmp_lt_u32 s{S_T0}, 4")
    a(f"s_cselect_b64 s[{S_MSK}:{S_MSK+1}], s[{S_MSK}:{S_MSK+1}], s[{S_MSK+2}:{S_MSK+3}]")
    a(f"s_and_b32 s{S_T0}, s{S_T0}, 3")
    a(f"s_lshl_b32 s{S_T0}, s{S_T0}, 4")
    a(f"s_lshr_b64 s[{S_MSK}:{S_MSK+1}], s[{S_MSK}:{S_MSK+1}], s{S_T0}")
    a(f"s_and_b32 s{S_T0}, s{S_MSK}, 0xffff")
    a(f"s_add_u32 s{S_T1}, s{S_N}, s{S_NC}")
    a(f"s_sub_u32 s{S_T1}, s{S_T1}, 1")
    a(f"s_mul_i32 s{S_T1}, s{S_T1}, s{S_T0}")
    a(f"s_lshr_b32 s{S_T1}, s{S_T1}, 12")
    a(f"s_mul_i32 s{S_LO}, s{S_CH}, s{S_T1}")
    a(f"s_add_u32 s{S_HI}, s{S_LO}, s{S_T1}")
    a(f"s_min_u32 s{S_HI}, s{S_HI}, s{S_N}")
    a(f"s_cmp_eq_u32 s{S_SEG}, -1")
    a(f"s_cselect_b32 s{S_T0}, 0, s{S_S}")
    a(f"s_cselect_b32 s{S_ROW}, 0, s{S_SEG}")
    a(f"s_cselect_b32 s{S_T1}, 0, s{S_NCSH}")
    a(f"s_add_u32 s{S_SIG}, s{S_CH}, s{S_T1}")
    a(f"s_add_u32 s{S_START}, s{S_T0}, s{S_LO}")
    a(f"s_add_u32 s{S_START}, s{S_START}, s{S_W}")
    a(f"s_add_u32 s{S_HI}, s{S_HI}, s{S_T0}")
    a(f"v_lshlrev_b32 v{V_T0}, 3, v{V_LANE}")
    a(f"v_add_u32 v{V_T0}, s{S_START}, v{V_T0}")
    a(f"v_min_u32 v{V_T0}, 255, v{V_T0}")
    a(f"s_lshl_b32 s{S_T0}, s{S_ROW}, 10")
    a(f"s_add_u32 s{S_T0}, s{S_T0}, 0x{LDS_TBL:x}")
    a(f"v_lshl_add_u32 v{V_T0}, v{V_T0}, 2, s{S_T0}")
    a(f"ds_read_b32 v{V_T3}, v{V_T0}")
    for i in range(4):
        a(f"s_add_u32 s{S_T0}, s{S_START}, {8*i}")
        a(f"s_lshl_b32 s{S_T1}, s{S_T0}, 4")
        a(f"s_sub_i32 s{S_T1}, s{S_LIM}, s{S_T1}")
        a(f"s_cmp_lt_u32 s{S_T0}, s{S_HI}")
        a(f"s_cselect_b32 s{S_NR+i}, 0x{KV_BYTES:x}, 0")
        a(f"s_cselect_b32 s{S_REM+i}, s{S_T1}, 0")
    a(f"s_lshl_b32 s{S_T2}, s{S_KVH}, 8")
    a("s_waitcnt lgkmcnt(0)")
    for i in range(4):
        a(f"v_readlane_b32 s{S_SOFF+i}, v{V_T3}, {i}")
    a.nop(1)
    for i in range(4):
        a(f"s_lshl_b32 s{S_SOFF+i}, s{S_SOFF+i}, 15")
        a(f"s_add_u32 s{S_SOFF+i}, s{S_SOFF+i}, s{S_T2}")
        a(f"s_cmp_eq_u32 s{S_NR+i}, 0")
        a(f"s_cselect_b32 s{S_SOFF+i}, 0, s{S_SOFF+i}")
    a(f"s_cmp_eq_u32 s{S_SEG}, -1")
    a("s_cbranch_scc1 A_SHARED")
    body(a, 1)
    a("s_branch A_NEXT")
    a.label("A_SHARED")
    body(a, 2)
    a.label("A_NEXT")
    a("s_cmp_lg_u32 s2, 0")
    a("s_cbranch_scc1 A_NOPLAN")
    a(f"s_cmp_lg_u32 s{S_W}, 0")
    a("s_cbranch_scc1 A_NOPLAN")
    a(f"s_cmp_lg_u32 s{S_IT}, 0")
    a("s_cbranch_scc1 A_NOPLAN")
    plan(a)
    a.label("A_NOPLAN")
    a(f"s_add_u32 s{S_IT}, s{S_IT}, 32")
    a(f"s_cmp_ge_u32 s{S_IT}, s{S_TOT}")
    a("s_cbranch_scc1 A_END")
    a("s_waitcnt lgkmcnt(0)")
    a("s_barrier")
    a("s_branch A_ROUND")
    a.label("A_FIN")
    a("s_cmp_lg_u32 s2, 0")
    a("s_cbranch_scc1 A_END")
    a(f"s_cmp_lg_u32 s{S_W}, 0")
    a("s_cbranch_scc1 A_END")
    a(f"s_cmp_lg_u32 s{S_IT}, 0")
    a("s_cbranch_scc1 A_END")
    plan(a)
    a.label("A_END")
    a("s_endpgm")

def plan(a):
    for b in range(8):
        a(f"s_sub_u32 s{S_T0}, s{S_NBLK+b}, s{S_S}")
        a(f"s_add_u32 s{S_T0}, s{S_T0}, 31")
        a(f"s_lshr_b32 s{S_T0}, s{S_T0}, 5")
        a(f"s_add_u32 s{S_T0}, s{S_T0}, s{S_NCSH}")
        a(f"v_writelane_b32 v{V_X}, s{S_T0}, {b}")
    a(f"v_lshlrev_b32 v{V_T0}, 2, v{V_LANE}")
    a("s_mov_b64 exec, 0xff")
    a(f"s_mov_b32 s{S_T0}, 0x{WS_CNT:x}")
    a(f"buffer_store_dword v{V_X}, v{V_T0}, s[{SRD_WS}:{SRD_WS+3}], s{S_T0} offen")
    a("s_mov_b64 exec, -1")

uid = [0]
def body(a: Asm, NG: int):
    uid[0] += 1
    tag = f"B{NG}"
    a.c(f"---- body NG={NG}")
    if NG == 1:
        a(f"s_lshl_b32 s{S_T0}, s{S_SEG}, 13")
        a(f"s_lshl_b32 s{S_T1}, s{S_KVH}, 10")
        a(f"s_add_u32 s{S_T0}, s{S_T0}, s{S_T1}")
        for j in range(4):
            a(f"buffer_load_dwordx4 v[{V_Q+4*j}:{V_Q+4*j+3}], v{V_QOFFP}, s[{SRD_Q}:{SRD_Q+3}], s{S_T0} offen offset:{64*j}")
    else:
        a(f"s_lshl_b32 s{S_T0}, s{S_KVH}, 10")
        a(f"s_add_u32 s{S_T1}, s{S_T0}, 32768")
        for g in range(2):
            for j in range(4):
                a(f"buffer_load_dwordx4 v[{V_Q+16*g+4*j}:{V_Q+16*g+4*j+3}], v{V_QOFFS}, s[{SRD_Q}:{SRD_Q+3}], s{S_T0+g} offen offset:{64*j}")
    for i in range(4):
        a(f"s_add_u32 m0, s{S_M0B}, {i*4096}")
        a(f"s_mov_b32 s{SRD_K+2}, s{S_NR+i}")
        for j in range(4):
            a(f"buffer_load_dwordx4 v{V_KOFF+j}, s[{SRD_K}:{SRD_K+3}], s{S_SOFF+i} offen offset:{1024*j} {POL} lds")
    for i in range(4):
        a("s_waitcnt vmcnt(12)")
        for j in range(4):
            a(f"ds_read_b128 v[{V_KF+4*j}:{V_KF+4*j+3}], v{V_KRD+j} offset:{i*4096}")
        a(f"s_add_u32 m0, s{S_M0B}, {i*4096}")
        a(f"s_mov_b32 s{SRD_V+2}, s{S_NR+i}")
        a("s_waitcnt lgkmcnt(0)")
        for j in range(4):
            a(f"buffer_load_dwordx4 v{V_VOFF+j}, s[{SRD_V}:{SRD_V+3}], s{S_SOFF+i} offen offset:{1024*j} {POL} lds")
        for g in range(NG):
            s = V_S + 16 * g + 4 * i
            for j in range(4):
                c = "0" if j == 0 else f"v[{s}:{s+3}]"
                a(f"v_mfma_f32_16x16x32_bf16 v[{s}:{s+3}], v[{V_KF+4*j}:{V_KF+4*j+3}], v[{V_Q+16*g+4*j}:{V_Q+16*g+4*j+3}], {c}")
    a.nop(8)
    a(f"v_mov_b32 v{V_X}, s{S_NEG}")
    for i in range(4):
        for r in range(4):
            a(f"v_cmp_gt_i32 s[{S_MSK+2*r}:{S_MSK+2*r+1}], s{S_REM+i}, v{V_TOK+r}")
        a.nop(1)
        for g in range(NG):
            for r in range(4):
                s = V_S + 16 * g + 4 * i + r
                a(f"v_cndmask_b32 v{s}, v{V_X}, v{s}, s[{S_MSK+2*r}:{S_MSK+2*r+1}]")
    for g in range(NG):
        s = V_S + 16 * g
        x = V_X + 1 + 2 * g
        a(f"v_max3_f32 v{x}, v{s}, v{s+1}, v{s+2}")
        for k in range(3, 15, 2):
            a(f"v_max3_f32 v{x}, v{x}, v{s+k}, v{s+k+1}")
        a(f"v_max_f32 v{x}, v{x}, v{s+15}")
    for swap in ("v_permlane16_swap_b32", "v_permlane32_swap_b32"):
        for g in range(NG):
            x = V_X + 1 + 2 * g
            a(f"v_mov_b32 v{x+1}, v{x}")
        a.nop(2)
        for g in range(NG):
            x = V_X + 1 + 2 * g
            a(f"{swap} v{x}, v{x+1}")
        a.nop(1)
        for g in range(NG):
            x = V_X + 1 + 2 * g
            a(f"v_max_f32 v{x}, v{x}, v{x+1}")
    a(f"s_lshl_b32 s{S_T0}, s{S_W}, 2")
    a(f"v_add_u32 v{V_T0}, s{S_T0}, v{V_MADDR}")
    for g in range(NG):
        a(f"ds_write_b32 v{V_T0}, v{V_X+1+2*g} offset:{g*512}")
    a("s_waitcnt lgkmcnt(0)")
    a("s_barrier")
    for g in range(NG):
        k = V_KF + 8 * g
        a(f"ds_read_b128 v[{k}:{k+3}], v{V_MADDR} offset:{g*512}")
        a(f"ds_read_b128 v[{k+4}:{k+7}], v{V_MADDR} offset:{g*512+16}")
    a("s_waitcnt lgkmcnt(0)")
    for g in range(NG):
        k = V_KF + 8 * g
        a(f"v_max3_f32 v{k}, v{k}, v{k+1}, v{k+2}")
        a(f"v_max3_f32 v{k+3}, v{k+3}, v{k+4}, v{k+5}")
        a(f"v_max3_f32 v{k}, v{k}, v{k+6}, v{k+7}")
        a(f"v_max_f32 v{k}, v{k}, v{k+3}")
        a(f"v_mul_f32 v{V_MC+g}, s{S_C}, v{k}")
    for g in range(NG):
        for k in range(16):
            s = V_S + 16 * g + k
            a(f"v_fma_f32 v{s}, v{s}, s{S_C}, -v{V_MC+g}")
        for k in range(16):
            s = V_S + 16 * g + k
            a(f"v_exp_f32 v{s}, v{s}")
    a.nop(1)
    for g in range(NG):
        for i in range(4):
            s = V_S + 16 * g + 4 * i
            p = V_P + 8 * g + 2 * i
            a(f"v_cvt_pk_bf16_f32 v{p}, v{s}, v{s+1}")
            a(f"v_cvt_pk_bf16_f32 v{p+1}, v{s+2}, v{s+3}")
    def prow_off(i, g):
        if NG == 1:
            return i * 4096
        return (i % 3) * 8192 + g * 4096
    nrows0 = 4 if NG == 1 else 3
    for i in range(nrows0):
        for g in range(NG):
            p = V_P + 8 * g + 2 * i
            a(f"ds_write_b64 v{V_PWR}, v[{p}:{p+1}] offset:{prow_off(i, g)}")
    for g in range(NG):
        s = V_S + 16 * g
        x = V_X + 1 + 2 * g
        for k in range(0, 16, 2):
            a(f"v_add_f32 v{s+k}, v{s+k}, v{s+k+1}")
        for k in range(0, 16, 4):
            a(f"v_add_f32 v{s+k}, v{s+k}, v{s+k+2}")
        a(f"v_add_f32 v{s}, v{s}, v{s+4}")
        a(f"v_add_f32 v{s+8}, v{s+8}, v{s+12}")
        a(f"v_add_f32 v{x}, v{s}, v{s+8}")
    for swap in ("v_permlane16_swap_b32", "v_permlane32_swap_b32"):
        for g in range(NG):
            x = V_X + 1 + 2 * g
            a(f"v_mov_b32 v{x+1}, v{x}")
        a.nop(2)
        for g in range(NG):
            x = V_X + 1 + 2 * g
            a(f"{swap} v{x}, v{x+1}")
        a.nop(1)
        for g in range(NG):
            x = V_X + 1 + 2 * g
            a(f"v_add_f32 v{x}, v{x}, v{x+1}")
    a(f"v_add_u32 v{V_T0}, 1024, v{V_T0}")
    for g in range(NG):
        a(f"ds_write_b32 v{V_T0}, v{V_X+1+2*g} offset:{g*512}")
    for i in range(4):
        a(f"s_waitcnt vmcnt({12-4*i}) lgkmcnt(0)")
        a("s_barrier")
        if NG == 2 and i == 2:
            pass
        def rd(u):
            buf = u & 1
            for g in range(NG):
                A = V_A + 8 * buf + 4 * g
                a(f"ds_read_b128 v[{A}:{A+3}], v{V_PRD} offset:{prow_off(i, g) + u*1024}")
            B = V_B + 4 * buf
            for h in range(2):
                wv = 2 * u + h
                base = V_VTLO if wv < 4 else V_VTHI
                off = (wv & 3) * 16384 + i * 4096
                a(f"ds_read_b64_tr_b16 v[{B+2*h}:{B+2*h+1}], v{base} offset:{off}")
        per = NG + 2
        rd(0)
        if i == 0:
            for g in range(NG):
                k = V_KF + 8 * g
                a(f"ds_read_b128 v[{k}:{k+3}], v{V_MADDR} offset:{1024+g*512}")
                a(f"ds_read_b128 v[{k+4}:{k+7}], v{V_MADDR} offset:{1024+g*512+16}")
            a("s_waitcnt lgkmcnt(0)")
            for g in range(NG):
                k = V_KF + 8 * g
                for t in range(4):
                    a(f"v_add_f32 v{k+t}, v{k+t}, v{k+t+4}")
                a(f"v_add_f32 v{k}, v{k}, v{k+1}")
                a(f"v_add_f32 v{k+2}, v{k+2}, v{k+3}")
                a(f"v_add_f32 v{V_L+g}, v{k}, v{k+2}")
        for u in range(4):
            if u < 3:
                rd(u + 1)
                a(f"s_waitcnt lgkmcnt({per})")
            else:
                a("s_waitcnt lgkmcnt(0)")
            buf = u & 1
            B = V_B + 4 * buf
            for g in range(NG):
                A = V_A + 8 * buf + 4 * g
                acc = V_ACC + 4 * g
                c = "0" if (i == 0 and u == 0) else f"v[{acc}:{acc+3}]"
                a(f"v_mfma_f32_16x16x32_bf16 v[{acc}:{acc+3}], v[{A}:{A+3}], v[{B}:{B+3}], {c}")
        if NG == 2 and i == 0:
            pass
        if NG == 2 and i == 1:
            for g in range(NG):
                p = V_P + 8 * g + 6
                a(f"ds_write_b64 v{V_PWR}, v[{p}:{p+1}] offset:{prow_off(3, g)}")
    a.nop(8)
    if NG == 1:
        a(f"s_lshl_b32 s{S_T0}, s{S_SEG}, 18")
    else:
        a(f"s_mov_b32 s{S_T0}, 0")
    a(f"s_lshl_b32 s{S_T1}, s{S_KVH}, 4")
    a(f"s_add_u32 s{S_T1}, s{S_T1}, s{S_SIG}")
    a(f"s_lshl_b32 s{S_T2}, s{S_T1}, 11")
    a(f"s_add_u32 s{S_T0}, s{S_T0}, s{S_T2}")
    a(f"s_lshl_b32 s{S_T2}, s{S_W}, 6")
    a(f"s_add_u32 s{S_T0}, s{S_T0}, s{S_T2}")
    if NG == 1:
        a("s_mov_b64 exec, 0xffff")
    for g in range(NG):
        if g == 1:
            a(f"s_add_u32 s{S_T0}, s{S_T0}, {4*262144}")
        for r in range(4):
            a(f"buffer_store_dword v{V_ACC+4*g+r}, v{V_OOFF}, s[{SRD_WS}:{SRD_WS+3}], s{S_T0} offen offset:{r*512}")
    a(f"s_cmp_lg_u32 s{S_W}, 0")
    a(f"s_cbranch_scc1 {tag}_NOML")
    a(f"s_lshl_b32 s{S_T1}, s{S_T1}, 5")
    a(f"s_add_u32 s{S_T1}, s{S_T1}, 0x{WS_ML:x}")
    if NG == 1:
        a(f"s_lshl_b32 s{S_T2}, s{S_SEG}, 12")
        a(f"s_add_u32 s{S_T1}, s{S_T1}, s{S_T2}")
        a("s_mov_b64 exec, 0xf")
    else:
        a("s_mov_b64 exec, 0xffff")
    for g in range(NG):
        a(f"v_mov_b32 v{V_X}, v{V_MC+g}")
        a(f"v_mov_b32 v{V_X+1}, v{V_L+g}")
        if g == 1:
            a(f"s_add_u32 s{S_T1}, s{S_T1}, 16384")
        a(f"buffer_store_dwordx2 v[{V_X}:{V_X+1}], v{V_MLOFF}, s[{SRD_WS}:{SRD_WS+3}], s{S_T1} offen")
        if g == 0 and NG == 2:
            a.nop(2)
    a.label(f"{tag}_NOML")
    a("s_mov_b64 exec, -1")

def kernelB(a: Asm):
    a.label("attn_comb_kernel")
    a("s_cmp_ge_u32 s2, 64")
    a("s_cbranch_scc1 B_END")
    a("s_load_dwordx4 s[4:7], s[0:1], 40")
    a("s_load_dwordx2 s[8:9], s[0:1], 56")
    a("v_lshrrev_b32 v1, 6, v0")
    a("v_and_b32 v2, 63, v0")
    a("v_readfirstlane_b32 s3, v1")
    a("v_lshlrev_b32 v3, 3, v2")
    a("s_lshl_b32 s10, s2, 4")
    a("s_waitcnt lgkmcnt(0)")
    a("s_mov_b32 s12, s8")
    a("s_and_b32 s13, s9, 0xffff")
    a(f"s_mov_b32 s14, 0x{4<<20:x}")
    a("s_mov_b32 s15, 0x20000")
    a("s_lshl_b32 s11, s10, 11")
    a("s_lshl_b32 s16, s3, 9")
    a("s_add_u32 s11, s11, s16")
    for sg in range(9):
        if sg == 2 or sg == 4 or sg == 6 or sg == 8:
            a("s_add_u32 s11, s11, 4096")
        a(f"buffer_load_dwordx2 v[{8+2*sg}:{9+2*sg}], v3, s[12:15], s11 offen offset:{(sg&1)*2048}")
    a("s_lshl_b32 s16, s10, 5")
    a("s_lshl_b32 s17, s3, 3")
    a("s_add_u32 s16, s16, s17")
    a(f"s_add_u32 s16, s16, 0x{WS_ML:x}")
    a("s_add_u32 s18, s8, s16")
    a("s_addc_u32 s19, s9, 0")
    for sg in range(9):
        a(f"s_load_dwordx2 s[{24+2*sg}:{25+2*sg}], s[18:19], {sg*32}")
    a("s_lshr_b32 s16, s2, 3")
    a("s_lshl_b32 s16, s16, 2")
    a(f"s_add_u32 s16, s16, 0x{WS_CNT:x}")
    a("s_add_u32 s20, s8, s16")
    a("s_addc_u32 s21, s9, 0")
    a("s_load_dword s22, s[20:21], 0")
    a("s_waitcnt lgkmcnt(0)")
    for sg in range(9):
        a(f"s_cmp_lt_u32 {sg}, s22")
        a(f"s_cselect_b32 s{24+2*sg}, s{24+2*sg}, 0x{NEG:x}")
        a(f"s_cselect_b32 s{25+2*sg}, s{25+2*sg}, 0")
    a("v_mov_b32 v4, s24")
    for sg in range(1, 9):
        a(f"v_max_f32 v4, s{24+2*sg}, v4")
    for sg in range(9):
        a(f"v_sub_f32 v{30+sg}, s{24+2*sg}, v4")
    for sg in range(9):
        a(f"v_exp_f32 v{30+sg}, v{30+sg}")
    a.nop(1)
    a("v_mul_f32 v5, s25, v30")
    for sg in range(1, 9):
        a(f"v_fmac_f32 v5, s{25+2*sg}, v{30+sg}")
    a("v_rcp_f32 v5, v5")
    a("v_mov_b32 v6, 0")
    a("v_mov_b32 v7, 0")
    a("s_waitcnt vmcnt(0)")
    for sg in range(9):
        a(f"s_cmp_lt_u32 {sg}, s22")
        a(f"s_cbranch_scc0 B_DONE")
        a(f"v_fmac_f32 v6, v{8+2*sg}, v{30+sg}")
        a(f"v_fmac_f32 v7, v{9+2*sg}, v{30+sg}")
    a.label("B_DONE")
    a("v_mul_f32 v6, v6, v5")
    a("v_mul_f32 v7, v7, v5")
    a("v_cvt_pk_bf16_f32 v6, v6, v7")
    a("s_lshl_b32 s16, s2, 2")
    a("s_add_u32 s16, s16, s3")
    a("s_lshl_b32 s16, s16, 8")
    a("v_lshlrev_b32 v3, 2, v2")
    a("v_add_u32 v3, s16, v3")
    a("global_store_dword v3, v6, s[4:5]")
    a.label("B_END")
    a("s_endpgm")

HEADER = """; paged decode attention, split-KV partial kernel + combine kernel
; @launch kernel=attn_part_kernel grid=(256,1,1) block=(512,1,1) lds={lds}
; @launch kernel=attn_comb_kernel grid=(64,1,1) block=(256,1,1) lds=0
.amdgcn_target "amdgcn-amd-amdhsa--gfx950"
.text
"""

def kd(name, vgpr, sgpr):
    acc = (vgpr + 3) // 4 * 4
    return f""".amdhsa_kernel {name}
  .amdhsa_next_free_vgpr {vgpr}
  .amdhsa_next_free_sgpr {sgpr}
  .amdhsa_accum_offset {acc}
  .amdhsa_group_segment_fixed_size 0
  .amdhsa_kernarg_size 64
  .amdhsa_user_sgpr_count 2
  .amdhsa_user_sgpr_kernarg_segment_ptr 1
  .amdhsa_system_sgpr_workgroup_id_x 1
.end_amdhsa_kernel
"""

def main(out):
    t = HEADER.format(lds=LDS_TOTAL)
    for name, fn in (("attn_part_kernel", kernelA), ("attn_comb_kernel", kernelB)):
        a = Asm()
        fn(a)
        t += f".globl {name}\n.p2align 8\n.type {name},@function\n" + a.text()
    t += '.section .rodata,"a"\n.p2align 6\n' + kd("attn_part_kernel", V_END, 102) + ".p2align 6\n" + kd("attn_comb_kernel", 40, 48)
    open(out, "w").write(t)

if __name__ == "__main__":
    main(sys.argv[1] if len(sys.argv) > 1 else f"cdna_kernels/{NAME}.s")
```

```python
import struct, sys, math

NAME = "standalone__paged_block_table_kv_radixattention__decode"

def f32bits(x):
    return struct.unpack("<I", struct.pack("<f", x))[0]

STAMP = int(__import__('os').environ.get('STAMP', '0'))
STAMP_WG = int(__import__('os').environ.get('STAMP_WG', '100'))
V_STAMP = 184
def stamp(a, idx):
    if not STAMP: return
    a("s_memrealtime s[100:101]")
    a("s_waitcnt lgkmcnt(0)")
    a(f"v_writelane_b32 v{V_STAMP}, s100, {idx}")
def stamp_out(a):
    if not STAMP: return
    a("s_cmp_lg_u32 s3, 0")
    a("s_cbranch_scc1 ST_SKIP")
    a("v_lshlrev_b32 v2, 2, v1")
    a("s_mov_b64 exec, 0xffff")
    a("s_lshl_b32 s80, s2, 6")
    a("s_add_u32 s80, s80, 0x300000")
    a(f"buffer_store_dword v{V_STAMP}, v2, s[52:55], s80 offen")
    a(f"s_cmp_lg_u32 s2, {STAMP_WG}")
    a("s_cbranch_scc1 ST_SKIP2")
    a(f"global_store_dword v2, v{V_STAMP}, s[20:21]")
    a.label("ST_SKIP2")
    a("s_mov_b64 exec, -1")
    a.label("ST_SKIP")

class Asm:
    def __init__(self):
        self.lines = []
    def __call__(self, s):
        self.lines.append("  " + s)
    def label(self, s):
        self.lines.append(s + ":")
    def nop(self, n):
        while n > 0:
            k = min(n, 16)
            self.lines.append("  s_nop %d" % (k - 1))
            n -= k
    def c(self, s):
        self.lines.append("  ; " + s)
    def text(self):
        return "\n".join(self.lines) + "\n"

import os
POL = os.environ.get('POL', '')
KV_BYTES = 1152 * 32768
NEG = 0xF1800000
CSCALE = f32bits((128 ** -0.5) * math.log2(math.e))
LDS_KV = 0
LDS_P = 131072
LDS_TBL = LDS_P
LDS_SW = LDS_P + 8192
LDS_M = LDS_P + 24576
LDS_L = LDS_M + 1024
LDS_TOTAL = LDS_L + 1024
WS_O = 0
WS_ML = 2 << 20
WS_CNT = WS_ML + 65536

S_W = 3
S_Q, S_K, S_V, S_BT, S_CTX, S_OUT, S_DBG, S_WS = 8, 10, 12, 14, 16, 18, 20, 22
S_CTXV = 24
S_NBLK = 32
SRD_K, SRD_V, SRD_Q, SRD_WS = 40, 44, 48, 52
S_S, S_IT, S_KVH, S_SEG, S_CH, S_N, S_NC, S_LO, S_HI, S_START, S_SIG, S_LIM = 56, 57, 58, 59, 60, 61, 62, 63, 64, 65, 66, 67
S_SOFF = 68
S_NR = 72
S_REM = 76
S_T0, S_T1, S_T2, S_T3 = 80, 81, 82, 83
S_MSK = 84
S_NCSH, S_CUM, S_MINF, S_C, S_M0B, S_NEG = 92, 93, 94, 95, 96, 97
S_ROW = 98
S_TOT = 99

V_TID = 0
V_LANE, V_T0, V_T1, V_T2, V_T3 = 1, 2, 3, 4, 5
V_G, V_C = 6, 7
V_ROW = 8
V_ROW0 = 12
V_SW = 16
V_KOFF = 17
V_VOFF = 21
V_KRD = 25
V_VTLO, V_VTHI = 29, 30
V_PRD = 31
V_PWR = 32
V_MADDR = 33
V_TOK = 34
V_QOFFP, V_QOFFS = 38, 39
V_OOFF = 40
V_MLOFF = 41
V_MC = 42
V_L = 44
V_X = 46
V_Q = 56
V_KF = 88
V_S = 104
V_P = 136
V_A = 152
V_B = 168
V_ACC = 176
V_END = 184

def kernelA(a: Asm):
    a.label("attn_part_kernel")
    a("s_cmp_ge_u32 s2, 256")
    a("s_cbranch_scc1 A_END")
    if STAMP:
        a("s_memrealtime s[100:101]")
    a("s_load_dwordx16 s[8:23], s[0:1], 0")
    a(f"v_and_b32 v{V_LANE}, 63, v0")
    a(f"v_lshrrev_b32 v{V_T0}, 6, v0")
    a(f"v_lshlrev_b32 v{V_T1}, 4, v{V_LANE}")
    a(f"v_readfirstlane_b32 s{S_W}, v{V_T0}")
    a(f"v_lshlrev_b32 v{V_T2}, 4, v0")
    a(f"v_lshrrev_b32 v{V_G}, 4, v{V_LANE}")
    a(f"v_and_b32 v{V_C}, 15, v{V_LANE}")
    a(f"s_and_b32 s{S_KVH}, s2, 7")
    a(f"s_lshr_b32 s{S_IT}, s2, 3")
    a(f"s_mov_b32 s{S_C}, 0x{CSCALE:08x}")
    a(f"s_mov_b32 s{S_NEG}, 0x{NEG:08x}")
    a("s_waitcnt lgkmcnt(0)")
    if STAMP:
        a(f"v_writelane_b32 v{V_STAMP}, s100, 0")
    stamp(a, 1)
    a(f"global_load_dwordx4 v[{V_ROW}:{V_ROW+3}], v{V_T2}, s[{S_BT}:{S_BT+1}]")
    a(f"global_load_dwordx4 v[{V_ROW0}:{V_ROW0+3}], v{V_T1}, s[{S_BT}:{S_BT+1}]")
    a(f"s_load_dwordx8 s[{S_CTXV}:{S_CTXV+7}], s[{S_CTX}:{S_CTX+1}], 0")
    for srd, p, sz in ((SRD_K, S_K, KV_BYTES), (SRD_V, S_V, KV_BYTES), (SRD_Q, S_Q, 65536), (SRD_WS, S_WS, 4 << 20)):
        a(f"s_mov_b32 s{srd}, s{p}")
        a(f"s_and_b32 s{srd+1}, s{p+1}, 0xffff")
        a(f"s_mov_b32 s{srd+2}, 0x{sz:x}")
        a(f"s_mov_b32 s{srd+3}, 0x20000")
    for j in range(4):
        a(f"v_add_u32 v{V_T0}, {4*j}, v{V_G}")
        a(f"v_xor_b32 v{V_T3}, v{V_T0}, v{V_C}")
        a(f"v_lshlrev_b32 v{V_T3}, 4, v{V_T3}")
        a(f"v_lshl_add_u32 v{V_KOFF+j}, v{V_T0}, 11, v{V_T3}")
        if j:
            a(f"v_subrev_u32 v{V_KOFF+j}, {1024*j}, v{V_KOFF+j}")
        a(f"v_and_b32 v{V_T3}, 7, v{V_T0}")
        a(f"v_lshlrev_b32 v{V_T3}, 1, v{V_T3}")
        a(f"v_xor_b32 v{V_T3}, v{V_T3}, v{V_C}")
        a(f"v_lshlrev_b32 v{V_T3}, 4, v{V_T3}")
        a(f"v_lshl_add_u32 v{V_VOFF+j}, v{V_T0}, 11, v{V_T3}")
        if j:
            a(f"v_subrev_u32 v{V_VOFF+j}, {1024*j}, v{V_VOFF+j}")
    a(f"s_lshl_b32 s{S_M0B}, s{S_W}, 14")
    for j in range(4):
        a(f"v_add_u32 v{V_T0}, {4*j}, v{V_G}")
        a(f"v_xor_b32 v{V_T0}, v{V_T0}, v{V_C}")
        a(f"v_lshlrev_b32 v{V_T0}, 4, v{V_T0}")
        a(f"v_lshl_add_u32 v{V_T0}, v{V_C}, 8, v{V_T0}")
        a(f"v_add_u32 v{V_KRD+j}, s{S_M0B}, v{V_T0}")
    a(f"v_lshrrev_b32 v{V_T0}, 2, v{V_C}")
    a(f"v_lshl_add_u32 v{V_T0}, v{V_G}, 2, v{V_T0}")
    a(f"v_and_b32 v{V_T3}, 7, v{V_T0}")
    a(f"v_xor_b32 v{V_T3}, s{S_W}, v{V_T3}")
    a(f"v_lshlrev_b32 v{V_T3}, 5, v{V_T3}")
    a(f"v_lshl_add_u32 v{V_T3}, v{V_T0}, 8, v{V_T3}")
    a(f"v_and_b32 v{V_T0}, 3, v{V_C}")
    a(f"v_lshl_add_u32 v{V_VTLO}, v{V_T0}, 3, v{V_T3}")
    a(f"v_add_u32 v{V_VTHI}, 0x10000, v{V_VTLO}")
    a(f"v_add_u32 v{V_PRD}, 0x{LDS_P:x}, v{V_T1}")
    a(f"s_lshr_b32 s{S_T0}, s{S_W}, 1")
    a(f"s_lshl_b32 s{S_T0}, s{S_T0}, 10")
    a(f"s_and_b32 s{S_T1}, s{S_W}, 1")
    a(f"s_lshl_b32 s{S_T1}, s{S_T1}, 3")
    a(f"s_add_u32 s{S_T0}, s{S_T0}, s{S_T1}")
    a(f"v_add_u32 v{V_PWR}, s{S_T0}, v{V_PRD}")
    a(f"v_lshlrev_b32 v{V_MADDR}, 5, v{V_C}")
    a(f"v_add_u32 v{V_MADDR}, 0x{LDS_M:x}, v{V_MADDR}")
    for r in range(4):
        a(f"v_lshl_add_u32 v{V_TOK+r}, v{V_G}, 2, {r}")
    a(f"v_lshlrev_b32 v{V_T0}, 8, v{V_C}")
    a(f"v_lshl_add_u32 v{V_T0}, v{V_G}, 4, v{V_T0}")
    a(f"v_cmp_gt_u32 vcc, 4, v{V_C}")
    a(f"v_mov_b32 v{V_T3}, 0x40000000")
    a.nop(1)
    a(f"v_cndmask_b32 v{V_QOFFP}, v{V_T3}, v{V_T0}, vcc")
    a(f"v_lshrrev_b32 v{V_T0}, 2, v{V_C}")
    a(f"v_lshlrev_b32 v{V_T0}, 13, v{V_T0}")
    a(f"v_and_b32 v{V_T3}, 3, v{V_C}")
    a(f"v_lshl_add_u32 v{V_T0}, v{V_T3}, 8, v{V_T0}")
    a(f"v_lshl_add_u32 v{V_QOFFS}, v{V_G}, 4, v{V_T0}")
    a(f"v_lshlrev_b32 v{V_T0}, 18, v{V_G}")
    a(f"v_lshl_add_u32 v{V_OOFF}, v{V_C}, 2, v{V_T0}")
    a(f"v_lshrrev_b32 v{V_T0}, 2, v{V_C}")
    a(f"v_lshlrev_b32 v{V_T0}, 12, v{V_T0}")
    a(f"v_lshl_add_u32 v{V_MLOFF}, v{V_T3}, 3, v{V_T0}")
    a("s_waitcnt lgkmcnt(0)")
    a(f"s_movk_i32 s{S_MINF}, 256")
    for b in range(8):
        a(f"s_max_i32 s{S_CTXV+b}, s{S_CTXV+b}, 0")
        a(f"s_min_i32 s{S_CTXV+b}, s{S_CTXV+b}, 4096")
        a(f"s_add_u32 s{S_NBLK+b}, s{S_CTXV+b}, 15")
        a(f"s_lshr_b32 s{S_NBLK+b}, s{S_NBLK+b}, 4")
        a(f"s_lshr_b32 s{S_T0}, s{S_CTXV+b}, 4")
        a(f"s_min_u32 s{S_MINF}, s{S_MINF}, s{S_T0}")
    stamp(a, 2)
    a("s_waitcnt vmcnt(0)")
    stamp(a, 3)
    for e in range(4):
        a(f"v_cmp_ne_u32 s[{S_MSK+2*e}:{S_MSK+2*e+1}], v{V_ROW+e}, v{V_ROW0+e}")
    a(f"s_or_b64 s[{S_MSK}:{S_MSK+1}], s[{S_MSK}:{S_MSK+1}], s[{S_MSK+2}:{S_MSK+3}]")
    a(f"s_or_b64 s[{S_MSK+4}:{S_MSK+5}], s[{S_MSK+4}:{S_MSK+5}], s[{S_MSK+6}:{S_MSK+7}]")
    a(f"s_or_b64 s[{S_MSK}:{S_MSK+1}], s[{S_MSK}:{S_MSK+1}], s[{S_MSK+4}:{S_MSK+5}]")
    a(f"s_ff1_i32_b64 s{S_T0}, s[{S_MSK}:{S_MSK+1}]")
    a(f"s_lshl_b32 s{S_T0}, s{S_T0}, 2")
    a(f"s_min_u32 s{S_T0}, s{S_T0}, 256")
    a(f"v_mov_b32 v{V_SW}, s{S_T0}")
    a.label("A_ROUND")
    a(f"v_lshlrev_b32 v{V_T0}, 4, v0")
    a(f"v_add_u32 v{V_T0}, 0x{LDS_TBL:x}, v{V_T0}")
    a(f"ds_write_b128 v{V_T0}, v[{V_ROW}:{V_ROW+3}]")
    a(f"s_lshl_b32 s{S_T0}, s{S_W}, 2")
    a(f"s_add_u32 s{S_T0}, s{S_T0}, 0x{LDS_SW:x}")
    a(f"v_mov_b32 v{V_T3}, s{S_T0}")
    a(f"ds_write_b32 v{V_T3}, v{V_SW}")
    a(f"v_mov_b32 v{V_T3}, 0x{LDS_SW:x}")
    a("s_waitcnt lgkmcnt(0)")
    a("s_barrier")
    a(f"ds_read_b128 v[{V_X}:{V_X+3}], v{V_T3}")
    a(f"ds_read_b128 v[{V_X+4}:{V_X+7}], v{V_T3} offset:16")
    a("s_waitcnt lgkmcnt(0)")
    a(f"v_min3_u32 v{V_X}, v{V_X}, v{V_X+1}, v{V_X+2}")
    a(f"v_min3_u32 v{V_X+3}, v{V_X+3}, v{V_X+4}, v{V_X+5}")
    a(f"v_min3_u32 v{V_X+6}, v{V_X+6}, v{V_X+7}, v{V_X}")
    a(f"v_min_u32 v{V_X}, v{V_X+3}, v{V_X+6}")
    a.nop(1)
    a(f"v_readfirstlane_b32 s{S_S}, v{V_X}")
    a.nop(1)
    a(f"s_min_u32 s{S_S}, s{S_S}, s{S_MINF}")
    a(f"s_add_u32 s{S_NCSH}, s{S_S}, 31")
    a(f"s_lshr_b32 s{S_NCSH}, s{S_NCSH}, 5")
    a(f"s_mov_b32 s{S_CUM}, s{S_NCSH}")
    a(f"s_mov_b32 s{S_SEG}, -1")
    a(f"s_mov_b32 s{S_N}, s{S_S}")
    a(f"s_mov_b32 s{S_NC}, s{S_NCSH}")
    a(f"s_mov_b32 s{S_CH}, s{S_IT}")
    a(f"s_lshl_b32 s{S_LIM}, s{S_S}, 4")
    for b in range(8):
        a(f"s_sub_u32 s{S_T0}, s{S_NBLK+b}, s{S_S}")
        a(f"s_add_u32 s{S_T1}, s{S_T0}, 31")
        a(f"s_lshr_b32 s{S_T1}, s{S_T1}, 5")
        a(f"s_sub_u32 s{S_T2}, s{S_IT}, s{S_CUM}")
        a(f"s_add_u32 s{S_CUM}, s{S_CUM}, s{S_T1}")
        a(f"s_cmp_lt_u32 s{S_T2}, s{S_T1}")
        a(f"s_cselect_b32 s{S_SEG}, {b}, s{S_SEG}")
        a(f"s_cselect_b32 s{S_N}, s{S_T0}, s{S_N}")
        a(f"s_cselect_b32 s{S_NC}, s{S_T1}, s{S_NC}")
        a(f"s_cselect_b32 s{S_CH}, s{S_T2}, s{S_CH}")
        a(f"s_cselect_b32 s{S_LIM}, s{S_CTXV+b}, s{S_LIM}")
    a(f"s_mov_b32 s{S_TOT}, s{S_CUM}")
    a(f"s_cmp_ge_u32 s{S_IT}, s{S_TOT}")
    a("s_cbranch_scc1 A_FIN")
    tab = [-(-4096 // k) for k in range(1, 9)]
    lo64 = sum(tab[i] << (16 * i) for i in range(4))
    hi64 = sum(tab[4 + i] << (16 * i) for i in range(4))
    a(f"s_mov_b32 s{S_MSK}, 0x{lo64 & 0xffffffff:x}")
    a(f"s_mov_b32 s{S_MSK+1}, 0x{lo64 >> 32:x}")
    a(f"s_mov_b32 s{S_MSK+2}, 0x{hi64 & 0xffffffff:x}")
    a(f"s_mov_b32 s{S_MSK+3}, 0x{hi64 >> 32:x}")
    a(f"s_sub_u32 s{S_T0}, s{S_NC}, 1")
    a(f"s_cmp_lt_u32 s{S_T0}, 4")
    a(f"s_cselect_b64 s[{S_MSK}:{S_MSK+1}], s[{S_MSK}:{S_MSK+1}], s[{S_MSK+2}:{S_MSK+3}]")
    a(f"s_and_b32 s{S_T0}, s{S_T0}, 3")
    a(f"s_lshl_b32 s{S_T0}, s{S_T0}, 4")
    a(f"s_lshr_b64 s[{S_MSK}:{S_MSK+1}], s[{S_MSK}:{S_MSK+1}], s{S_T0}")
    a(f"s_and_b32 s{S_T0}, s{S_MSK}, 0xffff")
    a(f"s_add_u32 s{S_T1}, s{S_N}, s{S_NC}")
    a(f"s_sub_u32 s{S_T1}, s{S_T1}, 1")
    a(f"s_mul_i32 s{S_T1}, s{S_T1}, s{S_T0}")
    a(f"s_lshr_b32 s{S_T1}, s{S_T1}, 12")
    a(f"s_mul_i32 s{S_LO}, s{S_CH}, s{S_T1}")
    a(f"s_add_u32 s{S_HI}, s{S_LO}, s{S_T1}")
    a(f"s_min_u32 s{S_HI}, s{S_HI}, s{S_N}")
    a(f"s_cmp_eq_u32 s{S_SEG}, -1")
    a(f"s_cselect_b32 s{S_T0}, 0, s{S_S}")
    a(f"s_cselect_b32 s{S_ROW}, 0, s{S_SEG}")
    a(f"s_cselect_b32 s{S_T1}, 0, s{S_NCSH}")
    a(f"s_add_u32 s{S_SIG}, s{S_CH}, s{S_T1}")
    a(f"s_add_u32 s{S_START}, s{S_T0}, s{S_LO}")
    a(f"s_add_u32 s{S_START}, s{S_START}, s{S_W}")
    a(f"s_add_u32 s{S_HI}, s{S_HI}, s{S_T0}")
    a(f"v_lshlrev_b32 v{V_T0}, 3, v{V_LANE}")
    a(f"v_add_u32 v{V_T0}, s{S_START}, v{V_T0}")
    a(f"v_min_u32 v{V_T0}, 255, v{V_T0}")
    a(f"s_lshl_b32 s{S_T0}, s{S_ROW}, 10")
    a(f"s_add_u32 s{S_T0}, s{S_T0}, 0x{LDS_TBL:x}")
    a(f"v_lshl_add_u32 v{V_T0}, v{V_T0}, 2, s{S_T0}")
    a(f"ds_read_b32 v{V_T3}, v{V_T0}")
    for i in range(4):
        a(f"s_add_u32 s{S_T0}, s{S_START}, {8*i}")
        a(f"s_lshl_b32 s{S_T1}, s{S_T0}, 4")
        a(f"s_sub_i32 s{S_T1}, s{S_LIM}, s{S_T1}")
        a(f"s_cmp_lt_u32 s{S_T0}, s{S_HI}")
        a(f"s_cselect_b32 s{S_NR+i}, 0x{KV_BYTES:x}, 0")
        a(f"s_cselect_b32 s{S_REM+i}, s{S_T1}, 0")
    a(f"s_lshl_b32 s{S_T2}, s{S_KVH}, 8")
    a("s_waitcnt lgkmcnt(0)")
    for i in range(4):
        a(f"v_readlane_b32 s{S_SOFF+i}, v{V_T3}, {i}")
    a.nop(1)
    for i in range(4):
        a(f"s_lshl_b32 s{S_SOFF+i}, s{S_SOFF+i}, 15")
        a(f"s_add_u32 s{S_SOFF+i}, s{S_SOFF+i}, s{S_T2}")
        a(f"s_cmp_eq_u32 s{S_NR+i}, 0")
        a(f"s_cselect_b32 s{S_SOFF+i}, 0, s{S_SOFF+i}")
    stamp(a, 4)
    a(f"s_cmp_eq_u32 s{S_SEG}, -1")
    a("s_cbranch_scc1 A_SHARED")
    body(a, 1)
    a("s_branch A_NEXT")
    a.label("A_SHARED")
    body(a, 2)
    a.label("A_NEXT")
    stamp(a, 13)
    stamp_out(a)
    a("s_cmp_lg_u32 s2, 0")
    a("s_cbranch_scc1 A_NOPLAN")
    a(f"s_cmp_lg_u32 s{S_W}, 0")
    a("s_cbranch_scc1 A_NOPLAN")
    a(f"s_cmp_lg_u32 s{S_IT}, 0")
    a("s_cbranch_scc1 A_NOPLAN")
    plan(a)
    a.label("A_NOPLAN")
    a(f"s_add_u32 s{S_IT}, s{S_IT}, 32")
    a(f"s_cmp_ge_u32 s{S_IT}, s{S_TOT}")
    a("s_cbranch_scc1 A_END")
    a("s_waitcnt lgkmcnt(0)")
    a("s_barrier")
    a("s_branch A_ROUND")
    a.label("A_FIN")
    a("s_cmp_lg_u32 s2, 0")
    a("s_cbranch_scc1 A_END")
    a(f"s_cmp_lg_u32 s{S_W}, 0")
    a("s_cbranch_scc1 A_END")
    a(f"s_cmp_lg_u32 s{S_IT}, 0")
    a("s_cbranch_scc1 A_END")
    plan(a)
    a.label("A_END")
    a("s_endpgm")

def plan(a):
    for b in range(8):
        a(f"s_sub_u32 s{S_T0}, s{S_NBLK+b}, s{S_S}")
        a(f"s_add_u32 s{S_T0}, s{S_T0}, 31")
        a(f"s_lshr_b32 s{S_T0}, s{S_T0}, 5")
        a(f"s_add_u32 s{S_T0}, s{S_T0}, s{S_NCSH}")
        a(f"v_writelane_b32 v{V_X}, s{S_T0}, {b}")
    a(f"v_lshlrev_b32 v{V_T0}, 2, v{V_LANE}")
    a("s_mov_b64 exec, 0xff")
    a(f"s_mov_b32 s{S_T0}, 0x{WS_CNT:x}")
    a(f"buffer_store_dword v{V_X}, v{V_T0}, s[{SRD_WS}:{SRD_WS+3}], s{S_T0} offen")
    a("s_mov_b64 exec, -1")

uid = [0]
def body(a: Asm, NG: int):
    uid[0] += 1
    tag = f"B{NG}"
    a.c(f"---- body NG={NG}")
    if NG == 1:
        a(f"s_lshl_b32 s{S_T0}, s{S_SEG}, 13")
        a(f"s_lshl_b32 s{S_T1}, s{S_KVH}, 10")
        a(f"s_add_u32 s{S_T0}, s{S_T0}, s{S_T1}")
        for j in range(4):
            a(f"buffer_load_dwordx4 v[{V_Q+4*j}:{V_Q+4*j+3}], v{V_QOFFP}, s[{SRD_Q}:{SRD_Q+3}], s{S_T0} offen offset:{64*j}")
    else:
        a(f"s_lshl_b32 s{S_T0}, s{S_KVH}, 10")
        a(f"s_add_u32 s{S_T1}, s{S_T0}, 32768")
        for g in range(2):
            for j in range(4):
                a(f"buffer_load_dwordx4 v[{V_Q+16*g+4*j}:{V_Q+16*g+4*j+3}], v{V_QOFFS}, s[{SRD_Q}:{SRD_Q+3}], s{S_T0+g} offen offset:{64*j}")
    for i in range(4):
        a(f"s_add_u32 m0, s{S_M0B}, {i*4096}")
        a(f"s_mov_b32 s{SRD_K+2}, s{S_NR+i}")
        for j in range(4):
            a(f"buffer_load_dwordx4 v{V_KOFF+j}, s[{SRD_K}:{SRD_K+3}], s{S_SOFF+i} offen offset:{1024*j} {POL} lds")
    stamp(a, 5)
    for i in range(4):
        a("s_waitcnt vmcnt(12)")
        if i == 0: stamp(a, 6)
        if i == 3: stamp(a, 7)
        for j in range(4):
            a(f"ds_read_b128 v[{V_KF+4*j}:{V_KF+4*j+3}], v{V_KRD+j} offset:{i*4096}")
        a(f"s_add_u32 m0, s{S_M0B}, {i*4096}")
        a(f"s_mov_b32 s{SRD_V+2}, s{S_NR+i}")
        a("s_waitcnt lgkmcnt(0)")
        for j in range(4):
            a(f"buffer_load_dwordx4 v{V_VOFF+j}, s[{SRD_V}:{SRD_V+3}], s{S_SOFF+i} offen offset:{1024*j} {POL} lds")
        for g in range(NG):
            s = V_S + 16 * g + 4 * i
            for j in range(4):
                c = "0" if j == 0 else f"v[{s}:{s+3}]"
                a(f"v_mfma_f32_16x16x32_bf16 v[{s}:{s+3}], v[{V_KF+4*j}:{V_KF+4*j+3}], v[{V_Q+16*g+4*j}:{V_Q+16*g+4*j+3}], {c}")
    a.nop(8)
    a(f"v_mov_b32 v{V_X}, s{S_NEG}")
    for i in range(4):
        for r in range(4):
            a(f"v_cmp_gt_i32 s[{S_MSK+2*r}:{S_MSK+2*r+1}], s{S_REM+i}, v{V_TOK+r}")
        a.nop(1)
        for g in range(NG):
            for r in range(4):
                s = V_S + 16 * g + 4 * i + r
                a(f"v_cndmask_b32 v{s}, v{V_X}, v{s}, s[{S_MSK+2*r}:{S_MSK+2*r+1}]")
    for g in range(NG):
        s = V_S + 16 * g
        x = V_X + 1 + 2 * g
        a(f"v_max3_f32 v{x}, v{s}, v{s+1}, v{s+2}")
        for k in range(3, 15, 2):
            a(f"v_max3_f32 v{x}, v{x}, v{s+k}, v{s+k+1}")
        a(f"v_max_f32 v{x}, v{x}, v{s+15}")
    for swap in ("v_permlane16_swap_b32", "v_permlane32_swap_b32"):
        for g in range(NG):
            x = V_X + 1 + 2 * g
            a(f"v_mov_b32 v{x+1}, v{x}")
        a.nop(2)
        for g in range(NG):
            x = V_X + 1 + 2 * g
            a(f"{swap} v{x}, v{x+1}")
        a.nop(1)
        for g in range(NG):
            x = V_X + 1 + 2 * g
            a(f"v_max_f32 v{x}, v{x}, v{x+1}")
    a(f"s_lshl_b32 s{S_T0}, s{S_W}, 2")
    a(f"v_add_u32 v{V_T0}, s{S_T0}, v{V_MADDR}")
    for g in range(NG):
        a(f"ds_write_b32 v{V_T0}, v{V_X+1+2*g} offset:{g*512}")
    a("s_waitcnt lgkmcnt(0)")
    a("s_barrier")
    stamp(a, 8)
    for g in range(NG):
        k = V_KF + 8 * g
        a(f"ds_read_b128 v[{k}:{k+3}], v{V_MADDR} offset:{g*512}")
        a(f"ds_read_b128 v[{k+4}:{k+7}], v{V_MADDR} offset:{g*512+16}")
    a("s_waitcnt lgkmcnt(0)")
    for g in range(NG):
        k = V_KF + 8 * g
        a(f"v_max3_f32 v{k}, v{k}, v{k+1}, v{k+2}")
        a(f"v_max3_f32 v{k+3}, v{k+3}, v{k+4}, v{k+5}")
        a(f"v_max3_f32 v{k}, v{k}, v{k+6}, v{k+7}")
        a(f"v_max_f32 v{k}, v{k}, v{k+3}")
        a(f"v_mul_f32 v{V_MC+g}, s{S_C}, v{k}")
    for g in range(NG):
        for k in range(16):
            s = V_S + 16 * g + k
            a(f"v_fma_f32 v{s}, v{s}, s{S_C}, -v{V_MC+g}")
        for k in range(16):
            s = V_S + 16 * g + k
            a(f"v_exp_f32 v{s}, v{s}")
    a.nop(1)
    for g in range(NG):
        for i in range(4):
            s = V_S + 16 * g + 4 * i
            p = V_P + 8 * g + 2 * i
            a(f"v_cvt_pk_bf16_f32 v{p}, v{s}, v{s+1}")
            a(f"v_cvt_pk_bf16_f32 v{p+1}, v{s+2}, v{s+3}")
    def prow_off(i, g):
        if NG == 1:
            return i * 4096
        return (i % 3) * 8192 + g * 4096
    nrows0 = 4 if NG == 1 else 3
    for i in range(nrows0):
        for g in range(NG):
            p = V_P + 8 * g + 2 * i
            a(f"ds_write_b64 v{V_PWR}, v[{p}:{p+1}] offset:{prow_off(i, g)}")
    for g in range(NG):
        s = V_S + 16 * g
        x = V_X + 1 + 2 * g
        for k in range(0, 16, 2):
            a(f"v_add_f32 v{s+k}, v{s+k}, v{s+k+1}")
        for k in range(0, 16, 4):
            a(f"v_add_f32 v{s+k}, v{s+k}, v{s+k+2}")
        a(f"v_add_f32 v{s}, v{s}, v{s+4}")
        a(f"v_add_f32 v{s+8}, v{s+8}, v{s+12}")
        a(f"v_add_f32 v{x}, v{s}, v{s+8}")
    for swap in ("v_permlane16_swap_b32", "v_permlane32_swap_b32"):
        for g in range(NG):
            x = V_X + 1 + 2 * g
            a(f"v_mov_b32 v{x+1}, v{x}")
        a.nop(2)
        for g in range(NG):
            x = V_X + 1 + 2 * g
            a(f"{swap} v{x}, v{x+1}")
        a.nop(1)
        for g in range(NG):
            x = V_X + 1 + 2 * g
            a(f"v_add_f32 v{x}, v{x}, v{x+1}")
    a(f"v_add_u32 v{V_T0}, 1024, v{V_T0}")
    for g in range(NG):
        a(f"ds_write_b32 v{V_T0}, v{V_X+1+2*g} offset:{g*512}")
    for i in range(4):
        a(f"s_waitcnt vmcnt({12-4*i}) lgkmcnt(0)")
        a("s_barrier")
        stamp(a, 9 + i)
        def rd(u):
            buf = u & 1
            for g in range(NG):
                A = V_A + 8 * buf + 4 * g
                a(f"ds_read_b128 v[{A}:{A+3}], v{V_PRD} offset:{prow_off(i, g) + u*1024}")
            B = V_B + 4 * buf
            for h in range(2):
                wv = 2 * u + h
                base = V_VTLO if wv < 4 else V_VTHI
                off = (wv & 3) * 16384 + i * 4096
                a(f"ds_read_b64_tr_b16 v[{B+2*h}:{B+2*h+1}], v{base} offset:{off}")
        per = NG + 2
        rd(0)
        if i == 0:
            for g in range(NG):
                k = V_KF + 8 * g
                a(f"ds_read_b128 v[{k}:{k+3}], v{V_MADDR} offset:{1024+g*512}")
                a(f"ds_read_b128 v[{k+4}:{k+7}], v{V_MADDR} offset:{1024+g*512+16}")
            a("s_waitcnt lgkmcnt(0)")
            for g in range(NG):
                k = V_KF + 8 * g
                for t in range(4):
                    a(f"v_add_f32 v{k+t}, v{k+t}, v{k+t+4}")
                a(f"v_add_f32 v{k}, v{k}, v{k+1}")
                a(f"v_add_f32 v{k+2}, v{k+2}, v{k+3}")
                a(f"v_add_f32 v{V_L+g}, v{k}, v{k+2}")
        for u in range(4):
            if u < 3:
                rd(u + 1)
                a(f"s_waitcnt lgkmcnt({per})")
            else:
                a("s_waitcnt lgkmcnt(0)")
            buf = u & 1
            B = V_B + 4 * buf
            for g in range(NG):
                A = V_A + 8 * buf + 4 * g
                acc = V_ACC + 4 * g
                c = "0" if (i == 0 and u == 0) else f"v[{acc}:{acc+3}]"
                a(f"v_mfma_f32_16x16x32_bf16 v[{acc}:{acc+3}], v[{A}:{A+3}], v[{B}:{B+3}], {c}")
        if NG == 2 and i == 0:
            pass
        if NG == 2 and i == 1:
            for g in range(NG):
                p = V_P + 8 * g + 6
                a(f"ds_write_b64 v{V_PWR}, v[{p}:{p+1}] offset:{prow_off(3, g)}")
    a.nop(8)
    if NG == 1:
        a(f"s_lshl_b32 s{S_T0}, s{S_SEG}, 18")
    else:
        a(f"s_mov_b32 s{S_T0}, 0")
    a(f"s_lshl_b32 s{S_T1}, s{S_KVH}, 4")
    a(f"s_add_u32 s{S_T1}, s{S_T1}, s{S_SIG}")
    a(f"s_lshl_b32 s{S_T2}, s{S_T1}, 11")
    a(f"s_add_u32 s{S_T0}, s{S_T0}, s{S_T2}")
    a(f"s_lshl_b32 s{S_T2}, s{S_W}, 6")
    a(f"s_add_u32 s{S_T0}, s{S_T0}, s{S_T2}")
    if NG == 1:
        a("s_mov_b64 exec, 0xffff")
    for g in range(NG):
        if g == 1:
            a(f"s_add_u32 s{S_T0}, s{S_T0}, {4*262144}")
        for r in range(4):
            a(f"buffer_store_dword v{V_ACC+4*g+r}, v{V_OOFF}, s[{SRD_WS}:{SRD_WS+3}], s{S_T0} offen offset:{r*512}")
    a(f"s_cmp_lg_u32 s{S_W}, 0")
    a(f"s_cbranch_scc1 {tag}_NOML")
    a(f"s_lshl_b32 s{S_T1}, s{S_T1}, 5")
    a(f"s_add_u32 s{S_T1}, s{S_T1}, 0x{WS_ML:x}")
    if NG == 1:
        a(f"s_lshl_b32 s{S_T2}, s{S_SEG}, 12")
        a(f"s_add_u32 s{S_T1}, s{S_T1}, s{S_T2}")
        a("s_mov_b64 exec, 0xf")
    else:
        a("s_mov_b64 exec, 0xffff")
    for g in range(NG):
        a(f"v_mov_b32 v{V_X}, v{V_MC+g}")
        a(f"v_mov_b32 v{V_X+1}, v{V_L+g}")
        if g == 1:
            a(f"s_add_u32 s{S_T1}, s{S_T1}, 16384")
        a(f"buffer_store_dwordx2 v[{V_X}:{V_X+1}], v{V_MLOFF}, s[{SRD_WS}:{SRD_WS+3}], s{S_T1} offen")
        if g == 0 and NG == 2:
            a.nop(2)
    a.label(f"{tag}_NOML")
    a("s_mov_b64 exec, -1")

def kernelB(a: Asm):
    a.label("attn_comb_kernel")
    a("s_cmp_ge_u32 s2, 64")
    a("s_cbranch_scc1 B_END")
    a("s_load_dwordx4 s[4:7], s[0:1], 40")
    a("s_load_dwordx2 s[8:9], s[0:1], 56")
    a("v_lshrrev_b32 v1, 6, v0")
    a("v_and_b32 v2, 63, v0")
    a("v_readfirstlane_b32 s3, v1")
    a("v_lshlrev_b32 v3, 3, v2")
    a("s_lshl_b32 s10, s2, 4")
    a("s_waitcnt lgkmcnt(0)")
    a("s_mov_b32 s12, s8")
    a("s_and_b32 s13, s9, 0xffff")
    a(f"s_mov_b32 s14, 0x{4<<20:x}")
    a("s_mov_b32 s15, 0x20000")
    a("s_lshl_b32 s11, s10, 11")
    a("s_lshl_b32 s16, s3, 9")
    a("s_add_u32 s11, s11, s16")
    for sg in range(9):
        if sg == 2 or sg == 4 or sg == 6 or sg == 8:
            a("s_add_u32 s11, s11, 4096")
        a(f"buffer_load_dwordx2 v[{8+2*sg}:{9+2*sg}], v3, s[12:15], s11 offen offset:{(sg&1)*2048}")
    a("s_lshl_b32 s16, s10, 5")
    a("s_lshl_b32 s17, s3, 3")
    a("s_add_u32 s16, s16, s17")
    a(f"s_add_u32 s16, s16, 0x{WS_ML:x}")
    a("s_add_u32 s18, s8, s16")
    a("s_addc_u32 s19, s9, 0")
    for sg in range(9):
        a(f"s_load_dwordx2 s[{24+2*sg}:{25+2*sg}], s[18:19], {sg*32}")
    a("s_lshr_b32 s16, s2, 3")
    a("s_lshl_b32 s16, s16, 2")
    a(f"s_add_u32 s16, s16, 0x{WS_CNT:x}")
    a("s_add_u32 s20, s8, s16")
    a("s_addc_u32 s21, s9, 0")
    a("s_load_dword s22, s[20:21], 0")
    a("s_waitcnt lgkmcnt(0)")
    for sg in range(9):
        a(f"s_cmp_lt_u32 {sg}, s22")
        a(f"s_cselect_b32 s{24+2*sg}, s{24+2*sg}, 0x{NEG:x}")
        a(f"s_cselect_b32 s{25+2*sg}, s{25+2*sg}, 0")
    a("v_mov_b32 v4, s24")
    for sg in range(1, 9):
        a(f"v_max_f32 v4, s{24+2*sg}, v4")
    for sg in range(9):
        a(f"v_sub_f32 v{30+sg}, s{24+2*sg}, v4")
    for sg in range(9):
        a(f"v_exp_f32 v{30+sg}, v{30+sg}")
    a.nop(1)
    a("v_mul_f32 v5, s25, v30")
    for sg in range(1, 9):
        a(f"v_fmac_f32 v5, s{25+2*sg}, v{30+sg}")
    a("v_rcp_f32 v5, v5")
    a("v_mov_b32 v6, 0")
    a("v_mov_b32 v7, 0")
    a("s_waitcnt vmcnt(0)")
    for sg in range(9):
        a(f"s_cmp_lt_u32 {sg}, s22")
        a(f"s_cbranch_scc0 B_DONE")
        a(f"v_fmac_f32 v6, v{8+2*sg}, v{30+sg}")
        a(f"v_fmac_f32 v7, v{9+2*sg}, v{30+sg}")
    a.label("B_DONE")
    a("v_mul_f32 v6, v6, v5")
    a("v_mul_f32 v7, v7, v5")
    a("v_cvt_pk_bf16_f32 v6, v6, v7")
    a("s_lshl_b32 s16, s2, 2")
    a("s_add_u32 s16, s16, s3")
    a("s_lshl_b32 s16, s16, 8")
    a("v_lshlrev_b32 v3, 2, v2")
    a("v_add_u32 v3, s16, v3")
    a("global_store_dword v3, v6, s[4:5]")
    a.label("B_END")
    a("s_endpgm")

HEADER = """; paged decode attention, split-KV partial kernel + combine kernel
; @launch kernel=attn_part_kernel grid=(256,1,1) block=(512,1,1) lds={lds}
; @launch kernel=attn_comb_kernel grid=(64,1,1) block=(256,1,1) lds=0
.amdgcn_target "amdgcn-amd-amdhsa--gfx950"
.text
"""

def kd(name, vgpr, sgpr):
    acc = (vgpr + 3) // 4 * 4
    return f""".amdhsa_kernel {name}
  .amdhsa_next_free_vgpr {vgpr}
  .amdhsa_next_free_sgpr {sgpr}
  .amdhsa_accum_offset {acc}
  .amdhsa_group_segment_fixed_size 0
  .amdhsa_kernarg_size 64
  .amdhsa_user_sgpr_count 2
  .amdhsa_user_sgpr_kernarg_segment_ptr 1
  .amdhsa_system_sgpr_workgroup_id_x 1
.end_amdhsa_kernel
"""

def main(out):
    t = HEADER.format(lds=LDS_TOTAL)
    for name, fn in (("attn_part_kernel", kernelA), ("attn_comb_kernel", kernelB)):
        a = Asm()
        fn(a)
        t += f".globl {name}\n.p2align 8\n.type {name},@function\n" + a.text()
    t += '.section .rodata,"a"\n.p2align 6\n' + kd("attn_part_kernel", 188, 102) + ".p2align 6\n" + kd("attn_comb_kernel", 40, 48)
    open(out, "w").write(t)

if __name__ == "__main__":
    main(sys.argv[1] if len(sys.argv) > 1 else f"cdna_kernels/{NAME}.s")
```

```python
import struct, sys, math

NAME = "standalone__paged_block_table_kv_radixattention__decode"

def f32bits(x):
    return struct.unpack("<I", struct.pack("<f", x))[0]

STAMP = int(__import__('os').environ.get('STAMP', '0'))
STAMP_WG = int(__import__('os').environ.get('STAMP_WG', '100'))
V_STAMP = 184
def stamp(a, idx):
    if not STAMP: return
    a("s_memrealtime s[100:101]")
    a("s_waitcnt lgkmcnt(0)")
    a(f"v_writelane_b32 v{V_STAMP}, s100, {idx}")
def stamp_out(a):
    if not STAMP: return
    a("s_cmp_lg_u32 s3, 0")
    a("s_cbranch_scc1 ST_SKIP")
    a("v_lshlrev_b32 v2, 2, v1")
    a("s_mov_b64 exec, 0xffff")
    a("s_lshl_b32 s80, s2, 6")
    a("s_add_u32 s80, s80, 0x300000")
    a(f"buffer_store_dword v{V_STAMP}, v2, s[52:55], s80 offen")
    a(f"s_cmp_lg_u32 s2, {STAMP_WG}")
    a("s_cbranch_scc1 ST_SKIP2")
    a(f"global_store_dword v2, v{V_STAMP}, s[20:21]")
    a.label("ST_SKIP2")
    a("s_mov_b64 exec, -1")
    a.label("ST_SKIP")

class Asm:
    def __init__(self):
        self.lines = []
    def __call__(self, s):
        self.lines.append("  " + s)
    def label(self, s):
        self.lines.append(s + ":")
    def nop(self, n):
        while n > 0:
            k = min(n, 16)
            self.lines.append("  s_nop %d" % (k - 1))
            n -= k
    def c(self, s):
        self.lines.append("  ; " + s)
    def text(self):
        return "\n".join(self.lines) + "\n"

import os
POL = os.environ.get('POL', '')
KV_BYTES = 1152 * 32768
NEG = 0xF1800000
CSCALE = f32bits((128 ** -0.5) * math.log2(math.e))
LDS_KV = 0
LDS_P = 131072
LDS_TBL = LDS_P
LDS_SW = LDS_P + 8192
LDS_M = LDS_P + 24576
LDS_L = LDS_M + 1024
LDS_TOTAL = LDS_L + 1024
WS_O = 0
WS_ML = 2 << 20
WS_CNT = WS_ML + 65536

S_W = 3
S_Q, S_K, S_V, S_BT, S_CTX, S_OUT, S_DBG, S_WS = 8, 10, 12, 14, 16, 18, 20, 22
S_CTXV = 24
S_NBLK = 32
SRD_K, SRD_V, SRD_Q, SRD_WS = 40, 44, 48, 52
S_S, S_IT, S_KVH, S_SEG, S_CH, S_N, S_NC, S_LO, S_HI, S_START, S_SIG, S_LIM = 56, 57, 58, 59, 60, 61, 62, 63, 64, 65, 66, 67
S_SOFF = 68
S_NR = 72
S_REM = 76
S_T0, S_T1, S_T2, S_T3 = 80, 81, 82, 83
S_MSK = 84
S_NCSH, S_CUM, S_MINF, S_C, S_M0B, S_NEG = 92, 93, 94, 95, 96, 97
S_ROW = 98
S_TOT = 99

V_TID = 0
V_LANE, V_T0, V_T1, V_T2, V_T3 = 1, 2, 3, 4, 5
V_G, V_C = 6, 7
V_ROW = 8
V_ROW0 = 12
V_SW = 16
V_KOFF = 17
V_VOFF = 21
V_KRD = 25
V_VTLO, V_VTHI = 29, 30
V_PRD = 31
V_PWR = 32
V_MADDR = 33
V_TOK = 34
V_QOFFP, V_QOFFS = 38, 39
V_OOFF = 40
V_MLOFF = 41
V_MC = 42
V_L = 44
V_X = 46
V_Q = 56
V_KF = 88
V_S = 104
V_P = 136
V_A = 152
V_B = 168
V_ACC = 176
V_END = 184

def kernelA(a: Asm):
    a.label("attn_part_kernel")
    a("s_cmp_ge_u32 s2, 256")
    a("s_cbranch_scc1 A_END")
    if STAMP:
        a("s_memrealtime s[100:101]")
    a("s_load_dwordx16 s[8:23], s[0:1], 0")
    a(f"v_and_b32 v{V_LANE}, 63, v0")
    a(f"v_lshrrev_b32 v{V_T0}, 6, v0")
    a(f"v_lshlrev_b32 v{V_T1}, 4, v{V_LANE}")
    a(f"v_readfirstlane_b32 s{S_W}, v{V_T0}")
    a(f"v_lshlrev_b32 v{V_T2}, 4, v0")
    a(f"v_lshrrev_b32 v{V_G}, 4, v{V_LANE}")
    a(f"v_and_b32 v{V_C}, 15, v{V_LANE}")
    a(f"s_and_b32 s{S_KVH}, s2, 7")
    a(f"s_lshr_b32 s{S_IT}, s2, 3")
    a(f"s_mov_b32 s{S_C}, 0x{CSCALE:08x}")
    a(f"s_mov_b32 s{S_NEG}, 0x{NEG:08x}")
    a("s_waitcnt lgkmcnt(0)")
    if STAMP:
        a(f"v_writelane_b32 v{V_STAMP}, s100, 0")
    stamp(a, 1)
    a(f"global_load_dwordx4 v[{V_ROW}:{V_ROW+3}], v{V_T2}, s[{S_BT}:{S_BT+1}]")
    a(f"global_load_dwordx4 v[{V_ROW0}:{V_ROW0+3}], v{V_T1}, s[{S_BT}:{S_BT+1}]")
    a(f"s_load_dwordx8 s[{S_CTXV}:{S_CTXV+7}], s[{S_CTX}:{S_CTX+1}], 0")
    for srd, p, sz in ((SRD_K, S_K, KV_BYTES), (SRD_V, S_V, KV_BYTES), (SRD_Q, S_Q, 65536), (SRD_WS, S_WS, 4 << 20)):
        a(f"s_mov_b32 s{srd}, s{p}")
        a(f"s_and_b32 s{srd+1}, s{p+1}, 0xffff")
        a(f"s_mov_b32 s{srd+2}, 0x{sz:x}")
        a(f"s_mov_b32 s{srd+3}, 0x20000")
    for j in range(4):
        a(f"v_add_u32 v{V_T0}, {4*j}, v{V_G}")
        a(f"v_xor_b32 v{V_T3}, v{V_T0}, v{V_C}")
        a(f"v_lshlrev_b32 v{V_T3}, 4, v{V_T3}")
        a(f"v_lshl_add_u32 v{V_KOFF+j}, v{V_T0}, 11, v{V_T3}")
        if j:
            a(f"v_subrev_u32 v{V_KOFF+j}, {1024*j}, v{V_KOFF+j}")
        a(f"v_and_b32 v{V_T3}, 7, v{V_T0}")
        a(f"v_lshlrev_b32 v{V_T3}, 1, v{V_T3}")
        a(f"v_xor_b32 v{V_T3}, v{V_T3}, v{V_C}")
        a(f"v_lshlrev_b32 v{V_T3}, 4, v{V_T3}")
        a(f"v_lshl_add_u32 v{V_VOFF+j}, v{V_T0}, 11, v{V_T3}")
        if j:
            a(f"v_subrev_u32 v{V_VOFF+j}, {1024*j}, v{V_VOFF+j}")
    a(f"s_lshl_b32 s{S_M0B}, s{S_W}, 14")
    for j in range(4):
        a(f"v_add_u32 v{V_T0}, {4*j}, v{V_G}")
        a(f"v_xor_b32 v{V_T0}, v{V_T0}, v{V_C}")
        a(f"v_lshlrev_b32 v{V_T0}, 4, v{V_T0}")
        a(f"v_lshl_add_u32 v{V_T0}, v{V_C}, 8, v{V_T0}")
        a(f"v_add_u32 v{V_KRD+j}, s{S_M0B}, v{V_T0}")
    a(f"v_lshrrev_b32 v{V_T0}, 2, v{V_C}")
    a(f"v_lshl_add_u32 v{V_T0}, v{V_G}, 2, v{V_T0}")
    a(f"v_and_b32 v{V_T3}, 7, v{V_T0}")
    a(f"v_xor_b32 v{V_T3}, s{S_W}, v{V_T3}")
    a(f"v_lshlrev_b32 v{V_T3}, 5, v{V_T3}")
    a(f"v_lshl_add_u32 v{V_T3}, v{V_T0}, 8, v{V_T3}")
    a(f"v_and_b32 v{V_T0}, 3, v{V_C}")
    a(f"v_lshl_add_u32 v{V_VTLO}, v{V_T0}, 3, v{V_T3}")
    a(f"v_add_u32 v{V_VTHI}, 0x10000, v{V_VTLO}")
    a(f"v_add_u32 v{V_PRD}, 0x{LDS_P:x}, v{V_T1}")
    a(f"s_lshr_b32 s{S_T0}, s{S_W}, 1")
    a(f"s_lshl_b32 s{S_T0}, s{S_T0}, 10")
    a(f"s_and_b32 s{S_T1}, s{S_W}, 1")
    a(f"s_lshl_b32 s{S_T1}, s{S_T1}, 3")
    a(f"s_add_u32 s{S_T0}, s{S_T0}, s{S_T1}")
    a(f"v_add_u32 v{V_PWR}, s{S_T0}, v{V_PRD}")
    a(f"v_lshlrev_b32 v{V_MADDR}, 5, v{V_C}")
    a(f"v_add_u32 v{V_MADDR}, 0x{LDS_M:x}, v{V_MADDR}")
    for r in range(4):
        a(f"v_lshl_add_u32 v{V_TOK+r}, v{V_G}, 2, {r}")
    a(f"v_lshlrev_b32 v{V_T0}, 8, v{V_C}")
    a(f"v_lshl_add_u32 v{V_T0}, v{V_G}, 4, v{V_T0}")
    a(f"v_cmp_gt_u32 vcc, 4, v{V_C}")
    a(f"v_mov_b32 v{V_T3}, 0x40000000")
    a.nop(1)
    a(f"v_cndmask_b32 v{V_QOFFP}, v{V_T3}, v{V_T0}, vcc")
    a(f"v_lshrrev_b32 v{V_T0}, 2, v{V_C}")
    a(f"v_lshlrev_b32 v{V_T0}, 13, v{V_T0}")
    a(f"v_and_b32 v{V_T3}, 3, v{V_C}")
    a(f"v_lshl_add_u32 v{V_T0}, v{V_T3}, 8, v{V_T0}")
    a(f"v_lshl_add_u32 v{V_QOFFS}, v{V_G}, 4, v{V_T0}")
    a(f"v_lshlrev_b32 v{V_T0}, 18, v{V_G}")
    a(f"v_lshl_add_u32 v{V_OOFF}, v{V_C}, 2, v{V_T0}")
    a(f"v_lshrrev_b32 v{V_T0}, 2, v{V_C}")
    a(f"v_lshlrev_b32 v{V_T0}, 12, v{V_T0}")
    a(f"v_lshl_add_u32 v{V_MLOFF}, v{V_T3}, 3, v{V_T0}")
    a("s_waitcnt lgkmcnt(0)")
    a(f"s_movk_i32 s{S_MINF}, 256")
    for b in range(8):
        a(f"s_max_i32 s{S_CTXV+b}, s{S_CTXV+b}, 0")
        a(f"s_min_i32 s{S_CTXV+b}, s{S_CTXV+b}, 4096")
        a(f"s_add_u32 s{S_NBLK+b}, s{S_CTXV+b}, 15")
        a(f"s_lshr_b32 s{S_NBLK+b}, s{S_NBLK+b}, 4")
        a(f"s_lshr_b32 s{S_T0}, s{S_CTXV+b}, 4")
        a(f"s_min_u32 s{S_MINF}, s{S_MINF}, s{S_T0}")
    stamp(a, 2)
    a("s_waitcnt vmcnt(0)")
    stamp(a, 3)
    for e in range(4):
        a(f"v_cmp_ne_u32 s[{S_MSK+2*e}:{S_MSK+2*e+1}], v{V_ROW+e}, v{V_ROW0+e}")
    a(f"s_or_b64 s[{S_MSK}:{S_MSK+1}], s[{S_MSK}:{S_MSK+1}], s[{S_MSK+2}:{S_MSK+3}]")
    a(f"s_or_b64 s[{S_MSK+4}:{S_MSK+5}], s[{S_MSK+4}:{S_MSK+5}], s[{S_MSK+6}:{S_MSK+7}]")
    a(f"s_or_b64 s[{S_MSK}:{S_MSK+1}], s[{S_MSK}:{S_MSK+1}], s[{S_MSK+4}:{S_MSK+5}]")
    a(f"s_ff1_i32_b64 s{S_T0}, s[{S_MSK}:{S_MSK+1}]")
    a(f"s_lshl_b32 s{S_T0}, s{S_T0}, 2")
    a(f"s_min_u32 s{S_T0}, s{S_T0}, 256")
    a(f"v_mov_b32 v{V_SW}, s{S_T0}")
    a.label("A_ROUND")
    a(f"v_lshlrev_b32 v{V_T0}, 4, v0")
    a(f"v_add_u32 v{V_T0}, 0x{LDS_TBL:x}, v{V_T0}")
    a(f"ds_write_b128 v{V_T0}, v[{V_ROW}:{V_ROW+3}]")
    a(f"s_lshl_b32 s{S_T0}, s{S_W}, 2")
    a(f"s_add_u32 s{S_T0}, s{S_T0}, 0x{LDS_SW:x}")
    a(f"v_mov_b32 v{V_T3}, s{S_T0}")
    a(f"ds_write_b32 v{V_T3}, v{V_SW}")
    a(f"v_mov_b32 v{V_T3}, 0x{LDS_SW:x}")
    a("s_waitcnt lgkmcnt(0)")
    a("s_barrier")
    a(f"ds_read_b128 v[{V_X}:{V_X+3}], v{V_T3}")
    a(f"ds_read_b128 v[{V_X+4}:{V_X+7}], v{V_T3} offset:16")
    a("s_waitcnt lgkmcnt(0)")
    a(f"v_min3_u32 v{V_X}, v{V_X}, v{V_X+1}, v{V_X+2}")
    a(f"v_min3_u32 v{V_X+3}, v{V_X+3}, v{V_X+4}, v{V_X+5}")
    a(f"v_min3_u32 v{V_X+6}, v{V_X+6}, v{V_X+7}, v{V_X}")
    a(f"v_min_u32 v{V_X}, v{V_X+3}, v{V_X+6}")
    a.nop(1)
    a(f"v_readfirstlane_b32 s{S_S}, v{V_X}")
    a.nop(1)
    a(f"s_min_u32 s{S_S}, s{S_S}, s{S_MINF}")
    a(f"s_add_u32 s{S_NCSH}, s{S_S}, 31")
    a(f"s_lshr_b32 s{S_NCSH}, s{S_NCSH}, 5")
    a(f"s_mov_b32 s{S_CUM}, s{S_NCSH}")
    a(f"s_mov_b32 s{S_SEG}, -1")
    a(f"s_mov_b32 s{S_N}, s{S_S}")
    a(f"s_mov_b32 s{S_NC}, s{S_NCSH}")
    a(f"s_mov_b32 s{S_CH}, s{S_IT}")
    a(f"s_lshl_b32 s{S_LIM}, s{S_S}, 4")
    for b in range(8):
        a(f"s_sub_u32 s{S_T0}, s{S_NBLK+b}, s{S_S}")
        a(f"s_add_u32 s{S_T1}, s{S_T0}, 31")
        a(f"s_lshr_b32 s{S_T1}, s{S_T1}, 5")
        a(f"s_sub_u32 s{S_T2}, s{S_IT}, s{S_CUM}")
        a(f"s_add_u32 s{S_CUM}, s{S_CUM}, s{S_T1}")
        a(f"s_cmp_lt_u32 s{S_T2}, s{S_T1}")
        a(f"s_cselect_b32 s{S_SEG}, {b}, s{S_SEG}")
        a(f"s_cselect_b32 s{S_N}, s{S_T0}, s{S_N}")
        a(f"s_cselect_b32 s{S_NC}, s{S_T1}, s{S_NC}")
        a(f"s_cselect_b32 s{S_CH}, s{S_T2}, s{S_CH}")
        a(f"s_cselect_b32 s{S_LIM}, s{S_CTXV+b}, s{S_LIM}")
    a(f"s_mov_b32 s{S_TOT}, s{S_CUM}")
    a(f"s_cmp_ge_u32 s{S_IT}, s{S_TOT}")
    a("s_cbranch_scc1 A_FIN")
    tab = [-(-4096 // k) for k in range(1, 9)]
    lo64 = sum(tab[i] << (16 * i) for i in range(4))
    hi64 = sum(tab[4 + i] << (16 * i) for i in range(4))
    a(f"s_mov_b32 s{S_MSK}, 0x{lo64 & 0xffffffff:x}")
    a(f"s_mov_b32 s{S_MSK+1}, 0x{lo64 >> 32:x}")
    a(f"s_mov_b32 s{S_MSK+2}, 0x{hi64 & 0xffffffff:x}")
    a(f"s_mov_b32 s{S_MSK+3}, 0x{hi64 >> 32:x}")
    a(f"s_sub_u32 s{S_T0}, s{S_NC}, 1")
    a(f"s_cmp_lt_u32 s{S_T0}, 4")
    a(f"s_cselect_b64 s[{S_MSK}:{S_MSK+1}], s[{S_MSK}:{S_MSK+1}], s[{S_MSK+2}:{S_MSK+3}]")
    a(f"s_and_b32 s{S_T0}, s{S_T0}, 3")
    a(f"s_lshl_b32 s{S_T0}, s{S_T0}, 4")
    a(f"s_lshr_b64 s[{S_MSK}:{S_MSK+1}], s[{S_MSK}:{S_MSK+1}], s{S_T0}")
    a(f"s_and_b32 s{S_T0}, s{S_MSK}, 0xffff")
    a(f"s_add_u32 s{S_T1}, s{S_N}, s{S_NC}")
    a(f"s_sub_u32 s{S_T1}, s{S_T1}, 1")
    a(f"s_mul_i32 s{S_T1}, s{S_T1}, s{S_T0}")
    a(f"s_lshr_b32 s{S_T1}, s{S_T1}, 12")
    a(f"s_mul_i32 s{S_LO}, s{S_CH}, s{S_T1}")
    a(f"s_add_u32 s{S_HI}, s{S_LO}, s{S_T1}")
    a(f"s_min_u32 s{S_HI}, s{S_HI}, s{S_N}")
    a(f"s_cmp_eq_u32 s{S_SEG}, -1")
    a(f"s_cselect_b32 s{S_T0}, 0, s{S_S}")
    a(f"s_cselect_b32 s{S_ROW}, 0, s{S_SEG}")
    a(f"s_cselect_b32 s{S_T1}, 0, s{S_NCSH}")
    a(f"s_add_u32 s{S_SIG}, s{S_CH}, s{S_T1}")
    a(f"s_add_u32 s{S_START}, s{S_T0}, s{S_LO}")
    a(f"s_add_u32 s{S_START}, s{S_START}, s{S_W}")
    a(f"s_add_u32 s{S_HI}, s{S_HI}, s{S_T0}")
    a(f"v_lshlrev_b32 v{V_T0}, 3, v{V_LANE}")
    a(f"v_add_u32 v{V_T0}, s{S_START}, v{V_T0}")
    a(f"v_min_u32 v{V_T0}, 255, v{V_T0}")
    a(f"s_lshl_b32 s{S_T0}, s{S_ROW}, 10")
    a(f"s_add_u32 s{S_T0}, s{S_T0}, 0x{LDS_TBL:x}")
    a(f"v_lshl_add_u32 v{V_T0}, v{V_T0}, 2, s{S_T0}")
    a(f"ds_read_b32 v{V_T3}, v{V_T0}")
    for i in range(4):
        a(f"s_add_u32 s{S_T0}, s{S_START}, {8*i}")
        a(f"s_lshl_b32 s{S_T1}, s{S_T0}, 4")
        a(f"s_sub_i32 s{S_T1}, s{S_LIM}, s{S_T1}")
        a(f"s_cmp_lt_u32 s{S_T0}, s{S_HI}")
        a(f"s_cselect_b32 s{S_NR+i}, 0x{KV_BYTES:x}, 0")
        a(f"s_cselect_b32 s{S_REM+i}, s{S_T1}, 0")
    a(f"s_lshl_b32 s{S_T2}, s{S_KVH}, 8")
    a("s_waitcnt lgkmcnt(0)")
    for i in range(4):
        a(f"v_readlane_b32 s{S_SOFF+i}, v{V_T3}, {i}")
    a.nop(1)
    for i in range(4):
        a(f"s_lshl_b32 s{S_SOFF+i}, s{S_SOFF+i}, 15")
        a(f"s_add_u32 s{S_SOFF+i}, s{S_SOFF+i}, s{S_T2}")
        a(f"s_cmp_eq_u32 s{S_NR+i}, 0")
        a(f"s_cselect_b32 s{S_SOFF+i}, 0, s{S_SOFF+i}")
    stamp(a, 4)
    a(f"s_cmp_eq_u32 s{S_SEG}, -1")
    a("s_cbranch_scc1 A_SHARED")
    body(a, 1)
    a("s_branch A_NEXT")
    a.label("A_SHARED")
    body(a, 2)
    a.label("A_NEXT")
    stamp(a, 13)
    stamp_out(a)
    a("s_cmp_lg_u32 s2, 0")
    a("s_cbranch_scc1 A_NOPLAN")
    a(f"s_cmp_lg_u32 s{S_W}, 0")
    a("s_cbranch_scc1 A_NOPLAN")
    a(f"s_cmp_lg_u32 s{S_IT}, 0")
    a("s_cbranch_scc1 A_NOPLAN")
    plan(a)
    a.label("A_NOPLAN")
    a(f"s_add_u32 s{S_IT}, s{S_IT}, 32")
    a(f"s_cmp_ge_u32 s{S_IT}, s{S_TOT}")
    a("s_cbranch_scc1 A_END")
    a("s_waitcnt lgkmcnt(0)")
    a("s_barrier")
    a("s_branch A_ROUND")
    a.label("A_FIN")
    a("s_cmp_lg_u32 s2, 0")
    a("s_cbranch_scc1 A_END")
    a(f"s_cmp_lg_u32 s{S_W}, 0")
    a("s_cbranch_scc1 A_END")
    a(f"s_cmp_lg_u32 s{S_IT}, 0")
    a("s_cbranch_scc1 A_END")
    plan(a)
    a.label("A_END")
    a("s_endpgm")

def plan(a):
    for b in range(8):
        a(f"s_sub_u32 s{S_T0}, s{S_NBLK+b}, s{S_S}")
        a(f"s_add_u32 s{S_T0}, s{S_T0}, 31")
        a(f"s_lshr_b32 s{S_T0}, s{S_T0}, 5")
        a(f"s_add_u32 s{S_T0}, s{S_T0}, s{S_NCSH}")
        a(f"v_writelane_b32 v{V_X}, s{S_T0}, {b}")
    a(f"v_lshlrev_b32 v{V_T0}, 2, v{V_LANE}")
    a("s_mov_b64 exec, 0xff")
    a(f"s_mov_b32 s{S_T0}, 0x{WS_CNT:x}")
    a(f"buffer_store_dword v{V_X}, v{V_T0}, s[{SRD_WS}:{SRD_WS+3}], s{S_T0} offen")
    a("s_mov_b64 exec, -1")

uid = [0]
def body(a: Asm, NG: int):
    uid[0] += 1
    tag = f"B{NG}"
    a.c(f"---- body NG={NG}")
    if NG == 1:
        a(f"s_lshl_b32 s{S_T0}, s{S_SEG}, 13")
        a(f"s_lshl_b32 s{S_T1}, s{S_KVH}, 10")
        a(f"s_add_u32 s{S_T0}, s{S_T0}, s{S_T1}")
        for j in range(4):
            a(f"buffer_load_dwordx4 v[{V_Q+4*j}:{V_Q+4*j+3}], v{V_QOFFP}, s[{SRD_Q}:{SRD_Q+3}], s{S_T0} offen offset:{64*j}")
    else:
        a(f"s_lshl_b32 s{S_T0}, s{S_KVH}, 10")
        a(f"s_add_u32 s{S_T1}, s{S_T0}, 32768")
        for g in range(2):
            for j in range(4):
                a(f"buffer_load_dwordx4 v[{V_Q+16*g+4*j}:{V_Q+16*g+4*j+3}], v{V_QOFFS}, s[{SRD_Q}:{SRD_Q+3}], s{S_T0+g} offen offset:{64*j}")
    for i in range(4):
        a(f"s_add_u32 m0, s{S_M0B}, {i*4096}")
        a(f"s_mov_b32 s{SRD_K+2}, s{S_NR+i}")
        for j in range(4):
            a(f"buffer_load_dwordx4 v{V_KOFF+j}, s[{SRD_K}:{SRD_K+3}], s{S_SOFF+i} offen offset:{1024*j} {POL} lds")
    stamp(a, 5)
    for i in range(4):
        a("s_waitcnt vmcnt(12)")
        if i == 0: stamp(a, 6)
        if i == 3: stamp(a, 7)
        for j in range(4):
            a(f"ds_read_b128 v[{V_KF+4*j}:{V_KF+4*j+3}], v{V_KRD+j} offset:{i*4096}")
        a(f"s_add_u32 m0, s{S_M0B}, {i*4096}")
        a(f"s_mov_b32 s{SRD_V+2}, s{S_NR+i}")
        a("s_waitcnt lgkmcnt(0)")
        for j in range(4):
            a(f"buffer_load_dwordx4 v{V_VOFF+j}, s[{SRD_V}:{SRD_V+3}], s{S_SOFF+i} offen offset:{1024*j} {POL} lds")
        for g in range(NG):
            s = V_S + 16 * g + 4 * i
            for j in range(4):
                c = "0" if j == 0 else f"v[{s}:{s+3}]"
                a(f"v_mfma_f32_16x16x32_bf16 v[{s}:{s+3}], v[{V_KF+4*j}:{V_KF+4*j+3}], v[{V_Q+16*g+4*j}:{V_Q+16*g+4*j+3}], {c}")
    a.nop(8)
    a(f"v_mov_b32 v{V_X}, s{S_NEG}")
    for i in range(4):
        for r in range(4):
            a(f"v_cmp_gt_i32 s[{S_MSK+2*r}:{S_MSK+2*r+1}], s{S_REM+i}, v{V_TOK+r}")
        a.nop(1)
        for g in range(NG):
            for r in range(4):
                s = V_S + 16 * g + 4 * i + r
                a(f"v_cndmask_b32 v{s}, v{V_X}, v{s}, s[{S_MSK+2*r}:{S_MSK+2*r+1}]")
    for g in range(NG):
        s = V_S + 16 * g
        x = V_X + 1 + 2 * g
        a(f"v_max3_f32 v{x}, v{s}, v{s+1}, v{s+2}")
        for k in range(3, 15, 2):
            a(f"v_max3_f32 v{x}, v{x}, v{s+k}, v{s+k+1}")
        a(f"v_max_f32 v{x}, v{x}, v{s+15}")
    for swap in ("v_permlane16_swap_b32", "v_permlane32_swap_b32"):
        for g in range(NG):
            x = V_X + 1 + 2 * g
            a(f"v_mov_b32 v{x+1}, v{x}")
        a.nop(2)
        for g in range(NG):
            x = V_X + 1 + 2 * g
            a(f"{swap} v{x}, v{x+1}")
        a.nop(1)
        for g in range(NG):
            x = V_X + 1 + 2 * g
            a(f"v_max_f32 v{x}, v{x}, v{x+1}")
    a(f"s_lshl_b32 s{S_T0}, s{S_W}, 2")
    a(f"v_add_u32 v{V_T0}, s{S_T0}, v{V_MADDR}")
    for g in range(NG):
        a(f"ds_write_b32 v{V_T0}, v{V_X+1+2*g} offset:{g*512}")
    a("s_waitcnt lgkmcnt(0)")
    a("s_barrier")
    stamp(a, 8)
    for g in range(NG):
        k = V_KF + 8 * g
        a(f"ds_read_b128 v[{k}:{k+3}], v{V_MADDR} offset:{g*512}")
        a(f"ds_read_b128 v[{k+4}:{k+7}], v{V_MADDR} offset:{g*512+16}")
    a("s_waitcnt lgkmcnt(0)")
    for g in range(NG):
        k = V_KF + 8 * g
        a(f"v_max3_f32 v{k}, v{k}, v{k+1}, v{k+2}")
        a(f"v_max3_f32 v{k+3}, v{k+3}, v{k+4}, v{k+5}")
        a(f"v_max3_f32 v{k}, v{k}, v{k+6}, v{k+7}")
        a(f"v_max_f32 v{k}, v{k}, v{k+3}")
        a(f"v_mul_f32 v{V_MC+g}, s{S_C}, v{k}")
    for g in range(NG):
        for k in range(16):
            s = V_S + 16 * g + k
            a(f"v_fma_f32 v{s}, v{s}, s{S_C}, -v{V_MC+g}")
        for k in range(16):
            s = V_S + 16 * g + k
            a(f"v_exp_f32 v{s}, v{s}")
    a.nop(1)
    for g in range(NG):
        for i in range(4):
            s = V_S + 16 * g + 4 * i
            p = V_P + 8 * g + 2 * i
            a(f"v_cvt_pk_bf16_f32 v{p}, v{s}, v{s+1}")
            a(f"v_cvt_pk_bf16_f32 v{p+1}, v{s+2}, v{s+3}")
    def prow_off(i, g):
        if NG == 1:
            return i * 4096
        return (i % 3) * 8192 + g * 4096
    nrows0 = 4 if NG == 1 else 3
    for i in range(nrows0):
        for g in range(NG):
            p = V_P + 8 * g + 2 * i
            a(f"ds_write_b64 v{V_PWR}, v[{p}:{p+1}] offset:{prow_off(i, g)}")
    for g in range(NG):
        s = V_S + 16 * g
        x = V_X + 1 + 2 * g
        for k in range(0, 16, 2):
            a(f"v_add_f32 v{s+k}, v{s+k}, v{s+k+1}")
        for k in range(0, 16, 4):
            a(f"v_add_f32 v{s+k}, v{s+k}, v{s+k+2}")
        a(f"v_add_f32 v{s}, v{s}, v{s+4}")
        a(f"v_add_f32 v{s+8}, v{s+8}, v{s+12}")
        a(f"v_add_f32 v{x}, v{s}, v{s+8}")
    for swap in ("v_permlane16_swap_b32", "v_permlane32_swap_b32"):
        for g in range(NG):
            x = V_X + 1 + 2 * g
            a(f"v_mov_b32 v{x+1}, v{x}")
        a.nop(2)
        for g in range(NG):
            x = V_X + 1 + 2 * g
            a(f"{swap} v{x}, v{x+1}")
        a.nop(1)
        for g in range(NG):
            x = V_X + 1 + 2 * g
            a(f"v_add_f32 v{x}, v{x}, v{x+1}")
    a(f"v_add_u32 v{V_T0}, 1024, v{V_T0}")
    for g in range(NG):
        a(f"ds_write_b32 v{V_T0}, v{V_X+1+2*g} offset:{g*512}")
    for i in range(4):
        a(f"s_waitcnt vmcnt({12-4*i}) lgkmcnt(0)")
        a("s_barrier")
        stamp(a, 9 + i)
        def rd(u):
            buf = u & 1
            for g in range(NG):
                A = V_A + 8 * buf + 4 * g
                a(f"ds_read_b128 v[{A}:{A+3}], v{V_PRD} offset:{prow_off(i, g) + u*1024}")
            B = V_B + 4 * buf
            for h in range(2):
                wv = 2 * u + h
                base = V_VTLO if wv < 4 else V_VTHI
                off = (wv & 3) * 16384 + i * 4096
                a(f"ds_read_b64_tr_b16 v[{B+2*h}:{B+2*h+1}], v{base} offset:{off}")
        per = NG + 2
        rd(0)
        if i == 0:
            for g in range(NG):
                k = V_KF + 8 * g
                a(f"ds_read_b128 v[{k}:{k+3}], v{V_MADDR} offset:{1024+g*512}")
                a(f"ds_read_b128 v[{k+4}:{k+7}], v{V_MADDR} offset:{1024+g*512+16}")
            a("s_waitcnt lgkmcnt(0)")
            for g in range(NG):
                k = V_KF + 8 * g
                for t in range(4):
                    a(f"v_add_f32 v{k+t}, v{k+t}, v{k+t+4}")
                a(f"v_add_f32 v{k}, v{k}, v{k+1}")
                a(f"v_add_f32 v{k+2}, v{k+2}, v{k+3}")
                a(f"v_add_f32 v{V_L+g}, v{k}, v{k+2}")
        for u in range(4):
            if u < 3:
                rd(u + 1)
                a(f"s_waitcnt lgkmcnt({per})")
            else:
                a("s_waitcnt lgkmcnt(0)")
            buf = u & 1
            B = V_B + 4 * buf
            for g in range(NG):
                A = V_A + 8 * buf + 4 * g
                acc = V_ACC + 4 * g
                c = "0" if (i == 0 and u == 0) else f"v[{acc}:{acc+3}]"
                a(f"v_mfma_f32_16x16x32_bf16 v[{acc}:{acc+3}], v[{A}:{A+3}], v[{B}:{B+3}], {c}")
        if NG == 2 and i == 0:
            pass
        if NG == 2 and i == 1:
            for g in range(NG):
                p = V_P + 8 * g + 6
                a(f"ds_write_b64 v{V_PWR}, v[{p}:{p+1}] offset:{prow_off(3, g)}")
    a.nop(8)
    if NG == 1:
        a(f"s_lshl_b32 s{S_T0}, s{S_SEG}, 18")
    else:
        a(f"s_mov_b32 s{S_T0}, 0")
    a(f"s_lshl_b32 s{S_T1}, s{S_KVH}, 4")
    a(f"s_add_u32 s{S_T1}, s{S_T1}, s{S_SIG}")
    a(f"s_lshl_b32 s{S_T2}, s{S_T1}, 11")
    a(f"s_add_u32 s{S_T0}, s{S_T0}, s{S_T2}")
    a(f"s_lshl_b32 s{S_T2}, s{S_W}, 6")
    a(f"s_add_u32 s{S_T0}, s{S_T0}, s{S_T2}")
    if NG == 1:
        a("s_mov_b64 exec, 0xffff")
    for g in range(NG):
        if g == 1:
            a(f"s_add_u32 s{S_T0}, s{S_T0}, {4*262144}")
        for r in range(4):
            a(f"buffer_store_dword v{V_ACC+4*g+r}, v{V_OOFF}, s[{SRD_WS}:{SRD_WS+3}], s{S_T0} offen offset:{r*512}")
    a(f"s_cmp_lg_u32 s{S_W}, 0")
    a(f"s_cbranch_scc1 {tag}_NOML")
    a(f"s_lshl_b32 s{S_T1}, s{S_T1}, 5")
    a(f"s_add_u32 s{S_T1}, s{S_T1}, 0x{WS_ML:x}")
    if NG == 1:
        a(f"s_lshl_b32 s{S_T2}, s{S_SEG}, 12")
        a(f"s_add_u32 s{S_T1}, s{S_T1}, s{S_T2}")
        a("s_mov_b64 exec, 0xf")
    else:
        a("s_mov_b64 exec, 0xffff")
    for g in range(NG):
        a(f"v_mov_b32 v{V_X}, v{V_MC+g}")
        a(f"v_mov_b32 v{V_X+1}, v{V_L+g}")
        if g == 1:
            a(f"s_add_u32 s{S_T1}, s{S_T1}, 16384")
        a(f"buffer_store_dwordx2 v[{V_X}:{V_X+1}], v{V_MLOFF}, s[{SRD_WS}:{SRD_WS+3}], s{S_T1} offen")
        if g == 0 and NG == 2:
            a.nop(2)
    a.label(f"{tag}_NOML")
    a("s_mov_b64 exec, -1")

def kernelB(a: Asm):
    a.label("attn_comb_kernel")
    a("s_cmp_ge_u32 s2, 64")
    a("s_cbranch_scc1 B_END")
    a("s_load_dwordx4 s[4:7], s[0:1], 40")
    a("s_load_dwordx2 s[8:9], s[0:1], 56")
    a("v_lshrrev_b32 v1, 6, v0")
    a("v_and_b32 v2, 63, v0")
    a("v_readfirstlane_b32 s3, v1")
    a("v_lshlrev_b32 v3, 3, v2")
    a("s_lshl_b32 s10, s2, 4")
    a("s_waitcnt lgkmcnt(0)")
    a("s_mov_b32 s12, s8")
    a("s_and_b32 s13, s9, 0xffff")
    a(f"s_mov_b32 s14, 0x{4<<20:x}")
    a("s_mov_b32 s15, 0x20000")
    a("s_lshl_b32 s11, s10, 11")
    a("s_lshl_b32 s16, s3, 9")
    a("s_add_u32 s11, s11, s16")
    for sg in range(9):
        if sg == 2 or sg == 4 or sg == 6 or sg == 8:
            a("s_add_u32 s11, s11, 4096")
        a(f"buffer_load_dwordx2 v[{8+2*sg}:{9+2*sg}], v3, s[12:15], s11 offen offset:{(sg&1)*2048}")
    a("s_lshl_b32 s16, s10, 5")
    a("s_lshl_b32 s17, s3, 3")
    a("s_add_u32 s16, s16, s17")
    a(f"s_add_u32 s16, s16, 0x{WS_ML:x}")
    a("s_add_u32 s18, s8, s16")
    a("s_addc_u32 s19, s9, 0")
    for sg in range(9):
        a(f"s_load_dwordx2 s[{24+2*sg}:{25+2*sg}], s[18:19], {sg*32}")
    a("s_lshr_b32 s16, s2, 3")
    a("s_lshl_b32 s16, s16, 2")
    a(f"s_add_u32 s16, s16, 0x{WS_CNT:x}")
    a("s_add_u32 s20, s8, s16")
    a("s_addc_u32 s21, s9, 0")
    a("s_load_dword s22, s[20:21], 0")
    a("s_waitcnt lgkmcnt(0)")
    for sg in range(9):
        a(f"s_cmp_lt_u32 {sg}, s22")
        a(f"s_cselect_b32 s{24+2*sg}, s{24+2*sg}, 0x{NEG:x}")
        a(f"s_cselect_b32 s{25+2*sg}, s{25+2*sg}, 0")
    a("v_mov_b32 v4, s24")
    for sg in range(1, 9):
        a(f"v_max_f32 v4, s{24+2*sg}, v4")
    for sg in range(9):
        a(f"v_sub_f32 v{30+sg}, s{24+2*sg}, v4")
    for sg in range(9):
        a(f"v_exp_f32 v{30+sg}, v{30+sg}")
    a.nop(1)
    a("v_mul_f32 v5, s25, v30")
    for sg in range(1, 9):
        a(f"v_fmac_f32 v5, s{25+2*sg}, v{30+sg}")
    a("v_rcp_f32 v5, v5")
    a("v_mov_b32 v6, 0")
    a("v_mov_b32 v7, 0")
    a("s_waitcnt vmcnt(0)")
    for sg in range(9):
        a(f"s_cmp_lt_u32 {sg}, s22")
        a(f"s_cbranch_scc0 B_DONE")
        a(f"v_fmac_f32 v6, v{8+2*sg}, v{30+sg}")
        a(f"v_fmac_f32 v7, v{9+2*sg}, v{30+sg}")
    a.label("B_DONE")
    a("v_mul_f32 v6, v6, v5")
    a("v_mul_f32 v7, v7, v5")
    a("v_cvt_pk_bf16_f32 v6, v6, v7")
    a("s_lshl_b32 s16, s2, 2")
    a("s_add_u32 s16, s16, s3")
    a("s_lshl_b32 s16, s16, 8")
    a("v_lshlrev_b32 v3, 2, v2")
    a("v_add_u32 v3, s16, v3")
    a("global_store_dword v3, v6, s[4:5]")
    if STAMP:
        a("s_cmp_lg_u32 s2, 0")
        a("s_cbranch_scc1 B_END")
        a("s_cmp_lg_u32 s3, 0")
        a("s_cbranch_scc1 B_END")
        a("s_mov_b64 exec, 0xffff")
        a("v_lshlrev_b32 v3, 2, v2")
        a(f"s_mov_b32 s16, {0x300000 + STAMP_WG*64}")
        a("buffer_load_dword v6, v3, s[12:15], s16 offen")
        a("s_memrealtime s[20:21]")
        a("s_waitcnt vmcnt(0) lgkmcnt(0)")
        a("v_writelane_b32 v6, s20, 15")
        a("global_store_dword v3, v6, s[6:7]")
    a.label("B_END")
    a("s_endpgm")

HEADER = """; paged decode attention, split-KV partial kernel + combine kernel
; @launch kernel=attn_part_kernel grid=(256,1,1) block=(512,1,1) lds={lds}
; @launch kernel=attn_comb_kernel grid=(64,1,1) block=(256,1,1) lds=0
.amdgcn_target "amdgcn-amd-amdhsa--gfx950"
.text
"""

def kd(name, vgpr, sgpr):
    acc = (vgpr + 3) // 4 * 4
    return f""".amdhsa_kernel {name}
  .amdhsa_next_free_vgpr {vgpr}
  .amdhsa_next_free_sgpr {sgpr}
  .amdhsa_accum_offset {acc}
  .amdhsa_group_segment_fixed_size 0
  .amdhsa_kernarg_size 64
  .amdhsa_user_sgpr_count 2
  .amdhsa_user_sgpr_kernarg_segment_ptr 1
  .amdhsa_system_sgpr_workgroup_id_x 1
.end_amdhsa_kernel
"""

def main(out):
    t = HEADER.format(lds=LDS_TOTAL)
    for name, fn in (("attn_part_kernel", kernelA), ("attn_comb_kernel", kernelB)):
        a = Asm()
        fn(a)
        t += f".globl {name}\n.p2align 8\n.type {name},@function\n" + a.text()
    t += '.section .rodata,"a"\n.p2align 6\n' + kd("attn_part_kernel", 188, 102) + ".p2align 6\n" + kd("attn_comb_kernel", 40, 48)
    open(out, "w").write(t)

if __name__ == "__main__":
    main(sys.argv[1] if len(sys.argv) > 1 else f"cdna_kernels/{NAME}.s")
```

```python
import struct, sys, math, os

NAME = "standalone__paged_block_table_kv_radixattention__decode"
STAMP = int(os.environ.get('STAMP', '0'))
STAMP_WG = int(os.environ.get('STAMP_WG', '100'))
POL = os.environ.get('POL', 'nt')
PRIO = int(os.environ.get('PRIO', '1'))
MAP = int(os.environ.get('MAP', '0'))

def f32bits(x):
    return struct.unpack("<I", struct.pack("<f", x))[0]

class Asm:
    def __init__(self):
        self.lines = []
    def __call__(self, s):
        self.lines.append("  " + s)
    def label(self, s):
        self.lines.append(s + ":")
    def nop(self, n):
        while n > 0:
            k = min(n, 16)
            self.lines.append("  s_nop %d" % (k - 1))
            n -= k
    def c(self, s):
        self.lines.append("  ; " + s)
    def text(self):
        return "\n".join(self.lines) + "\n"

KV_BYTES = 1152 * 32768
NEG = 0xF1800000
CSCALE = f32bits((128 ** -0.5) * math.log2(math.e))
LDS_P = 131072
LDS_TBL = LDS_P
LDS_SW = LDS_P + 8192
LDS_Q = LDS_P + 12288
LDS_M = LDS_P + 24576
LDS_L = LDS_M + 1024
LDS_TOTAL = LDS_L + 1024
WS_ML = 2 << 20
WS_CNT = WS_ML + 65536
OOB = 0x80000000

S_W = 3
S_LANE0 = 4
S_LE8 = 6
S_Q, S_K, S_V, S_BT, S_CTX, S_OUT, S_DBG, S_WS = 8, 10, 12, 14, 16, 18, 20, 22
SRD_K, SRD_V, SRD_Q, SRD_WS = 24, 28, 32, 36
S_CTXW = 40
S_S, S_IT, S_KVH, S_SIGL, S_CH, S_N, S_PER, S_LO, S_HI, S_START, S_SLOT, S_LIM = 41, 42, 43, 44, 45, 46, 47, 48, 49, 50, 51, 52
S_EX, S_CTXB, S_ROW, S_NCSH, S_TOT = 53, 54, 55, 56, 57
S_SOFF = 60
S_REM = 64
S_T0, S_T1, S_T2, S_T3 = 68, 69, 70, 71
S_MSK = 72
S_C, S_M0B, S_KVH256, S_QM0, S_QSOFF, S_GRP = 80, 81, 82, 83, 84, 85

V_LANE, V_T0, V_T1, V_T2, V_T3 = 1, 2, 3, 4, 5
V_G, V_C = 6, 7
V_ROW = 8
V_ROW0 = 12
V_KOFF = 16
V_VOFF = 20
V_KRD = 24
V_LJ = 28
V_VTLO, V_VTHI = 32, 33
V_PRD, V_PWR, V_MADDR = 34, 35, 36
V_TOK = 38
V_QOFF, V_OOFF, V_MLOFF, V_CTXA, V_NEG = 42, 43, 44, 45, 46
V_MC = 48
V_L = 50
V_X = 52
V_Q = 68
V_KF = 100
V_S = 116
V_P = 148
V_A = 164
V_B = 180
V_ACC = 188
V_STAMP = 196
V_END = 200

def stamp(a, idx):
    if not STAMP: return
    a("s_memrealtime s[100:101]")
    a("s_waitcnt lgkmcnt(0)")
    a(f"v_writelane_b32 v{V_STAMP}, s100, {idx}")
def stamp_out(a):
    if not STAMP: return
    a(f"s_cmp_lg_u32 s{S_W}, 0")
    a("s_cbranch_scc1 ST_SKIP")
    a(f"v_lshlrev_b32 v{V_T0}, 2, v{V_LANE}")
    a("s_mov_b64 exec, 0xffff")
    a(f"s_lshl_b32 s{S_T0}, s2, 6")
    a(f"s_add_u32 s{S_T0}, s{S_T0}, 0x300000")
    a(f"buffer_store_dword v{V_STAMP}, v{V_T0}, s[{SRD_WS}:{SRD_WS+3}], s{S_T0} offen")
    a("s_mov_b64 exec, -1")
    a.label("ST_SKIP")

def kernelA(a: Asm):
    a.label("attn_part_kernel")
    a("s_cmp_ge_u32 s2, 256")
    a("s_cbranch_scc1 A_END")
    if STAMP:
        a("s_memrealtime s[100:101]")
    a("s_load_dwordx16 s[8:23], s[0:1], 0")
    if PRIO:
        a("s_setprio 3")
    a(f"v_and_b32 v{V_LANE}, 63, v0")
    a(f"v_lshrrev_b32 v{V_T0}, 6, v0")
    a(f"v_lshlrev_b32 v{V_T1}, 4, v{V_LANE}")
    a(f"v_readfirstlane_b32 s{S_W}, v{V_T0}")
    a(f"v_lshlrev_b32 v{V_T2}, 4, v0")
    a(f"v_lshrrev_b32 v{V_G}, 4, v{V_LANE}")
    a(f"v_and_b32 v{V_C}, 15, v{V_LANE}")
    if MAP == 0:
        a(f"s_and_b32 s{S_KVH}, s2, 7")
        a(f"s_lshr_b32 s{S_IT}, s2, 3")
    else:
        a(f"s_lshr_b32 s{S_KVH}, s2, 3")
        a(f"s_and_b32 s{S_KVH}, s{S_KVH}, 7")
        a(f"s_lshr_b32 s{S_IT}, s2, 6")
        a(f"s_lshl_b32 s{S_IT}, s{S_IT}, 3")
        a(f"s_and_b32 s{S_T0}, s2, 7")
        a(f"s_add_u32 s{S_IT}, s{S_IT}, s{S_T0}")
    a(f"s_and_b32 s{S_T0}, s{S_W}, 3")
    a(f"s_lshl_b32 s{S_T0}, s{S_T0}, 2")
    a(f"v_add_u32 v{V_T0}, s{S_T0}, v{V_G}")
    a(f"v_xor_b32 v{V_T0}, v{V_T0}, v{V_C}")
    a(f"v_lshlrev_b32 v{V_T0}, 4, v{V_T0}")
    a(f"v_lshl_add_u32 v{V_QOFF}, v{V_G}, 8, v{V_T0}")
    a(f"s_lshl_b32 s{S_KVH256}, s{S_KVH}, 8")
    a(f"s_lshl_b32 s{S_QSOFF}, s{S_W}, 13")
    a(f"s_lshl_b32 s{S_T0}, s{S_KVH}, 10")
    a(f"s_add_u32 s{S_QSOFF}, s{S_QSOFF}, s{S_T0}")
    a(f"s_lshl_b32 s{S_QM0}, s{S_W}, 10")
    a(f"s_add_u32 s{S_QM0}, s{S_QM0}, 0x{LDS_Q:x}")
    a(f"s_lshl_b32 s{S_T1}, s{S_W}, 2")
    a("s_waitcnt lgkmcnt(0)")
    if STAMP:
        a(f"v_writelane_b32 v{V_STAMP}, s100, 0")
    stamp(a, 1)
    a(f"global_load_dwordx4 v[{V_ROW}:{V_ROW+3}], v{V_T2}, s[{S_BT}:{S_BT+1}]")
    a(f"global_load_dwordx4 v[{V_ROW0}:{V_ROW0+3}], v{V_T1}, s[{S_BT}:{S_BT+1}]")
    a(f"s_load_dword s{S_CTXW}, s[{S_CTX}:{S_CTX+1}], s{S_T1}")
    def srd(srd, p, sz):
        a(f"s_mov_b32 s{srd}, s{p}")
        a(f"s_and_b32 s{srd+1}, s{p+1}, 0xffff")
        a(f"s_mov_b32 s{srd+2}, 0x{sz:x}")
        a(f"s_mov_b32 s{srd+3}, 0x20000")
    srd(SRD_Q, S_Q, 65536)
    a(f"s_mov_b32 m0, s{S_QM0}")
    srd(SRD_K, S_K, KV_BYTES)
    a(f"buffer_load_dwordx4 v{V_QOFF}, s[{SRD_Q}:{SRD_Q+3}], s{S_QSOFF} offen lds")
    srd(SRD_V, S_V, KV_BYTES)
    srd(SRD_WS, S_WS, 4 << 20)
    a(f"s_mov_b32 s{S_C}, 0x{CSCALE:08x}")
    a(f"s_mov_b64 s[{S_LANE0}:{S_LANE0+1}], 1")
    a(f"s_mov_b64 s[{S_LE8}:{S_LE8+1}], 0x1ff")
    a(f"v_mov_b32 v{V_NEG}, 0x{NEG:08x}")
    for j in range(4):
        a(f"v_add_u32 v{V_T0}, {4*j}, v{V_G}")
        a(f"v_xor_b32 v{V_T3}, v{V_T0}, v{V_C}")
        a(f"v_lshlrev_b32 v{V_T3}, 4, v{V_T3}")
        a(f"v_lshl_add_u32 v{V_KOFF+j}, v{V_T0}, 11, v{V_T3}")
        if j:
            a(f"v_subrev_u32 v{V_KOFF+j}, {1024*j}, v{V_KOFF+j}")
        a(f"v_lshl_add_u32 v{V_LJ+j}, v{V_C}, 8, v{V_T3}")
        a(f"v_and_b32 v{V_T3}, 7, v{V_T0}")
        a(f"v_lshlrev_b32 v{V_T3}, 1, v{V_T3}")
        a(f"v_xor_b32 v{V_T3}, v{V_T3}, v{V_C}")
        a(f"v_lshlrev_b32 v{V_T3}, 4, v{V_T3}")
        a(f"v_lshl_add_u32 v{V_VOFF+j}, v{V_T0}, 11, v{V_T3}")
        if j:
            a(f"v_subrev_u32 v{V_VOFF+j}, {1024*j}, v{V_VOFF+j}")
    a(f"s_lshl_b32 s{S_M0B}, s{S_W}, 14")
    for j in range(4):
        a(f"v_add_u32 v{V_KRD+j}, s{S_M0B}, v{V_LJ+j}")
        a(f"v_add_u32 v{V_LJ+j}, 0x{LDS_Q:x}, v{V_LJ+j}")
    a(f"v_lshrrev_b32 v{V_T0}, 2, v{V_C}")
    a(f"v_lshl_add_u32 v{V_T0}, v{V_G}, 2, v{V_T0}")
    a(f"v_and_b32 v{V_T3}, 7, v{V_T0}")
    a(f"v_xor_b32 v{V_T3}, s{S_W}, v{V_T3}")
    a(f"v_lshlrev_b32 v{V_T3}, 5, v{V_T3}")
    a(f"v_lshl_add_u32 v{V_T3}, v{V_T0}, 8, v{V_T3}")
    a(f"v_and_b32 v{V_T0}, 3, v{V_C}")
    a(f"v_lshl_add_u32 v{V_VTLO}, v{V_T0}, 3, v{V_T3}")
    a(f"v_add_u32 v{V_VTHI}, 0x10000, v{V_VTLO}")
    a(f"v_add_u32 v{V_PRD}, 0x{LDS_P:x}, v{V_T1}")
    a(f"s_lshr_b32 s{S_T0}, s{S_W}, 1")
    a(f"s_lshl_b32 s{S_T0}, s{S_T0}, 10")
    a(f"s_and_b32 s{S_T1}, s{S_W}, 1")
    a(f"s_lshl_b32 s{S_T1}, s{S_T1}, 3")
    a(f"s_add_u32 s{S_T0}, s{S_T0}, s{S_T1}")
    a(f"v_add_u32 v{V_PWR}, s{S_T0}, v{V_PRD}")
    a(f"v_lshlrev_b32 v{V_MADDR}, 5, v{V_C}")
    a(f"v_add_u32 v{V_MADDR}, 0x{LDS_M:x}, v{V_MADDR}")
    for r in range(4):
        a(f"v_lshl_add_u32 v{V_TOK+r}, v{V_G}, 2, {r}")
    a(f"v_lshlrev_b32 v{V_T0}, 18, v{V_G}")
    a(f"v_lshl_add_u32 v{V_OOFF}, v{V_C}, 2, v{V_T0}")
    a(f"v_lshrrev_b32 v{V_T0}, 2, v{V_C}")
    a(f"v_lshlrev_b32 v{V_T0}, 12, v{V_T0}")
    a(f"v_and_b32 v{V_T3}, 3, v{V_C}")
    a(f"v_lshl_add_u32 v{V_MLOFF}, v{V_T3}, 3, v{V_T0}")
    a(f"v_add_u32 v{V_T0}, -1, v{V_LANE}")
    a(f"v_and_b32 v{V_T0}, 7, v{V_T0}")
    a(f"v_lshlrev_b32 v{V_T0}, 2, v{V_T0}")
    a(f"v_add_u32 v{V_CTXA}, 0x{LDS_SW+32:x}, v{V_T0}")
    a("s_waitcnt lgkmcnt(0)")
    a(f"s_max_i32 s{S_CTXW}, s{S_CTXW}, 0")
    a(f"s_min_i32 s{S_CTXW}, s{S_CTXW}, 4096")
    a.label("A_ROUND")
    a(f"v_lshlrev_b32 v{V_T0}, 4, v0")
    a(f"v_add_u32 v{V_T0}, 0x{LDS_TBL:x}, v{V_T0}")
    a(f"s_lshl_b32 s{S_T0}, s{S_W}, 2")
    a(f"s_add_u32 s{S_T0}, s{S_T0}, 0x{LDS_SW:x}")
    a(f"v_mov_b32 v{V_T3}, s{S_T0}")
    a(f"v_mov_b32 v{V_X+1}, s{S_CTXW}")
    a(f"s_lshr_b32 s{S_T1}, s{S_CTXW}, 4")
    a(f"v_mov_b32 v{V_T2}, 0x{LDS_SW:x}")
    stamp(a, 2)
    a("s_waitcnt vmcnt(0)")
    stamp(a, 3)
    for e in range(4):
        a(f"v_cmp_ne_u32 s[{S_MSK+2*e}:{S_MSK+2*e+1}], v{V_ROW+e}, v{V_ROW0+e}")
    a(f"ds_write_b128 v{V_T0}, v[{V_ROW}:{V_ROW+3}]")
    a(f"s_or_b64 s[{S_MSK}:{S_MSK+1}], s[{S_MSK}:{S_MSK+1}], s[{S_MSK+2}:{S_MSK+3}]")
    a(f"s_or_b64 s[{S_MSK+4}:{S_MSK+5}], s[{S_MSK+4}:{S_MSK+5}], s[{S_MSK+6}:{S_MSK+7}]")
    a(f"s_or_b64 s[{S_MSK}:{S_MSK+1}], s[{S_MSK}:{S_MSK+1}], s[{S_MSK+4}:{S_MSK+5}]")
    a(f"s_ff1_i32_b64 s{S_T0}, s[{S_MSK}:{S_MSK+1}]")
    a(f"s_lshl_b32 s{S_T0}, s{S_T0}, 2")
    a(f"s_min_u32 s{S_T0}, s{S_T0}, s{S_T1}")
    a(f"v_mov_b32 v{V_X}, s{S_T0}")
    a(f"ds_write2_b32 v{V_T3}, v{V_X}, v{V_X+1} offset0:0 offset1:8")
    a("s_waitcnt lgkmcnt(0)")
    a("s_barrier")
    X = V_X
    a(f"ds_read_b128 v[{X}:{X+3}], v{V_T2}")
    a(f"ds_read_b128 v[{X+4}:{X+7}], v{V_T2} offset:16")
    a(f"ds_read_b32 v{X+8}, v{V_CTXA}")
    vctx, vnb, vS, vn, vnc, vcum, vf1, vf2 = X+8, X+9, X+10, X+11, X+12, X+13, X+14, X+15
    a("s_waitcnt lgkmcnt(0)")
    a(f"v_min3_u32 v{X}, v{X}, v{X+1}, v{X+2}")
    a(f"v_min3_u32 v{X+3}, v{X+3}, v{X+4}, v{X+5}")
    a(f"v_add_u32 v{vnb}, 15, v{vctx}")
    a(f"v_min3_u32 v{X}, v{X}, v{X+6}, v{X+7}")
    a(f"v_lshrrev_b32 v{vnb}, 4, v{vnb}")
    a(f"v_min_u32 v{vS}, v{X}, v{X+3}")
    a(f"v_sub_u32 v{vn}, v{vnb}, v{vS}")
    a(f"v_cndmask_b32 v{vn}, v{vn}, v{vS}, s[{S_LANE0}:{S_LANE0+1}]")
    a(f"v_add_u32 v{vnc}, 31, v{vn}")
    a(f"v_lshrrev_b32 v{vnc}, 5, v{vnc}")
    a(f"v_cndmask_b32 v{vnc}, 0, v{vnc}, s[{S_LE8}:{S_LE8+1}]")
    a(f"v_mov_b32 v{vcum}, v{vnc}")
    a(f"v_cvt_f32_u32 v{vf2}, v{vnc}")
    a(f"v_add_u32 v{X}, v{vn}, v{vnc}")
    dpp = "row_mask:0xf bank_mask:0xf bound_ctrl:0"
    a(f"v_add_u32_dpp v{vcum}, v{vcum}, v{vcum} row_shr:1 {dpp}")
    a(f"v_rcp_f32 v{vf2}, v{vf2}")
    a(f"v_add_u32 v{X}, -1, v{X}")
    a(f"v_add_u32_dpp v{vcum}, v{vcum}, v{vcum} row_shr:2 {dpp}")
    a(f"v_cvt_f32_u32 v{vf1}, v{X}")
    a(f"v_readfirstlane_b32 s{S_S}, v{vS}")
    a(f"v_add_u32_dpp v{vcum}, v{vcum}, v{vcum} row_shr:4 {dpp}")
    a(f"v_mul_f32 v{vf1}, v{vf1}, v{vf2}")
    a(f"v_add_f32 v{vf1}, 0x3c23d70a, v{vf1}")
    a(f"v_add_u32_dpp v{vcum}, v{vcum}, v{vcum} row_shr:8 {dpp}")
    a(f"v_cvt_u32_f32 v{vf1}, v{vf1}")
    a(f"v_sub_u32 v{vf2}, v{vcum}, v{vnc}")
    a(f"v_cmp_lt_u32 vcc, s{S_IT}, v{vcum}")
    a(f"s_and_b32 s{S_T0}, vcc_lo, 0x1ff")
    a(f"s_ff1_i32_b32 s{S_SIGL}, s{S_T0}")
    a(f"s_cmp_eq_u32 s{S_T0}, 0")
    a("s_cbranch_scc1 A_FIN")
    a(f"v_readlane_b32 s{S_N}, v{vn}, s{S_SIGL}")
    a(f"v_readlane_b32 s{S_PER}, v{vf1}, s{S_SIGL}")
    a(f"v_readlane_b32 s{S_EX}, v{vf2}, s{S_SIGL}")
    a(f"v_readlane_b32 s{S_CTXB}, v{vctx}, s{S_SIGL}")
    a(f"s_sub_u32 s{S_ROW}, s{S_SIGL}, 1")
    a(f"s_max_i32 s{S_ROW}, s{S_ROW}, 0")
    a(f"s_lshl_b32 s{S_T1}, s{S_ROW}, 10")
    a(f"s_add_u32 s{S_T1}, s{S_T1}, 0x{LDS_TBL:x}")
    a(f"s_sub_u32 s{S_CH}, s{S_IT}, s{S_EX}")
    a(f"s_mul_i32 s{S_LO}, s{S_CH}, s{S_PER}")
    a(f"s_add_u32 s{S_HI}, s{S_LO}, s{S_PER}")
    a(f"s_min_u32 s{S_HI}, s{S_HI}, s{S_N}")
    a(f"s_cmp_eq_u32 s{S_SIGL}, 0")
    a(f"s_cselect_b32 s{S_T0}, 0, s{S_S}")
    a(f"s_add_u32 s{S_START}, s{S_T0}, s{S_LO}")
    a(f"s_add_u32 s{S_START}, s{S_START}, s{S_W}")
    a(f"s_add_u32 s{S_HI}, s{S_HI}, s{S_T0}")
    a(f"v_lshl_add_u32 v{X}, v{V_LANE}, 3, s{S_START}")
    a(f"v_cmp_gt_u32 vcc, s{S_HI}, v{X}")
    a(f"v_min_u32 v{X}, 255, v{X}")
    a(f"v_lshl_add_u32 v{X}, v{X}, 2, s{S_T1}")
    a(f"ds_read_b32 v{X+1}, v{X}")
    a(f"v_mov_b32 v{X+2}, 0x{OOB:x}")
    a(f"v_readlane_b32 s{S_TOT}, v{vcum}, 8")
    a(f"s_mov_b32 m0, s{S_M0B}")
    a("s_waitcnt lgkmcnt(0)")
    a(f"v_lshl_add_u32 v{X+1}, v{X+1}, 15, s{S_KVH256}")
    a(f"v_cndmask_b32 v{X+1}, v{X+2}, v{X+1}, vcc")
    a.nop(1)
    for i in range(4):
        a(f"v_readlane_b32 s{S_SOFF+i}, v{X+1}, {i}")
    a.nop(3)
    stamp(a, 4)
    for i in range(4):
        if i:
            a(f"s_add_u32 m0, s{S_M0B}, {i*4096}")
            a.nop(1)
        else:
            a.nop(1)
        for j in range(4):
            a(f"buffer_load_dwordx4 v{V_KOFF+j}, s[{SRD_K}:{SRD_K+3}], s{S_SOFF+i} offen offset:{1024*j} {POL} lds")
    if PRIO:
        a("s_setprio 0")
    a(f"s_add_u32 s{S_NCSH}, s{S_S}, 31")
    a(f"s_lshr_b32 s{S_NCSH}, s{S_NCSH}, 5")
    a(f"s_lshl_b32 s{S_T0}, s{S_S}, 4")
    a(f"s_cmp_eq_u32 s{S_SIGL}, 0")
    a(f"s_cselect_b32 s{S_LIM}, s{S_T0}, s{S_CTXB}")
    a(f"s_cselect_b32 s{S_T0}, 0, s{S_NCSH}")
    a(f"s_add_u32 s{S_SLOT}, s{S_CH}, s{S_T0}")
    for i in range(4):
        a(f"s_add_u32 s{S_T0}, s{S_START}, {8*i}")
        a(f"s_lshl_b32 s{S_T1}, s{S_T0}, 4")
        a(f"s_sub_i32 s{S_T1}, s{S_LIM}, s{S_T1}")
        a(f"s_cmp_lt_u32 s{S_T0}, s{S_HI}")
        a(f"s_cselect_b32 s{S_REM+i}, s{S_T1}, 0")
    a(f"s_cmp_eq_u32 s{S_SIGL}, 0")
    a("s_cbranch_scc1 A_SHARED")
    body(a, 1)
    a("s_branch A_NEXT")
    a.label("A_SHARED")
    body(a, 2)
    a.label("A_NEXT")
    stamp(a, 13)
    stamp_out(a)
    a("s_cmp_lg_u32 s2, 0")
    a("s_cbranch_scc1 A_NOPLAN")
    a(f"s_cmp_lg_u32 s{S_W}, 0")
    a("s_cbranch_scc1 A_NOPLAN")
    a(f"s_cmp_lg_u32 s{S_IT}, 0")
    a("s_cbranch_scc1 A_NOPLAN")
    plan(a)
    a.label("A_NOPLAN")
    a(f"s_add_u32 s{S_IT}, s{S_IT}, 32")
    a(f"s_cmp_ge_u32 s{S_IT}, s{S_TOT}")
    a("s_cbranch_scc1 A_END")
    a("s_waitcnt lgkmcnt(0)")
    a("s_barrier")
    if PRIO:
        a("s_setprio 3")
    a(f"s_mov_b32 m0, s{S_QM0}")
    a.nop(1)
    a(f"buffer_load_dwordx4 v{V_QOFF}, s[{SRD_Q}:{SRD_Q+3}], s{S_QSOFF} offen lds")
    a("s_branch A_ROUND")
    a.label("A_FIN")
    a("s_cmp_lg_u32 s2, 0")
    a("s_cbranch_scc1 A_END")
    a(f"s_cmp_lg_u32 s{S_W}, 0")
    a("s_cbranch_scc1 A_END")
    a(f"s_cmp_lg_u32 s{S_IT}, 0")
    a("s_cbranch_scc1 A_END")
    plan(a)
    a.label("A_END")
    a("s_endpgm")

def plan(a):
    a(f"s_load_dwordx8 s[{S_MSK}:{S_MSK+7}], s[{S_CTX}:{S_CTX+1}], 0")
    a(f"s_add_u32 s{S_NCSH}, s{S_S}, 31")
    a(f"s_lshr_b32 s{S_NCSH}, s{S_NCSH}, 5")
    a("s_waitcnt lgkmcnt(0)")
    for b in range(8):
        r = S_MSK + b
        a(f"s_max_i32 s{r}, s{r}, 0")
        a(f"s_min_i32 s{r}, s{r}, 4096")
        a(f"s_add_u32 s{r}, s{r}, 15")
        a(f"s_lshr_b32 s{r}, s{r}, 4")
        a(f"s_sub_u32 s{r}, s{r}, s{S_S}")
        a(f"s_add_u32 s{r}, s{r}, 31")
        a(f"s_lshr_b32 s{r}, s{r}, 5")
        a(f"s_add_u32 s{r}, s{r}, s{S_NCSH}")
        a(f"v_writelane_b32 v{V_X}, s{r}, {b}")
    a(f"v_lshlrev_b32 v{V_T0}, 2, v{V_LANE}")
    a("s_mov_b64 exec, 0xff")
    a(f"s_mov_b32 s{S_T0}, 0x{WS_CNT:x}")
    a(f"buffer_store_dword v{V_X}, v{V_T0}, s[{SRD_WS}:{SRD_WS+3}], s{S_T0} offen")
    a("s_mov_b64 exec, -1")

def body(a: Asm, NG: int):
    tag = f"B{NG}"
    a.c(f"---- body NG={NG}")
    if NG == 1:
        a(f"s_lshr_b32 s{S_GRP}, s{S_ROW}, 2")
        a(f"s_lshl_b32 s{S_T0}, s{S_GRP}, 12")
        for j in range(4):
            a(f"v_add_u32 v{V_X+j}, s{S_T0}, v{V_LJ+j}")
        for j in range(4):
            a(f"ds_read_b128 v[{V_Q+4*j}:{V_Q+4*j+3}], v{V_X+j}")
    else:
        for g in range(2):
            for j in range(4):
                a(f"ds_read_b128 v[{V_Q+16*g+4*j}:{V_Q+16*g+4*j+3}], v{V_LJ+j} offset:{g*4096}")
    stamp(a, 5)
    for i in range(4):
        a("s_waitcnt vmcnt(12)")
        if i == 0: stamp(a, 6)
        if i == 3: stamp(a, 7)
        for j in range(4):
            a(f"ds_read_b128 v[{V_KF+4*j}:{V_KF+4*j+3}], v{V_KRD+j} offset:{i*4096}")
        a(f"s_add_u32 m0, s{S_M0B}, {i*4096}")
        a("s_waitcnt lgkmcnt(0)")
        for j in range(4):
            a(f"buffer_load_dwordx4 v{V_VOFF+j}, s[{SRD_V}:{SRD_V+3}], s{S_SOFF+i} offen offset:{1024*j} {POL} lds")
        for g in range(NG):
            s = V_S + 16 * g + 4 * i
            for j in range(4):
                c = "0" if j == 0 else f"v[{s}:{s+3}]"
                a(f"v_mfma_f32_16x16x32_bf16 v[{s}:{s+3}], v[{V_KF+4*j}:{V_KF+4*j+3}], v[{V_Q+16*g+4*j}:{V_Q+16*g+4*j+3}], {c}")
    a.nop(8)
    for i in range(4):
        a(f"s_cmp_ge_i32 s{S_REM+i}, 16")
        a(f"s_cbranch_scc1 {tag}_NM{i}")
        for r in range(4):
            a(f"v_cmp_gt_i32 s[{S_MSK+2*r}:{S_MSK+2*r+1}], s{S_REM+i}, v{V_TOK+r}")
        a.nop(1)
        for g in range(NG):
            for r in range(4):
                s = V_S + 16 * g + 4 * i + r
                a(f"v_cndmask_b32 v{s}, v{V_NEG}, v{s}, s[{S_MSK+2*r}:{S_MSK+2*r+1}]")
        a.label(f"{tag}_NM{i}")
    for g in range(NG):
        s = V_S + 16 * g
        x = V_X + 1 + 2 * g
        a(f"v_max3_f32 v{x}, v{s}, v{s+1}, v{s+2}")
        for k in range(3, 15, 2):
            a(f"v_max3_f32 v{x}, v{x}, v{s+k}, v{s+k+1}")
        a(f"v_max_f32 v{x}, v{x}, v{s+15}")
    for swap in ("v_permlane16_swap_b32", "v_permlane32_swap_b32"):
        for g in range(NG):
            x = V_X + 1 + 2 * g
            a(f"v_mov_b32 v{x+1}, v{x}")
        a.nop(2)
        for g in range(NG):
            x = V_X + 1 + 2 * g
            a(f"{swap} v{x}, v{x+1}")
        a.nop(1)
        for g in range(NG):
            x = V_X + 1 + 2 * g
            a(f"v_max_f32 v{x}, v{x}, v{x+1}")
    a(f"s_lshl_b32 s{S_T0}, s{S_W}, 2")
    a(f"v_add_u32 v{V_T0}, s{S_T0}, v{V_MADDR}")
    for g in range(NG):
        a(f"ds_write_b32 v{V_T0}, v{V_X+1+2*g} offset:{g*512}")
    a("s_waitcnt lgkmcnt(0)")
    a("s_barrier")
    stamp(a, 8)
    for g in range(NG):
        k = V_KF + 8 * g
        a(f"ds_read_b128 v[{k}:{k+3}], v{V_MADDR} offset:{g*512}")
        a(f"ds_read_b128 v[{k+4}:{k+7}], v{V_MADDR} offset:{g*512+16}")
    a("s_waitcnt lgkmcnt(0)")
    for g in range(NG):
        k = V_KF + 8 * g
        a(f"v_max3_f32 v{k}, v{k}, v{k+1}, v{k+2}")
        a(f"v_max3_f32 v{k+3}, v{k+3}, v{k+4}, v{k+5}")
        a(f"v_max3_f32 v{k}, v{k}, v{k+6}, v{k+7}")
        a(f"v_max_f32 v{k}, v{k}, v{k+3}")
        a(f"v_mul_f32 v{V_MC+g}, s{S_C}, v{k}")
    for g in range(NG):
        for k in range(16):
            s = V_S + 16 * g + k
            a(f"v_fma_f32 v{s}, v{s}, s{S_C}, -v{V_MC+g}")
        for k in range(16):
            s = V_S + 16 * g + k
            a(f"v_exp_f32 v{s}, v{s}")
    a.nop(1)
    for g in range(NG):
        for i in range(4):
            s = V_S + 16 * g + 4 * i
            p = V_P + 8 * g + 2 * i
            a(f"v_cvt_pk_bf16_f32 v{p}, v{s}, v{s+1}")
            a(f"v_cvt_pk_bf16_f32 v{p+1}, v{s+2}, v{s+3}")
    def prow_off(i, g):
        if NG == 1:
            return i * 4096
        return (i % 3) * 8192 + g * 4096
    nrows0 = 4 if NG == 1 else 3
    for i in range(nrows0):
        for g in range(NG):
            p = V_P + 8 * g + 2 * i
            a(f"ds_write_b64 v{V_PWR}, v[{p}:{p+1}] offset:{prow_off(i, g)}")
    for g in range(NG):
        s = V_S + 16 * g
        x = V_X + 1 + 2 * g
        for k in range(0, 16, 2):
            a(f"v_add_f32 v{s+k}, v{s+k}, v{s+k+1}")
        for k in range(0, 16, 4):
            a(f"v_add_f32 v{s+k}, v{s+k}, v{s+k+2}")
        a(f"v_add_f32 v{s}, v{s}, v{s+4}")
        a(f"v_add_f32 v{s+8}, v{s+8}, v{s+12}")
        a(f"v_add_f32 v{x}, v{s}, v{s+8}")
    for swap in ("v_permlane16_swap_b32", "v_permlane32_swap_b32"):
        for g in range(NG):
            x = V_X + 1 + 2 * g
            a(f"v_mov_b32 v{x+1}, v{x}")
        a.nop(2)
        for g in range(NG):
            x = V_X + 1 + 2 * g
            a(f"{swap} v{x}, v{x+1}")
        a.nop(1)
        for g in range(NG):
            x = V_X + 1 + 2 * g
            a(f"v_add_f32 v{x}, v{x}, v{x+1}")
    a(f"v_add_u32 v{V_T0}, 1024, v{V_T0}")
    for g in range(NG):
        a(f"ds_write_b32 v{V_T0}, v{V_X+1+2*g} offset:{g*512}")
    for i in range(4):
        a(f"s_waitcnt vmcnt({12-4*i}) lgkmcnt(0)")
        a("s_barrier")
        stamp(a, 9 + i)
        def rd(u):
            buf = u & 1
            for g in range(NG):
                A = V_A + 8 * buf + 4 * g
                a(f"ds_read_b128 v[{A}:{A+3}], v{V_PRD} offset:{prow_off(i, g) + u*1024}")
            B = V_B + 4 * buf
            for h in range(2):
                wv = 2 * u + h
                base = V_VTLO if wv < 4 else V_VTHI
                off = (wv & 3) * 16384 + i * 4096
                a(f"ds_read_b64_tr_b16 v[{B+2*h}:{B+2*h+1}], v{base} offset:{off}")
        per = NG + 2
        rd(0)
        if i == 0:
            for g in range(NG):
                k = V_KF + 8 * g
                a(f"ds_read_b128 v[{k}:{k+3}], v{V_MADDR} offset:{1024+g*512}")
                a(f"ds_read_b128 v[{k+4}:{k+7}], v{V_MADDR} offset:{1024+g*512+16}")
            a("s_waitcnt lgkmcnt(0)")
            for g in range(NG):
                k = V_KF + 8 * g
                for t in range(4):
                    a(f"v_add_f32 v{k+t}, v{k+t}, v{k+t+4}")
                a(f"v_add_f32 v{k}, v{k}, v{k+1}")
                a(f"v_add_f32 v{k+2}, v{k+2}, v{k+3}")
                a(f"v_add_f32 v{V_L+g}, v{k}, v{k+2}")
        for u in range(4):
            if u < 3:
                rd(u + 1)
                a(f"s_waitcnt lgkmcnt({per})")
            else:
                a("s_waitcnt lgkmcnt(0)")
            buf = u & 1
            B = V_B + 4 * buf
            for g in range(NG):
                A = V_A + 8 * buf + 4 * g
                acc = V_ACC + 4 * g
                c = "0" if (i == 0 and u == 0) else f"v[{acc}:{acc+3}]"
                a(f"v_mfma_f32_16x16x32_bf16 v[{acc}:{acc+3}], v[{A}:{A+3}], v[{B}:{B+3}], {c}")
        if NG == 2 and i == 1:
            for g in range(NG):
                p = V_P + 8 * g + 6
                a(f"ds_write_b64 v{V_PWR}, v[{p}:{p+1}] offset:{prow_off(3, g)}")
    if NG == 1:
        a(f"s_lshl_b32 s{S_T0}, s{S_ROW}, 18")
        a(f"s_and_b32 s{S_T3}, s{S_ROW}, 3")
        a(f"s_lshl_b32 s{S_T2}, s{S_T3}, 18")
        a(f"s_sub_u32 s{S_T0}, s{S_T0}, s{S_T2}")
    else:
        a(f"s_mov_b32 s{S_T0}, 0")
    a(f"s_lshl_b32 s{S_T1}, s{S_KVH}, 4")
    a(f"s_add_u32 s{S_T1}, s{S_T1}, s{S_SLOT}")
    a(f"s_lshl_b32 s{S_T2}, s{S_T1}, 11")
    a(f"s_add_u32 s{S_T0}, s{S_T0}, s{S_T2}")
    a(f"s_lshl_b32 s{S_T2}, s{S_W}, 6")
    a(f"s_add_u32 s{S_T0}, s{S_T0}, s{S_T2}")
    if NG == 1:
        a(f"s_lshl_b32 s{S_T2}, s{S_T3}, 4")
        a(f"s_mov_b64 s[{S_MSK}:{S_MSK+1}], 0xffff")
        a(f"s_lshl_b64 exec, s[{S_MSK}:{S_MSK+1}], s{S_T2}")
    a.nop(4)
    for g in range(NG):
        if g == 1:
            a(f"s_add_u32 s{S_T0}, s{S_T0}, {4*262144}")
        for r in range(4):
            a(f"buffer_store_dword v{V_ACC+4*g+r}, v{V_OOFF}, s[{SRD_WS}:{SRD_WS+3}], s{S_T0} offen offset:{r*512}")
    a(f"s_cmp_lg_u32 s{S_W}, 0")
    a(f"s_cbranch_scc1 {tag}_NOML")
    a(f"s_lshl_b32 s{S_T1}, s{S_T1}, 5")
    a(f"s_add_u32 s{S_T1}, s{S_T1}, 0x{WS_ML:x}")
    if NG == 1:
        a(f"s_and_b32 s{S_T2}, s{S_ROW}, 4")
        a(f"s_lshl_b32 s{S_T2}, s{S_T2}, 12")
        a(f"s_add_u32 s{S_T1}, s{S_T1}, s{S_T2}")
        a(f"s_lshl_b32 s{S_T2}, s{S_T3}, 2")
        a(f"s_mov_b64 s[{S_MSK}:{S_MSK+1}], 0xf")
        a(f"s_lshl_b64 exec, s[{S_MSK}:{S_MSK+1}], s{S_T2}")
    else:
        a("s_mov_b64 exec, 0xffff")
    for g in range(NG):
        a(f"v_mov_b32 v{V_X}, v{V_MC+g}")
        a(f"v_mov_b32 v{V_X+1}, v{V_L+g}")
        if g == 1:
            a(f"s_add_u32 s{S_T1}, s{S_T1}, 16384")
        a(f"buffer_store_dwordx2 v[{V_X}:{V_X+1}], v{V_MLOFF}, s[{SRD_WS}:{SRD_WS+3}], s{S_T1} offen")
        if g == 0 and NG == 2:
            a.nop(2)
    a.label(f"{tag}_NOML")
    a("s_mov_b64 exec, -1")

def kernelB(a: Asm):
    a.label("attn_comb_kernel")
    a("s_cmp_ge_u32 s2, 64")
    a("s_cbranch_scc1 B_END")
    a("s_load_dwordx4 s[4:7], s[0:1], 40")
    a("s_load_dwordx2 s[8:9], s[0:1], 56")
    a("v_lshrrev_b32 v1, 6, v0")
    a("v_and_b32 v2, 63, v0")
    a("v_readfirstlane_b32 s3, v1")
    a("v_lshlrev_b32 v3, 3, v2")
    a("s_lshl_b32 s10, s2, 4")
    a("s_waitcnt lgkmcnt(0)")
    a("s_mov_b32 s12, s8")
    a("s_and_b32 s13, s9, 0xffff")
    a(f"s_mov_b32 s14, 0x{4<<20:x}")
    a("s_mov_b32 s15, 0x20000")
    a("s_lshl_b32 s11, s10, 11")
    a("s_lshl_b32 s16, s3, 9")
    a("s_add_u32 s11, s11, s16")
    for sg in range(9):
        if sg == 2 or sg == 4 or sg == 6 or sg == 8:
            a("s_add_u32 s11, s11, 4096")
        a(f"buffer_load_dwordx2 v[{8+2*sg}:{9+2*sg}], v3, s[12:15], s11 offen offset:{(sg&1)*2048}")
    a("s_lshl_b32 s16, s10, 5")
    a("s_lshl_b32 s17, s3, 3")
    a("s_add_u32 s16, s16, s17")
    a(f"s_add_u32 s16, s16, 0x{WS_ML:x}")
    a("s_add_u32 s18, s8, s16")
    a("s_addc_u32 s19, s9, 0")
    for sg in range(9):
        a(f"s_load_dwordx2 s[{24+2*sg}:{25+2*sg}], s[18:19], {sg*32}")
    a("s_lshr_b32 s16, s2, 3")
    a("s_lshl_b32 s16, s16, 2")
    a(f"s_add_u32 s16, s16, 0x{WS_CNT:x}")
    a("s_add_u32 s20, s8, s16")
    a("s_addc_u32 s21, s9, 0")
    a("s_load_dword s22, s[20:21], 0")
    a("s_waitcnt lgkmcnt(0)")
    for sg in range(9):
        a(f"s_cmp_lt_u32 {sg}, s22")
        a(f"s_cselect_b32 s{24+2*sg}, s{24+2*sg}, 0x{NEG:x}")
        a(f"s_cselect_b32 s{25+2*sg}, s{25+2*sg}, 0")
    a("v_mov_b32 v4, s24")
    for sg in range(1, 9):
        a(f"v_max_f32 v4, s{24+2*sg}, v4")
    for sg in range(9):
        a(f"v_sub_f32 v{30+sg}, s{24+2*sg}, v4")
    for sg in range(9):
        a(f"v_exp_f32 v{30+sg}, v{30+sg}")
    a.nop(1)
    a("v_mul_f32 v5, s25, v30")
    for sg in range(1, 9):
        a(f"v_fmac_f32 v5, s{25+2*sg}, v{30+sg}")
    a("v_rcp_f32 v5, v5")
    a("v_mov_b32 v6, 0")
    a("v_mov_b32 v7, 0")
    a("s_waitcnt vmcnt(0)")
    for sg in range(9):
        a(f"s_cmp_lt_u32 {sg}, s22")
        a(f"s_cbranch_scc0 B_DONE")
        a(f"v_fmac_f32 v6, v{8+2*sg}, v{30+sg}")
        a(f"v_fmac_f32 v7, v{9+2*sg}, v{30+sg}")
    a.label("B_DONE")
    a("v_mul_f32 v6, v6, v5")
    a("v_mul_f32 v7, v7, v5")
    a("v_cvt_pk_bf16_f32 v6, v6, v7")
    a("s_lshl_b32 s16, s2, 2")
    a("s_add_u32 s16, s16, s3")
    a("s_lshl_b32 s16, s16, 8")
    a("v_lshlrev_b32 v3, 2, v2")
    a("v_add_u32 v3, s16, v3")
    a("global_store_dword v3, v6, s[4:5]")
    a.label("B_END")
    a("s_endpgm")

HEADER = """; paged decode attention, split-KV partial kernel + combine kernel
; @launch kernel=attn_part_kernel grid=(256,1,1) block=(512,1,1) lds={lds}
; @launch kernel=attn_comb_kernel grid=(64,1,1) block=(256,1,1) lds=0
.amdgcn_target "amdgcn-amd-amdhsa--gfx950"
.text
"""

def kd(name, vgpr, sgpr):
    acc = (vgpr + 3) // 4 * 4
    return f""".amdhsa_kernel {name}
  .amdhsa_next_free_vgpr {vgpr}
  .amdhsa_next_free_sgpr {sgpr}
  .amdhsa_accum_offset {acc}
  .amdhsa_group_segment_fixed_size 0
  .amdhsa_kernarg_size 64
  .amdhsa_user_sgpr_count 2
  .amdhsa_user_sgpr_kernarg_segment_ptr 1
  .amdhsa_system_sgpr_workgroup_id_x 1
.end_amdhsa_kernel
"""

def main(out):
    t = HEADER.format(lds=LDS_TOTAL)
    for name, fn in (("attn_part_kernel", kernelA), ("attn_comb_kernel", kernelB)):
        a = Asm()
        fn(a)
        t += f".globl {name}\n.p2align 8\n.type {name},@function\n" + a.text()
    t += '.section .rodata,"a"\n.p2align 6\n' + kd("attn_part_kernel", V_END, 102) + ".p2align 6\n" + kd("attn_comb_kernel", 40, 48)
    open(out, "w").write(t)

if __name__ == "__main__":
    main(sys.argv[1] if len(sys.argv) > 1 else f"cdna_kernels/{NAME}.s")
```

```python
import struct, sys, math, os

NAME = "standalone__paged_block_table_kv_radixattention__decode"
STAMP = int(os.environ.get('STAMP', '0'))
STAMP_WG = int(os.environ.get('STAMP_WG', '100'))
POL = os.environ.get('POL', 'nt')
PRIO = int(os.environ.get('PRIO', '1'))
VLATE = int(os.environ.get('VLATE', '2'))
SLEEP = int(os.environ.get('SLEEP', '4'))
MAP = int(os.environ.get('MAP', '0'))

def f32bits(x):
    return struct.unpack("<I", struct.pack("<f", x))[0]

class Asm:
    def __init__(self):
        self.lines = []
    def __call__(self, s):
        self.lines.append("  " + s)
    def label(self, s):
        self.lines.append(s + ":")
    def nop(self, n):
        while n > 0:
            k = min(n, 16)
            self.lines.append("  s_nop %d" % (k - 1))
            n -= k
    def c(self, s):
        self.lines.append("  ; " + s)
    def text(self):
        return "\n".join(self.lines) + "\n"

KV_BYTES = 1152 * 32768
NEG = 0xF1800000
CSCALE = f32bits((128 ** -0.5) * math.log2(math.e))
LDS_P = 131072
LDS_TBL = LDS_P
LDS_SW = LDS_P + 8192
LDS_Q = LDS_P + 12288
LDS_M = LDS_P + 24576
LDS_L = LDS_M + 1024
LDS_TOTAL = LDS_L + 1024
WS_ML = 4 << 20
WS_EPOCH = WS_ML + 65536
WS_SIZE = 8 << 20
WS_STAMP = 6 << 20
NSLOT = 9
KNAME = NAME + "_kernel"
OOB = 0x80000000

S_W = 3
S_LANE0 = 4
S_LE8 = 6
S_Q, S_K, S_V, S_BT, S_CTX, S_OUT, S_DBG, S_WS = 8, 10, 12, 14, 16, 18, 20, 22
SRD_K, SRD_V, SRD_Q, SRD_WS = 24, 28, 32, 36
S_CTXW = 40
S_S, S_IT, S_KVH, S_SIGL, S_CH, S_N, S_PER, S_LO, S_HI, S_START, S_SLOT, S_LIM = 41, 42, 43, 44, 45, 46, 47, 48, 49, 50, 51, 52
S_EX, S_CTXB, S_ROW, S_NCSH, S_TOT = 53, 54, 55, 56, 57
S_SOFF = 60
S_REM = 64
S_T0, S_T1, S_T2, S_T3 = 68, 69, 70, 71
S_MSK = 72
S_C, S_M0B, S_KVH256, S_QM0, S_QSOFF, S_GRP = 80, 81, 82, 83, 84, 85
S_CNT, S_FF, S_SPIN, S_ZERO = 86, 87, 88, 89

V_LANE, V_T0, V_T1, V_T2, V_T3 = 1, 2, 3, 4, 5
V_G, V_C = 6, 7
V_ROW = 8
V_ROW0 = 12
V_KOFF = 16
V_VOFF = 20
V_KRD = 24
V_LJ = 28
V_VTLO, V_VTHI = 32, 33
V_PRD, V_PWR, V_MADDR = 34, 35, 36
V_TOK = 38
V_QOFF, V_OOFF, V_MLOFF, V_CTXA, V_NEG = 42, 43, 44, 45, 46
V_MC = 48
V_L = 50
V_X = 52
V_Q = 68
V_KF = 100
V_S = 116
V_P = 148
V_A = 164
V_B = 180
V_ACC = 188
V_STAMP = 196
V_N = 197
V_ZERO = 198
V_G0 = 200
V_END = 216

def stamp(a, idx):
    if not STAMP: return
    a("s_memrealtime s[100:101]")
    a("s_waitcnt lgkmcnt(0)")
    a(f"v_writelane_b32 v{V_STAMP}, s100, {idx}")
def stamp_out(a):
    if not STAMP: return
    a(f"v_lshlrev_b32 v{V_T0}, 2, v{V_LANE}")
    a("s_mov_b64 exec, 0xffff")
    a(f"s_lshl_b32 s{S_T0}, s2, 3")
    a(f"s_add_u32 s{S_T0}, s{S_T0}, s{S_W}")
    a(f"s_lshl_b32 s{S_T0}, s{S_T0}, 6")
    a(f"s_add_u32 s{S_T0}, s{S_T0}, 0x{WS_STAMP:x}")
    a(f"buffer_store_dword v{V_STAMP}, v{V_T0}, s[{SRD_WS}:{SRD_WS+3}], s{S_T0} offen")
    a("s_mov_b64 exec, -1")

def kernelA(a: Asm):
    a.label(KNAME)
    a("s_cmp_ge_u32 s2, 256")
    a("s_cbranch_scc1 A_END")
    if STAMP:
        a("s_memrealtime s[100:101]")
    a("s_load_dwordx16 s[8:23], s[0:1], 0")
    if PRIO:
        a("s_setprio 3")
    a(f"v_and_b32 v{V_LANE}, 63, v0")
    a(f"v_lshrrev_b32 v{V_T0}, 6, v0")
    a(f"v_lshlrev_b32 v{V_T1}, 4, v{V_LANE}")
    a(f"v_readfirstlane_b32 s{S_W}, v{V_T0}")
    a(f"v_lshlrev_b32 v{V_T2}, 4, v0")
    a(f"v_lshrrev_b32 v{V_G}, 4, v{V_LANE}")
    a(f"v_and_b32 v{V_C}, 15, v{V_LANE}")
    if MAP == 0:
        a(f"s_and_b32 s{S_KVH}, s2, 7")
        a(f"s_lshr_b32 s{S_IT}, s2, 3")
    else:
        a(f"s_lshr_b32 s{S_KVH}, s2, 3")
        a(f"s_and_b32 s{S_KVH}, s{S_KVH}, 7")
        a(f"s_lshr_b32 s{S_IT}, s2, 6")
        a(f"s_lshl_b32 s{S_IT}, s{S_IT}, 3")
        a(f"s_and_b32 s{S_T0}, s2, 7")
        a(f"s_add_u32 s{S_IT}, s{S_IT}, s{S_T0}")
    a(f"s_and_b32 s{S_T0}, s{S_W}, 3")
    a(f"s_lshl_b32 s{S_T0}, s{S_T0}, 2")
    a(f"v_add_u32 v{V_T0}, s{S_T0}, v{V_G}")
    a(f"v_xor_b32 v{V_T0}, v{V_T0}, v{V_C}")
    a(f"v_lshlrev_b32 v{V_T0}, 4, v{V_T0}")
    a(f"v_lshl_add_u32 v{V_QOFF}, v{V_G}, 8, v{V_T0}")
    a(f"s_lshl_b32 s{S_KVH256}, s{S_KVH}, 8")
    a(f"s_lshl_b32 s{S_QSOFF}, s{S_W}, 13")
    a(f"s_lshl_b32 s{S_T0}, s{S_KVH}, 10")
    a(f"s_add_u32 s{S_QSOFF}, s{S_QSOFF}, s{S_T0}")
    a(f"s_lshl_b32 s{S_QM0}, s{S_W}, 10")
    a(f"s_add_u32 s{S_QM0}, s{S_QM0}, 0x{LDS_Q:x}")
    a(f"s_lshl_b32 s{S_T1}, s{S_W}, 2")
    a("s_waitcnt lgkmcnt(0)")
    if STAMP:
        a(f"v_writelane_b32 v{V_STAMP}, s100, 0")
    stamp(a, 1)
    a(f"global_load_dwordx4 v[{V_ROW}:{V_ROW+3}], v{V_T2}, s[{S_BT}:{S_BT+1}]")
    a(f"global_load_dwordx4 v[{V_ROW0}:{V_ROW0+3}], v{V_T1}, s[{S_BT}:{S_BT+1}]")
    a(f"s_load_dword s{S_CTXW}, s[{S_CTX}:{S_CTX+1}], s{S_T1}")
    def srd(srd, p, sz):
        a(f"s_mov_b32 s{srd}, s{p}")
        a(f"s_and_b32 s{srd+1}, s{p+1}, 0xffff")
        a(f"s_mov_b32 s{srd+2}, 0x{sz:x}")
        a(f"s_mov_b32 s{srd+3}, 0x20000")
    srd(SRD_Q, S_Q, 65536)
    a(f"s_mov_b32 m0, s{S_QM0}")
    srd(SRD_K, S_K, KV_BYTES)
    a(f"buffer_load_dwordx4 v{V_QOFF}, s[{SRD_Q}:{SRD_Q+3}], s{S_QSOFF} offen lds")
    srd(SRD_V, S_V, KV_BYTES)
    srd(SRD_WS, S_WS, WS_SIZE)
    a(f"s_mov_b32 s{S_C}, 0x{CSCALE:08x}")
    a(f"s_mov_b64 s[{S_LANE0}:{S_LANE0+1}], 1")
    a(f"s_mov_b64 s[{S_LE8}:{S_LE8+1}], 0x1ff")
    a(f"v_mov_b32 v{V_NEG}, 0x{NEG:08x}")
    a(f"v_mov_b32 v{V_ZERO}, 0")
    a(f"s_movk_i32 s{S_FF}, 0xff")
    a("s_cmp_lg_u32 s2, 0")
    a("s_cbranch_scc1 A_NOEP")
    a(f"s_cmp_lg_u32 s{S_W}, 7")
    a("s_cbranch_scc1 A_NOEP")
    a(f"s_mov_b32 s{S_T0}, 0x{WS_EPOCH:x}")
    a(f"buffer_load_dword v{V_N}, v{V_ZERO}, s[{SRD_WS}:{SRD_WS+3}], s{S_T0} offen sc1")
    a("s_waitcnt vmcnt(0)")
    a(f"v_add_u32 v{V_N}, 1, v{V_N}")
    a(f"v_max_u32 v{V_N}, 1, v{V_N}")
    a("s_mov_b64 exec, 1")
    a(f"buffer_store_dword v{V_N}, v{V_ZERO}, s[{SRD_WS}:{SRD_WS+3}], s{S_T0} offen sc1")
    a(f"global_store_dword v{V_ZERO}, v{V_N}, s[{S_DBG}:{S_DBG+1}] sc0 sc1")
    a("s_mov_b64 exec, -1")
    a.label("A_NOEP")
    for j in range(4):
        a(f"v_add_u32 v{V_T0}, {4*j}, v{V_G}")
        a(f"v_xor_b32 v{V_T3}, v{V_T0}, v{V_C}")
        a(f"v_lshlrev_b32 v{V_T3}, 4, v{V_T3}")
        a(f"v_lshl_add_u32 v{V_KOFF+j}, v{V_T0}, 11, v{V_T3}")
        if j:
            a(f"v_subrev_u32 v{V_KOFF+j}, {1024*j}, v{V_KOFF+j}")
        a(f"v_lshl_add_u32 v{V_LJ+j}, v{V_C}, 8, v{V_T3}")
        a(f"v_and_b32 v{V_T3}, 7, v{V_T0}")
        a(f"v_lshlrev_b32 v{V_T3}, 1, v{V_T3}")
        a(f"v_xor_b32 v{V_T3}, v{V_T3}, v{V_C}")
        a(f"v_lshlrev_b32 v{V_T3}, 4, v{V_T3}")
        a(f"v_lshl_add_u32 v{V_VOFF+j}, v{V_T0}, 11, v{V_T3}")
        if j:
            a(f"v_subrev_u32 v{V_VOFF+j}, {1024*j}, v{V_VOFF+j}")
    a(f"s_lshl_b32 s{S_M0B}, s{S_W}, 14")
    for j in range(4):
        a(f"v_add_u32 v{V_KRD+j}, s{S_M0B}, v{V_LJ+j}")
        a(f"v_add_u32 v{V_LJ+j}, 0x{LDS_Q:x}, v{V_LJ+j}")
    a(f"v_lshrrev_b32 v{V_T0}, 2, v{V_C}")
    a(f"v_lshl_add_u32 v{V_T0}, v{V_G}, 2, v{V_T0}")
    a(f"v_and_b32 v{V_T3}, 7, v{V_T0}")
    a(f"v_xor_b32 v{V_T3}, s{S_W}, v{V_T3}")
    a(f"v_lshlrev_b32 v{V_T3}, 5, v{V_T3}")
    a(f"v_lshl_add_u32 v{V_T3}, v{V_T0}, 8, v{V_T3}")
    a(f"v_and_b32 v{V_T0}, 3, v{V_C}")
    a(f"v_lshl_add_u32 v{V_VTLO}, v{V_T0}, 3, v{V_T3}")
    a(f"v_add_u32 v{V_VTHI}, 0x10000, v{V_VTLO}")
    a(f"v_add_u32 v{V_PRD}, 0x{LDS_P:x}, v{V_T1}")
    a(f"s_lshr_b32 s{S_T0}, s{S_W}, 1")
    a(f"s_lshl_b32 s{S_T0}, s{S_T0}, 10")
    a(f"s_and_b32 s{S_T1}, s{S_W}, 1")
    a(f"s_lshl_b32 s{S_T1}, s{S_T1}, 3")
    a(f"s_add_u32 s{S_T0}, s{S_T0}, s{S_T1}")
    a(f"v_add_u32 v{V_PWR}, s{S_T0}, v{V_PRD}")
    a(f"v_lshlrev_b32 v{V_MADDR}, 5, v{V_C}")
    a(f"v_add_u32 v{V_MADDR}, 0x{LDS_M:x}, v{V_MADDR}")
    for r in range(4):
        a(f"v_lshl_add_u32 v{V_TOK+r}, v{V_G}, 2, {r}")
    a(f"v_lshlrev_b32 v{V_T0}, 19, v{V_G}")
    a(f"v_lshl_add_u32 v{V_OOFF}, v{V_C}, 4, v{V_T0}")
    a(f"v_lshrrev_b32 v{V_T0}, 2, v{V_C}")
    a(f"v_lshlrev_b32 v{V_T0}, 13, v{V_T0}")
    a(f"v_and_b32 v{V_T3}, 3, v{V_C}")
    a(f"v_lshl_add_u32 v{V_MLOFF}, v{V_T3}, 8, v{V_T0}")
    a(f"v_add_u32 v{V_T0}, -1, v{V_LANE}")
    a(f"v_and_b32 v{V_T0}, 7, v{V_T0}")
    a(f"v_lshlrev_b32 v{V_T0}, 2, v{V_T0}")
    a(f"v_add_u32 v{V_CTXA}, 0x{LDS_SW+32:x}, v{V_T0}")
    a("s_waitcnt lgkmcnt(0)")
    a(f"s_max_i32 s{S_CTXW}, s{S_CTXW}, 0")
    a(f"s_min_i32 s{S_CTXW}, s{S_CTXW}, 4096")
    a.label("A_ROUND")
    a(f"v_lshlrev_b32 v{V_T0}, 4, v0")
    a(f"v_add_u32 v{V_T0}, 0x{LDS_TBL:x}, v{V_T0}")
    a(f"s_lshl_b32 s{S_T0}, s{S_W}, 2")
    a(f"s_add_u32 s{S_T0}, s{S_T0}, 0x{LDS_SW:x}")
    a(f"v_mov_b32 v{V_T3}, s{S_T0}")
    a(f"v_mov_b32 v{V_X+1}, s{S_CTXW}")
    a(f"s_lshr_b32 s{S_T1}, s{S_CTXW}, 4")
    a(f"v_mov_b32 v{V_T2}, 0x{LDS_SW:x}")
    stamp(a, 2)
    a("s_waitcnt vmcnt(0)")
    stamp(a, 3)
    for e in range(4):
        a(f"v_cmp_ne_u32 s[{S_MSK+2*e}:{S_MSK+2*e+1}], v{V_ROW+e}, v{V_ROW0+e}")
    a(f"ds_write_b128 v{V_T0}, v[{V_ROW}:{V_ROW+3}]")
    a(f"s_or_b64 s[{S_MSK}:{S_MSK+1}], s[{S_MSK}:{S_MSK+1}], s[{S_MSK+2}:{S_MSK+3}]")
    a(f"s_or_b64 s[{S_MSK+4}:{S_MSK+5}], s[{S_MSK+4}:{S_MSK+5}], s[{S_MSK+6}:{S_MSK+7}]")
    a(f"s_or_b64 s[{S_MSK}:{S_MSK+1}], s[{S_MSK}:{S_MSK+1}], s[{S_MSK+4}:{S_MSK+5}]")
    a(f"s_ff1_i32_b64 s{S_T0}, s[{S_MSK}:{S_MSK+1}]")
    a(f"s_lshl_b32 s{S_T0}, s{S_T0}, 2")
    a(f"s_min_u32 s{S_T0}, s{S_T0}, s{S_T1}")
    a(f"v_mov_b32 v{V_X}, s{S_T0}")
    a(f"ds_write2_b32 v{V_T3}, v{V_X}, v{V_X+1} offset0:0 offset1:8")
    a("s_waitcnt lgkmcnt(0)")
    a("s_barrier")
    X = V_X
    a(f"ds_read_b128 v[{X}:{X+3}], v{V_T2}")
    a(f"ds_read_b128 v[{X+4}:{X+7}], v{V_T2} offset:16")
    a(f"ds_read_b32 v{X+8}, v{V_CTXA}")
    vctx, vnb, vS, vn, vnc, vcum, vf1, vf2 = X+8, X+9, X+10, X+11, X+12, X+13, X+14, X+15
    a("s_waitcnt lgkmcnt(0)")
    a(f"v_min3_u32 v{X}, v{X}, v{X+1}, v{X+2}")
    a(f"v_min3_u32 v{X+3}, v{X+3}, v{X+4}, v{X+5}")
    a(f"v_add_u32 v{vnb}, 15, v{vctx}")
    a(f"v_min3_u32 v{X}, v{X}, v{X+6}, v{X+7}")
    a(f"v_lshrrev_b32 v{vnb}, 4, v{vnb}")
    a(f"v_min_u32 v{vS}, v{X}, v{X+3}")
    a(f"v_sub_u32 v{vn}, v{vnb}, v{vS}")
    a(f"v_cndmask_b32 v{vn}, v{vn}, v{vS}, s[{S_LANE0}:{S_LANE0+1}]")
    a(f"v_add_u32 v{vnc}, 31, v{vn}")
    a(f"v_lshrrev_b32 v{vnc}, 5, v{vnc}")
    a(f"v_cndmask_b32 v{vnc}, 0, v{vnc}, s[{S_LE8}:{S_LE8+1}]")
    a(f"v_mov_b32 v{vcum}, v{vnc}")
    a(f"v_cvt_f32_u32 v{vf2}, v{vnc}")
    a(f"v_add_u32 v{X}, v{vn}, v{vnc}")
    dpp = "row_mask:0xf bank_mask:0xf bound_ctrl:0"
    a(f"v_add_u32_dpp v{vcum}, v{vcum}, v{vcum} row_shr:1 {dpp}")
    a(f"v_rcp_f32 v{vf2}, v{vf2}")
    a(f"v_add_u32 v{X}, -1, v{X}")
    a(f"v_add_u32_dpp v{vcum}, v{vcum}, v{vcum} row_shr:2 {dpp}")
    a(f"v_cvt_f32_u32 v{vf1}, v{X}")
    a(f"v_readfirstlane_b32 s{S_S}, v{vS}")
    a(f"v_add_u32_dpp v{vcum}, v{vcum}, v{vcum} row_shr:4 {dpp}")
    a(f"v_mul_f32 v{vf1}, v{vf1}, v{vf2}")
    a(f"v_add_f32 v{vf1}, 0x3c23d70a, v{vf1}")
    a(f"v_add_u32_dpp v{vcum}, v{vcum}, v{vcum} row_shr:8 {dpp}")
    a(f"v_cvt_u32_f32 v{vf1}, v{vf1}")
    a(f"v_sub_u32 v{vf2}, v{vcum}, v{vnc}")
    a(f"v_cmp_lt_u32 vcc, s{S_IT}, v{vcum}")
    a(f"s_and_b32 s{S_T0}, vcc_lo, 0x1ff")
    a(f"s_ff1_i32_b32 s{S_SIGL}, s{S_T0}")
    a(f"s_lshr_b32 s{S_T1}, s2, 3")
    a(f"s_and_b32 s{S_T1}, s{S_T1}, 7")
    a(f"s_add_u32 s{S_T1}, s{S_T1}, 1")
    a(f"v_readlane_b32 s{S_CNT}, v{vnc}, s{S_T1}")
    a(f"v_readlane_b32 s{S_NCSH}, v{vnc}, 0")
    a(f"s_cmp_eq_u32 s{S_T0}, 0")
    a("s_cbranch_scc1 A_FIN0")
    a(f"v_readlane_b32 s{S_N}, v{vn}, s{S_SIGL}")
    a(f"v_readlane_b32 s{S_PER}, v{vf1}, s{S_SIGL}")
    a(f"v_readlane_b32 s{S_EX}, v{vf2}, s{S_SIGL}")
    a(f"v_readlane_b32 s{S_CTXB}, v{vctx}, s{S_SIGL}")
    a(f"s_sub_u32 s{S_ROW}, s{S_SIGL}, 1")
    a(f"s_max_i32 s{S_ROW}, s{S_ROW}, 0")
    a(f"s_lshl_b32 s{S_T1}, s{S_ROW}, 10")
    a(f"s_add_u32 s{S_T1}, s{S_T1}, 0x{LDS_TBL:x}")
    a(f"s_sub_u32 s{S_CH}, s{S_IT}, s{S_EX}")
    a(f"s_mul_i32 s{S_LO}, s{S_CH}, s{S_PER}")
    a(f"s_add_u32 s{S_HI}, s{S_LO}, s{S_PER}")
    a(f"s_min_u32 s{S_HI}, s{S_HI}, s{S_N}")
    a(f"s_cmp_eq_u32 s{S_SIGL}, 0")
    a(f"s_cselect_b32 s{S_T0}, 0, s{S_S}")
    a(f"s_add_u32 s{S_START}, s{S_T0}, s{S_LO}")
    a(f"s_add_u32 s{S_START}, s{S_START}, s{S_W}")
    a(f"s_add_u32 s{S_HI}, s{S_HI}, s{S_T0}")
    a(f"v_lshl_add_u32 v{X}, v{V_LANE}, 3, s{S_START}")
    a(f"v_cmp_gt_u32 vcc, s{S_HI}, v{X}")
    a(f"v_min_u32 v{X}, 255, v{X}")
    a(f"v_lshl_add_u32 v{X}, v{X}, 2, s{S_T1}")
    a(f"ds_read_b32 v{X+1}, v{X}")
    a(f"v_mov_b32 v{X+2}, 0x{OOB:x}")
    a(f"v_readlane_b32 s{S_TOT}, v{vcum}, 8")
    a(f"s_mov_b32 m0, s{S_M0B}")
    a("s_waitcnt lgkmcnt(0)")
    a(f"v_lshl_add_u32 v{X+1}, v{X+1}, 15, s{S_KVH256}")
    a(f"v_cndmask_b32 v{X+1}, v{X+2}, v{X+1}, vcc")
    a.nop(1)
    for i in range(4):
        a(f"v_readlane_b32 s{S_SOFF+i}, v{X+1}, {i}")
    a.nop(3)
    stamp(a, 4)
    for i in range(4):
        if i:
            a(f"s_add_u32 m0, s{S_M0B}, {i*4096}")
            a.nop(1)
        else:
            a.nop(1)
        for j in range(4):
            a(f"buffer_load_dwordx4 v{V_KOFF+j}, s[{SRD_K}:{SRD_K+3}], s{S_SOFF+i} offen offset:{1024*j} {POL} lds")
    if PRIO:
        a("s_setprio 0")
    a(f"s_add_u32 s{S_CNT}, s{S_CNT}, s{S_NCSH}")
    a(f"s_lshl_b32 s{S_T0}, s{S_S}, 4")
    a(f"s_cmp_eq_u32 s{S_SIGL}, 0")
    a(f"s_cselect_b32 s{S_LIM}, s{S_T0}, s{S_CTXB}")
    a(f"s_cselect_b32 s{S_T0}, 0, s{S_NCSH}")
    a(f"s_add_u32 s{S_SLOT}, s{S_CH}, s{S_T0}")
    for i in range(4):
        a(f"s_add_u32 s{S_T0}, s{S_START}, {8*i}")
        a(f"s_lshl_b32 s{S_T1}, s{S_T0}, 4")
        a(f"s_sub_i32 s{S_T1}, s{S_LIM}, s{S_T1}")
        a(f"s_cmp_lt_u32 s{S_T0}, s{S_HI}")
        a(f"s_cselect_b32 s{S_REM+i}, s{S_T1}, 0")
    a(f"s_cmp_eq_u32 s{S_SIGL}, 0")
    a("s_cbranch_scc1 A_SHARED")
    body(a, 1)
    a("s_branch A_NEXT")
    a.label("A_SHARED")
    body(a, 2)
    a.label("A_NEXT")
    stamp(a, 13)
    a(f"s_add_u32 s{S_IT}, s{S_IT}, 32")
    a(f"s_cmp_ge_u32 s{S_IT}, s{S_TOT}")
    a("s_cbranch_scc1 A_FIN")
    a("s_waitcnt lgkmcnt(0)")
    a("s_barrier")
    if PRIO:
        a("s_setprio 3")
    a(f"s_mov_b32 m0, s{S_QM0}")
    a.nop(1)
    a(f"buffer_load_dwordx4 v{V_QOFF}, s[{SRD_Q}:{SRD_Q+3}], s{S_QSOFF} offen lds")
    a("s_branch A_ROUND")
    a.label("A_FIN0")
    a.nop(2)
    a(f"s_add_u32 s{S_CNT}, s{S_CNT}, s{S_NCSH}")
    a(f"global_load_dword v{V_N}, v{V_ZERO}, s[{S_DBG}:{S_DBG+1}]")
    a("s_waitcnt vmcnt(0)")
    a.label("A_FIN")
    a("s_cmp_ge_u32 s2, 64")
    a("s_cbranch_scc1 A_DONE")
    a(f"s_cmp_ge_u32 s{S_W}, 4")
    a("s_cbranch_scc1 A_DONE")
    consumer(a)
    a.label("A_DONE")
    stamp(a, 14)
    stamp_out(a)
    a.label("A_END")
    a("s_endpgm")

def get_nonce(a, tag):
    a(f"v_cmp_eq_u32 vcc, 0, v{V_N}")
    a(f"s_cbranch_vccz {tag}_NOK")
    a(f"s_mov_b32 s{S_SPIN}, 0")
    a.label(f"{tag}_NSPIN")
    a(f"global_load_dword v{V_N}, v{V_ZERO}, s[{S_DBG}:{S_DBG+1}] sc1")
    a("s_waitcnt vmcnt(0)")
    a(f"s_add_u32 s{S_SPIN}, s{S_SPIN}, 1")
    a(f"s_cmp_ge_u32 s{S_SPIN}, 0x40000")
    a(f"s_cbranch_scc1 {tag}_NOK")
    a(f"v_cmp_eq_u32 vcc, 0, v{V_N}")
    a(f"s_cbranch_vccnz {tag}_NSPIN")
    a.label(f"{tag}_NOK")

def consumer(a):
    get_nonce(a, "C")
    D = V_Q
    ML0, ML1 = V_A, V_A + 4
    E1, E2, T0, T1 = V_X, V_X + 1, V_X + 2, V_X + 3
    M0, L0, M1, L1 = V_X + 4, V_X + 5, V_X + 6, V_X + 7
    X0, X1, A0, A1 = V_X + 8, V_X + 9, V_X + 10, V_X + 11
    SB, SM, SI = S_T0, S_T1, S_T2
    a(f"s_lshr_b32 s{S_T3}, s{S_W}, 1")
    a(f"s_lshl_b32 s{SB}, s2, 1")
    a(f"s_add_u32 s{SB}, s{SB}, s{S_T3}")
    a(f"s_lshl_b32 s{SB}, s{SB}, 15")
    a(f"s_and_b32 s{SM}, s{S_W}, 1")
    a(f"s_lshl_b32 s{SM}, s{SM}, 10")
    a(f"s_add_u32 s{SB}, s{SB}, s{SM}")
    a(f"s_lshl_b32 s{SM}, s2, 2")
    a(f"s_lshl_b32 s{S_T3}, s{S_T3}, 1")
    a(f"s_add_u32 s{SM}, s{SM}, s{S_T3}")
    a(f"s_lshl_b32 s{SM}, s{SM}, 8")
    a(f"s_add_u32 s{SM}, s{SM}, 0x{WS_ML:x}")
    a(f"v_lshlrev_b32 v{V_T1}, 4, v{V_LANE}")
    a(f"v_lshlrev_b32 v{V_T2}, 4, v{V_C}")
    a(f"v_cmp_gt_u32 s[{S_MSK}:{S_MSK+1}], s{S_CNT}, v{V_C}")
    a(f"s_mov_b32 s{S_SPIN}, 0")
    a.label("C_POLL")
    a(f"buffer_load_dwordx4 v[{ML0}:{ML0+3}], v{V_T2}, s[{SRD_WS}:{SRD_WS+3}], s{SM} offen sc1")
    a(f"buffer_load_dwordx4 v[{ML1}:{ML1+3}], v{V_T2}, s[{SRD_WS}:{SRD_WS+3}], s{SM} offen offset:256 sc1")
    a(f"s_mov_b32 s{SI}, s{SB}")
    for sg in range(NSLOT):
        a(f"s_cmp_le_u32 s{S_CNT}, {sg}")
        a("s_cbranch_scc1 C_LD")
        if sg and sg % 2 == 0:
            a(f"s_add_u32 s{SI}, s{SI}, 4096")
        a(f"buffer_load_dwordx4 v[{D+4*sg}:{D+4*sg+3}], v{V_T1}, s[{SRD_WS}:{SRD_WS+3}], s{SI} offen offset:{(sg&1)*2048} sc1")
    a.label("C_LD")
    a("s_waitcnt vmcnt(0)")
    a(f"v_bitop3_b32 v{E1}, v{ML0+1}, v{ML0+3}, v{V_N} bitop3:0x7e")
    a(f"v_bitop3_b32 v{T0}, v{ML1+1}, v{ML1+3}, v{V_N} bitop3:0x7e")
    a(f"v_or_b32 v{E1}, v{E1}, v{T0}")
    a(f"v_cndmask_b32 v{E1}, 0, v{E1}, s[{S_MSK}:{S_MSK+1}]")
    a(f"v_mov_b32 v{E2}, 0")
    for sg in range(NSLOT):
        a(f"s_cmp_le_u32 s{S_CNT}, {sg}")
        a("s_cbranch_scc1 C_CK")
        d = D + 4 * sg
        a(f"v_bitop3_b32 v{T0}, v{d+1}, v{d+3}, v{V_N} bitop3:0x7e")
        a(f"v_bitop3_b32 v{T1}, v{d}, v{d+2}, v{V_N} bitop3:0x7e")
        a(f"v_or_b32 v{E1}, v{E1}, v{T0}")
        a(f"v_or_b32 v{E2}, v{E2}, v{T1}")
    a.label("C_CK")
    a(f"v_and_or_b32 v{E1}, v{E2}, s{S_FF}, v{E1}")
    a(f"v_cmp_ne_u32 vcc, 0, v{E1}")
    a("s_cbranch_vccz C_OK")
    a(f"s_add_u32 s{S_SPIN}, s{S_SPIN}, 1")
    a(f"s_cmp_ge_u32 s{S_SPIN}, 0x40000")
    a("s_cbranch_scc1 A_DONE")
    a(f"s_sleep {SLEEP}")
    a("s_branch C_POLL")
    a.label("C_OK")
    msk = f"s[{S_MSK}:{S_MSK+1}]"
    a(f"v_cndmask_b32 v{M0}, v{V_NEG}, v{ML0}, {msk}")
    a(f"v_cndmask_b32 v{M1}, v{V_NEG}, v{ML1}, {msk}")
    a(f"v_cndmask_b32 v{L0}, 0, v{ML0+2}, {msk}")
    a(f"v_cndmask_b32 v{L1}, 0, v{ML1+2}, {msk}")
    dpp = "row_mask:0xf bank_mask:0xf"
    a(f"v_mov_b32 v{X0}, v{M0}")
    a(f"v_mov_b32 v{X1}, v{M1}")
    for sh in (8, 4, 2, 1):
        a.nop(1)
        a(f"v_max_f32_dpp v{X0}, v{X0}, v{X0} row_ror:{sh} {dpp}")
        a(f"v_max_f32_dpp v{X1}, v{X1}, v{X1} row_ror:{sh} {dpp}")
    a(f"v_sub_f32 v{M0}, v{M0}, v{X0}")
    a(f"v_sub_f32 v{M1}, v{M1}, v{X1}")
    a(f"v_exp_f32 v{M0}, v{M0}")
    a(f"v_exp_f32 v{M1}, v{M1}")
    a.nop(1)
    a(f"v_mul_f32 v{X0}, v{M0}, v{L0}")
    a(f"v_mul_f32 v{X1}, v{M1}, v{L1}")
    for sh in (8, 4, 2, 1):
        a.nop(1)
        a(f"v_add_f32_dpp v{X0}, v{X0}, v{X0} row_ror:{sh} {dpp}")
        a(f"v_add_f32_dpp v{X1}, v{X1}, v{X1} row_ror:{sh} {dpp}")
    a(f"v_rcp_f32 v{X0}, v{X0}")
    a(f"v_rcp_f32 v{X1}, v{X1}")
    a(f"v_mov_b32 v{A0}, 0")
    a(f"v_mov_b32 v{A1}, 0")
    a(f"v_mul_f32 v{M0}, v{M0}, v{X0}")
    a(f"v_mul_f32 v{M1}, v{M1}, v{X1}")
    a.nop(2)
    for sg in range(NSLOT):
        a(f"s_cmp_le_u32 s{S_CNT}, {sg}")
        a("s_cbranch_scc1 C_FM")
        d = D + 4 * sg
        a(f"v_fmac_f32_dpp v{A0}, v{M0}, v{d} row_newbcast:{sg} {dpp}")
        a(f"v_fmac_f32_dpp v{A1}, v{M1}, v{d+2} row_newbcast:{sg} {dpp}")
    a.label("C_FM")
    a(f"v_cvt_pk_bf16_f32 v{A0}, v{A0}, v{A1}")
    a(f"s_lshr_b32 s{S_T3}, s{S_W}, 1")
    a(f"s_lshl_b32 s{SB}, s2, 1")
    a(f"s_add_u32 s{SB}, s{SB}, s{S_T3}")
    a(f"s_lshl_b32 s{SB}, s{SB}, 9")
    a(f"s_and_b32 s{SM}, s{S_W}, 1")
    a(f"s_lshl_b32 s{SM}, s{SM}, 7")
    a(f"s_add_u32 s{SB}, s{SB}, s{SM}")
    a(f"v_lshlrev_b32 v{V_T1}, 1, v{V_LANE}")
    a(f"s_mov_b32 s{SRD_Q}, s{S_OUT}")
    a(f"s_and_b32 s{SRD_Q+1}, s{S_OUT+1}, 0xffff")
    a(f"buffer_store_short v{A0}, v{V_T1}, s[{SRD_Q}:{SRD_Q+3}], s{SB} offen")
    a(f"buffer_store_short_d16_hi v{A0}, v{V_T1}, s[{SRD_Q}:{SRD_Q+3}], s{SB} offen offset:256")

def body(a: Asm, NG: int):
    tag = f"B{NG}"
    a.c(f"---- body NG={NG}")
    if NG == 1:
        a(f"s_lshr_b32 s{S_GRP}, s{S_ROW}, 2")
        a(f"s_lshl_b32 s{S_T0}, s{S_GRP}, 12")
        for j in range(4):
            a(f"v_add_u32 v{V_X+j}, s{S_T0}, v{V_LJ+j}")
        for j in range(4):
            a(f"ds_read_b128 v[{V_Q+4*j}:{V_Q+4*j+3}], v{V_X+j}")
    else:
        for g in range(2):
            for j in range(4):
                a(f"ds_read_b128 v[{V_Q+16*g+4*j}:{V_Q+16*g+4*j+3}], v{V_LJ+j} offset:{g*4096}")
    stamp(a, 5)
    for i in range(4):
        a(f"s_waitcnt vmcnt({12 if VLATE == 0 else 12 - 4*i})")
        if i == 0: stamp(a, 6)
        if i == 3: stamp(a, 7)
        for j in range(4):
            a(f"ds_read_b128 v[{V_KF+4*j}:{V_KF+4*j+3}], v{V_KRD+j} offset:{i*4096}")
        a("s_waitcnt lgkmcnt(0)")
        if VLATE == 0 or (VLATE == 1 and i == 3):
            for ii in ([i] if VLATE == 0 else range(4)):
                a(f"s_add_u32 m0, s{S_M0B}, {ii*4096}")
                a.nop(1)
                for j in range(4):
                    a(f"buffer_load_dwordx4 v{V_VOFF+j}, s[{SRD_V}:{SRD_V+3}], s{S_SOFF+ii} offen offset:{1024*j} {POL} lds")
        for g in range(NG):
            s = V_S + 16 * g + 4 * i
            for j in range(4):
                c = "0" if j == 0 else f"v[{s}:{s+3}]"
                a(f"v_mfma_f32_16x16x32_bf16 v[{s}:{s+3}], v[{V_KF+4*j}:{V_KF+4*j+3}], v[{V_Q+16*g+4*j}:{V_Q+16*g+4*j+3}], {c}")
    a(f"global_load_dword v{V_N}, v{V_ZERO}, s[{S_DBG}:{S_DBG+1}]")
    a.nop(7)
    for i in range(4):
        a(f"s_cmp_ge_i32 s{S_REM+i}, 16")
        a(f"s_cbranch_scc1 {tag}_NM{i}")
        for r in range(4):
            a(f"v_cmp_gt_i32 s[{S_MSK+2*r}:{S_MSK+2*r+1}], s{S_REM+i}, v{V_TOK+r}")
        a.nop(1)
        for g in range(NG):
            for r in range(4):
                s = V_S + 16 * g + 4 * i + r
                a(f"v_cndmask_b32 v{s}, v{V_NEG}, v{s}, s[{S_MSK+2*r}:{S_MSK+2*r+1}]")
        a.label(f"{tag}_NM{i}")
    for g in range(NG):
        s = V_S + 16 * g
        x = V_X + 1 + 2 * g
        a(f"v_max3_f32 v{x}, v{s}, v{s+1}, v{s+2}")
        for k in range(3, 15, 2):
            a(f"v_max3_f32 v{x}, v{x}, v{s+k}, v{s+k+1}")
        a(f"v_max_f32 v{x}, v{x}, v{s+15}")
    for swap in ("v_permlane16_swap_b32", "v_permlane32_swap_b32"):
        for g in range(NG):
            x = V_X + 1 + 2 * g
            a(f"v_mov_b32 v{x+1}, v{x}")
        a.nop(2)
        for g in range(NG):
            x = V_X + 1 + 2 * g
            a(f"{swap} v{x}, v{x+1}")
        a.nop(1)
        for g in range(NG):
            x = V_X + 1 + 2 * g
            a(f"v_max_f32 v{x}, v{x}, v{x+1}")
    a(f"s_lshl_b32 s{S_T0}, s{S_W}, 2")
    a(f"v_add_u32 v{V_T0}, s{S_T0}, v{V_MADDR}")
    for g in range(NG):
        a(f"ds_write_b32 v{V_T0}, v{V_X+1+2*g} offset:{g*512}")
    def vissue():
        for ii in range(4):
            a(f"s_add_u32 m0, s{S_M0B}, {ii*4096}")
            a.nop(1)
            for j in range(4):
                a(f"buffer_load_dwordx4 v{V_VOFF+j}, s[{SRD_V}:{SRD_V+3}], s{S_SOFF+ii} offen offset:{1024*j} {POL} lds")
    if VLATE == 2:
        a(f"s_cmp_ge_u32 s{S_W}, 4")
        a(f"s_cbranch_scc1 {tag}_V1")
        vissue()
        a.label(f"{tag}_V1")
    a("s_waitcnt lgkmcnt(0)")
    a("s_barrier")
    stamp(a, 8)
    for g in range(NG):
        k = V_KF + 8 * g
        a(f"ds_read_b128 v[{k}:{k+3}], v{V_MADDR} offset:{g*512}")
        a(f"ds_read_b128 v[{k+4}:{k+7}], v{V_MADDR} offset:{g*512+16}")
    a("s_waitcnt lgkmcnt(0)")
    for g in range(NG):
        k = V_KF + 8 * g
        a(f"v_max3_f32 v{k}, v{k}, v{k+1}, v{k+2}")
        a(f"v_max3_f32 v{k+3}, v{k+3}, v{k+4}, v{k+5}")
        a(f"v_max3_f32 v{k}, v{k}, v{k+6}, v{k+7}")
        a(f"v_max_f32 v{k}, v{k}, v{k+3}")
        a(f"v_mul_f32 v{V_MC+g}, s{S_C}, v{k}")
    for g in range(NG):
        for k in range(16):
            s = V_S + 16 * g + k
            a(f"v_fma_f32 v{s}, v{s}, s{S_C}, -v{V_MC+g}")
        for k in range(16):
            s = V_S + 16 * g + k
            a(f"v_exp_f32 v{s}, v{s}")
    a.nop(1)
    for g in range(NG):
        for i in range(4):
            s = V_S + 16 * g + 4 * i
            p = V_P + 8 * g + 2 * i
            a(f"v_cvt_pk_bf16_f32 v{p}, v{s}, v{s+1}")
            a(f"v_cvt_pk_bf16_f32 v{p+1}, v{s+2}, v{s+3}")
    def prow_off(i, g):
        if NG == 1:
            return i * 4096
        return (i % 3) * 8192 + g * 4096
    nrows0 = 4 if NG == 1 else 3
    for i in range(nrows0):
        for g in range(NG):
            p = V_P + 8 * g + 2 * i
            a(f"ds_write_b64 v{V_PWR}, v[{p}:{p+1}] offset:{prow_off(i, g)}")
    for g in range(NG):
        s = V_S + 16 * g
        x = V_X + 1 + 2 * g
        for k in range(0, 16, 2):
            a(f"v_add_f32 v{s+k}, v{s+k}, v{s+k+1}")
        for k in range(0, 16, 4):
            a(f"v_add_f32 v{s+k}, v{s+k}, v{s+k+2}")
        a(f"v_add_f32 v{s}, v{s}, v{s+4}")
        a(f"v_add_f32 v{s+8}, v{s+8}, v{s+12}")
        a(f"v_add_f32 v{x}, v{s}, v{s+8}")
    for swap in ("v_permlane16_swap_b32", "v_permlane32_swap_b32"):
        for g in range(NG):
            x = V_X + 1 + 2 * g
            a(f"v_mov_b32 v{x+1}, v{x}")
        a.nop(2)
        for g in range(NG):
            x = V_X + 1 + 2 * g
            a(f"{swap} v{x}, v{x+1}")
        a.nop(1)
        for g in range(NG):
            x = V_X + 1 + 2 * g
            a(f"v_add_f32 v{x}, v{x}, v{x+1}")
    a(f"v_add_u32 v{V_T0}, 1024, v{V_T0}")
    for g in range(NG):
        a(f"ds_write_b32 v{V_T0}, v{V_X+1+2*g} offset:{g*512}")
    if VLATE == 2:
        a(f"s_cmp_lt_u32 s{S_W}, 4")
        a(f"s_cbranch_scc1 {tag}_V2")
        vissue()
        a.label(f"{tag}_V2")
    for i in range(4):
        a(f"s_waitcnt vmcnt({12-4*i}) lgkmcnt(0)")
        a("s_barrier")
        stamp(a, 9 + i)
        def rd(u):
            buf = u & 1
            for g in range(NG):
                A = V_A + 8 * buf + 4 * g
                a(f"ds_read_b128 v[{A}:{A+3}], v{V_PRD} offset:{prow_off(i, g) + u*1024}")
            B = V_B + 4 * buf
            for h in range(2):
                wv = 2 * u + h
                base = V_VTLO if wv < 4 else V_VTHI
                off = (wv & 3) * 16384 + i * 4096
                a(f"ds_read_b64_tr_b16 v[{B+2*h}:{B+2*h+1}], v{base} offset:{off}")
        per = NG + 2
        rd(0)
        if i == 0:
            for g in range(NG):
                k = V_KF + 8 * g
                a(f"ds_read_b128 v[{k}:{k+3}], v{V_MADDR} offset:{1024+g*512}")
                a(f"ds_read_b128 v[{k+4}:{k+7}], v{V_MADDR} offset:{1024+g*512+16}")
            a("s_waitcnt lgkmcnt(0)")
            for g in range(NG):
                k = V_KF + 8 * g
                for t in range(4):
                    a(f"v_add_f32 v{k+t}, v{k+t}, v{k+t+4}")
                a(f"v_add_f32 v{k}, v{k}, v{k+1}")
                a(f"v_add_f32 v{k+2}, v{k+2}, v{k+3}")
                a(f"v_add_f32 v{V_L+g}, v{k}, v{k+2}")
        for u in range(4):
            if u < 3:
                rd(u + 1)
                a(f"s_waitcnt lgkmcnt({per})")
            else:
                a("s_waitcnt lgkmcnt(0)")
            buf = u & 1
            B = V_B + 4 * buf
            for g in range(NG):
                A = V_A + 8 * buf + 4 * g
                acc = V_ACC + 4 * g
                c = "0" if (i == 0 and u == 0) else f"v[{acc}:{acc+3}]"
                a(f"v_mfma_f32_16x16x32_bf16 v[{acc}:{acc+3}], v[{A}:{A+3}], v[{B}:{B+3}], {c}")
        if NG == 2 and i == 1:
            for g in range(NG):
                p = V_P + 8 * g + 6
                a(f"ds_write_b64 v{V_PWR}, v[{p}:{p+1}] offset:{prow_off(3, g)}")
    get_nonce(a, tag)
    if NG == 1:
        a(f"s_and_b32 s{S_T3}, s{S_ROW}, 3")
        a(f"s_and_b32 s{S_T0}, s{S_ROW}, 4")
        a(f"s_lshl_b32 s{S_T0}, s{S_T0}, 19")
    else:
        a(f"s_mov_b32 s{S_T0}, 0")
    a(f"s_lshl_b32 s{S_T1}, s{S_KVH}, 16")
    a(f"s_add_u32 s{S_T0}, s{S_T0}, s{S_T1}")
    a(f"s_lshl_b32 s{S_T1}, s{S_SLOT}, 11")
    a(f"s_add_u32 s{S_T0}, s{S_T0}, s{S_T1}")
    a(f"s_lshl_b32 s{S_T2}, s{S_W}, 8")
    a(f"s_add_u32 s{S_T0}, s{S_T0}, s{S_T2}")
    for g in range(NG):
        for rho in range(2):
            G = V_G0 + 8 * g + 4 * rho
            a(f"v_mov_b32 v{G+1}, v{V_N}")
            a(f"v_mov_b32 v{G+3}, v{V_N}")
    if NG == 1:
        a(f"s_lshl_b32 s{S_T2}, s{S_T3}, 4")
        a(f"s_mov_b64 s[{S_MSK}:{S_MSK+1}], 0xffff")
        a(f"s_lshl_b64 s[{S_MSK}:{S_MSK+1}], s[{S_MSK}:{S_MSK+1}], s{S_T2}")
    a.nop(2)
    for g in range(NG):
        for rho in range(2):
            G = V_G0 + 8 * g + 4 * rho
            a(f"v_bfi_b32 v{G}, s{S_FF}, v{V_N}, v{V_ACC+4*g+2*rho}")
            a(f"v_bfi_b32 v{G+2}, s{S_FF}, v{V_N}, v{V_ACC+4*g+2*rho+1}")
    if NG == 1:
        a(f"s_mov_b64 exec, s[{S_MSK}:{S_MSK+1}]")
    for g in range(NG):
        if g == 1:
            a(f"s_add_u32 s{S_T0}, s{S_T0}, {4*524288}")
        a(f"s_add_u32 s{S_T1}, s{S_T0}, 32768")
        for rho in range(2):
            G = V_G0 + 8 * g + 4 * rho
            a(f"buffer_store_dwordx4 v[{G}:{G+3}], v{V_OOFF}, s[{SRD_WS}:{SRD_WS+3}], s{S_T0+rho} offen sc1")
    a(f"s_cmp_lg_u32 s{S_W}, 0")
    a(f"s_cbranch_scc1 {tag}_NOML")
    a(f"s_lshl_b32 s{S_T1}, s{S_KVH}, 10")
    a(f"s_lshl_b32 s{S_T2}, s{S_SLOT}, 4")
    a(f"s_add_u32 s{S_T1}, s{S_T1}, s{S_T2}")
    a(f"s_add_u32 s{S_T1}, s{S_T1}, 0x{WS_ML:x}")
    if NG == 1:
        a(f"s_and_b32 s{S_T2}, s{S_ROW}, 4")
        a(f"s_lshl_b32 s{S_T2}, s{S_T2}, 13")
        a(f"s_add_u32 s{S_T1}, s{S_T1}, s{S_T2}")
        a(f"s_lshl_b32 s{S_T2}, s{S_T3}, 2")
        a(f"s_mov_b64 s[{S_MSK}:{S_MSK+1}], 0xf")
        a(f"s_lshl_b64 exec, s[{S_MSK}:{S_MSK+1}], s{S_T2}")
    else:
        a("s_mov_b64 exec, 0xffff")
    for g in range(NG):
        X = V_X + 4 * g
        a(f"v_mov_b32 v{X}, v{V_MC+g}")
        a(f"v_mov_b32 v{X+1}, v{V_N}")
        a(f"v_mov_b32 v{X+2}, v{V_L+g}")
        a(f"v_mov_b32 v{X+3}, v{V_N}")
        if g == 1:
            a(f"s_add_u32 s{S_T1}, s{S_T1}, 32768")
        a(f"buffer_store_dwordx4 v[{X}:{X+3}], v{V_MLOFF}, s[{SRD_WS}:{SRD_WS+3}], s{S_T1} offen sc1")
    a.label(f"{tag}_NOML")
    a("s_mov_b64 exec, -1")

HEADER = """; paged decode attention (radix shared prefix aware), single launch, in-kernel split-KV combine
; @launch grid=(256,1,1) block=(512,1,1) lds={lds}
.amdgcn_target "amdgcn-amd-amdhsa--gfx950"
.text
"""

def kd(name, vgpr, sgpr):
    acc = (vgpr + 3) // 4 * 4
    return f""".amdhsa_kernel {name}
  .amdhsa_next_free_vgpr {vgpr}
  .amdhsa_next_free_sgpr {sgpr}
  .amdhsa_accum_offset {acc}
  .amdhsa_group_segment_fixed_size 0
  .amdhsa_kernarg_size 64
  .amdhsa_user_sgpr_count 2
  .amdhsa_user_sgpr_kernarg_segment_ptr 1
  .amdhsa_system_sgpr_workgroup_id_x 1
.end_amdhsa_kernel
"""

def main(out):
    t = HEADER.format(lds=LDS_TOTAL)
    a = Asm()
    kernelA(a)
    t += f".globl {KNAME}\n.p2align 8\n.type {KNAME},@function\n" + a.text()
    t += '.section .rodata,"a"\n.p2align 6\n' + kd(KNAME, V_END, 102)
    open(out, "w").write(t)

if __name__ == "__main__":
    main(sys.argv[1] if len(sys.argv) > 1 else f"cdna_kernels/{NAME}.s")
```

```python
import struct, sys, math, os

NAME = "standalone__paged_block_table_kv_radixattention__decode"
KNAME = NAME + "_kernel"
E = os.environ.get
STAMP = int(E('STAMP', '0'))
POL = E('POL', 'nt')
PRIO = int(E('PRIO', '1'))
SLEEP = int(E('SLEEP', '2'))
NOCONS = int(E('NOCONS', '0'))
TMIN = int(E('TMIN', '20'))
NCONS = int(E('NCONS', '128'))

def f32bits(x):
    return struct.unpack("<I", struct.pack("<f", x))[0]

class Asm:
    def __init__(self):
        self.lines = []
    def __call__(self, s):
        self.lines.append("  " + s)
    def label(self, s):
        self.lines.append(s + ":")
    def nop(self, n):
        while n > 0:
            k = min(n, 16)
            self.lines.append("  s_nop %d" % (k - 1))
            n -= k
    def c(self, s):
        self.lines.append("  ; " + s)
    def text(self):
        return "\n".join(self.lines) + "\n"

KV_BYTES = 1152 * 32768
NEG = 0xF1800000
CSCALE = f32bits((128 ** -0.5) * math.log2(math.e))
LDS_P = 131072
LDS_TBL = LDS_P
LDS_SW = LDS_P + 8192
LDS_Q = LDS_P + 12288
LDS_M = LDS_P + 24576
LDS_L = LDS_M + 1024
LDS_PLAN = LDS_L + 1024
LDS_TOTAL = LDS_PLAN + 64
WS_ML = 4 << 20
WS_EPOCH = WS_ML + 65536
WS_SIZE = 8 << 20
WS_STAMP = 6 << 20
NS = 16
OOB = 0x80000000

S_W = 3
S_L0X = 4
S_LE8X = 6
S_Q, S_K, S_V, S_BT, S_CTX, S_OUT, S_DBG, S_WS = 8, 10, 12, 14, 16, 18, 20, 22
SRD_K, SRD_V, SRD_Q, SRD_WS = 24, 28, 32, 36
S_CTXW, S_S, S_IT, S_KVH, S_N, S_T, S_F0, S_HI, S_FB, S_NSH, S_PM, S_MIXED, S_GRP, S_NG2 = range(40, 54)
S_LANE = 54
S_SOFF = 60
S_REM = 64
S_T0, S_T1, S_T2, S_T3 = 68, 69, 70, 71
S_MSK = 72
S_C, S_M0B, S_KVH256, S_QM0, S_QSOFF = 80, 81, 82, 83, 84
S_CNT, S_FF, S_SPIN, S_PEND = 86, 87, 88, 89
S_OWN = 90
S_MM = 94
S_OM = 96
S_CB = 58
S_RHO = 59

V_LANE, V_T0, V_T1, V_T2, V_T3 = 1, 2, 3, 4, 5
V_G, V_C = 6, 7
V_ROW = 8
V_ROW0 = 12
V_KOFF = 16
V_VOFF = 20
V_KRD = 24
V_LJ = 28
V_VTLO, V_VTHI = 32, 33
V_PRD, V_PWR, V_MADDR, V_ROWB = 34, 35, 36, 37
V_TOK = 38
V_QOFF, V_OOFF, V_MLOFF, V_CTXA, V_NEG, V_CB = 42, 43, 44, 45, 46, 47
V_MC = 48
V_L = 50
V_X = 52
V_Q = 68
V_KF = 100
V_S = 116
V_P = 148
V_A = 164
V_B = 180
V_ACC = 188
V_STAMP = 196
V_N = 197
V_ZERO = 198
V_SIG = 199
V_G0 = 200
V_D = 216
V_END = 224

def stamp(a, idx):
    if not STAMP: return
    a("s_memrealtime s[100:101]")
    a("s_waitcnt lgkmcnt(0)")
    a(f"v_writelane_b32 v{V_STAMP}, s100, {idx}")
def stamp_out(a):
    if not STAMP: return
    a(f"v_lshlrev_b32 v{V_T0}, 2, v{V_LANE}")
    a("s_mov_b64 exec, 0xffff")
    a(f"s_lshl_b32 s{S_T0}, s2, 3")
    a(f"s_add_u32 s{S_T0}, s{S_T0}, s{S_W}")
    a(f"s_lshl_b32 s{S_T0}, s{S_T0}, 6")
    a(f"s_add_u32 s{S_T0}, s{S_T0}, 0x{WS_STAMP:x}")
    a(f"buffer_store_dword v{V_STAMP}, v{V_T0}, s[{SRD_WS}:{SRD_WS+3}], s{S_T0} offen")
    a("s_mov_b64 exec, -1")

vctx, vS, vn, vcum, vex, vj = V_D, V_D+1, V_D+2, V_D+3, V_D+4, V_D+5

def plan_extra(a, tag):
    X = V_X
    a(f"v_cvt_f32_u32 v{X}, s{S_T}")
    a(f"v_cmp_gt_u32 s[{S_MSK}:{S_MSK+1}], s{S_HI}, v{vex}")
    a(f"v_rcp_f32 v{X}, v{X}")
    a(f"v_cmp_lt_u32 s[{S_MSK+2}:{S_MSK+3}], s{S_F0}, v{vcum}")
    a(f"v_cmp_lt_u32 s[{S_MSK+4}:{S_MSK+5}], 0, v{vn}")
    a(f"v_cvt_f32_u32 v{X+1}, v{vex}")
    a(f"v_add_u32 v{X+2}, -1, v{vcum}")
    a(f"v_cvt_f32_u32 v{X+2}, v{X+2}")
    a(f"s_and_b32 s{S_T0}, s{S_MSK}, s{S_MSK+2}")
    a(f"s_and_b32 s{S_T0}, s{S_T0}, s{S_MSK+4}")
    a(f"s_and_b32 s{S_T0}, s{S_T0}, 0x1ff")
    a(f"v_mul_f32 v{X+1}, v{X+1}, v{X}")
    a(f"v_mul_f32 v{X+2}, v{X+2}, v{X}")
    a(f"v_add_f32 v{X+1}, 0x3ba3d70a, v{X+1}")
    a(f"v_add_f32 v{X+2}, 0x3ba3d70a, v{X+2}")
    a(f"v_cvt_u32_f32 v{X+1}, v{X+1}")
    a(f"v_cvt_u32_f32 v{X+2}, v{X+2}")
    a(f"s_bcnt1_i32_b32 s{S_T1}, s{S_T0}")
    a(f"s_cmp_gt_u32 s{S_T1}, 1")
    a(f"s_cselect_b32 s{S_MIXED}, 1, 0")
    a(f"s_lshr_b32 s{S_T1}, s{S_T0}, 1")
    a(f"v_readlane_b32 s{S_NSH}, v{X+2}, 0")
    a(f"s_and_b32 s{S_T2}, s{S_T1}, 0xf")
    a(f"s_cmp_eq_u32 s{S_T2}, 0")
    a(f"s_cselect_b32 s{S_GRP}, 1, 0")
    a(f"s_lshr_b32 s{S_T3}, s{S_T1}, 4")
    a(f"s_min_u32 s{S_T2}, s{S_T2}, 1")
    a(f"s_min_u32 s{S_T3}, s{S_T3}, 1")
    a(f"s_and_b32 s{S_T2}, s{S_T2}, s{S_T3}")
    a(f"s_and_b32 s{S_T3}, s{S_T0}, 1")
    a(f"s_or_b32 s{S_NG2}, s{S_T2}, s{S_T3}")
    a(f"s_cmp_lg_u32 s{S_T3}, 0")
    a(f"s_cselect_b32 s{S_PM}, 0xff, s{S_T1}")
    a(f"s_add_u32 s{S_NSH}, s{S_NSH}, 1")
    a(f"s_cmp_eq_u32 s{S_S}, 0")
    a(f"s_cselect_b32 s{S_NSH}, 0, s{S_NSH}")
    a(f"v_max_u32 v{X+1}, s{S_NSH}, v{X+1}")
    a(f"v_add_u32 v{X+2}, 1, v{X+2}")
    a(f"v_sub_u32 v{X+2}, v{X+2}, v{X+1}")
    a(f"v_max_i32 v{X+2}, 0, v{X+2}")
    a(f"v_cndmask_b32 v{X+2}, 0, v{X+2}, s[{S_MSK+4}:{S_MSK+5}]")
    a(f"v_subrev_u32 v{X+1}, s{S_NSH}, v{X+1}")
    a(f"v_add_u32 v{X+2}, s{S_NSH}, v{X+2}")
    a(f"v_lshlrev_b32 v{X+3}, 2, v{V_C}")
    a(f"v_add_u32 v{X+3}, 0x{LDS_PLAN:x}, v{X+3}")
    a(f"ds_write_b32 v{X+3}, v{X+1}")
    a(f"s_and_b32 s{S_T1}, s2, 63")
    a(f"s_lshr_b32 s{S_T1}, s{S_T1}, 3")
    a(f"s_add_u32 s{S_T1}, s{S_T1}, 1")
    a(f"v_readlane_b32 s{S_CNT}, v{X+2}, s{S_T1}")

def kernelA(a: Asm):
    a.label(KNAME)
    a("s_cmp_ge_u32 s2, 256")
    a("s_cbranch_scc1 A_END")
    if STAMP:
        a("s_memrealtime s[100:101]")
    a("s_load_dwordx16 s[8:23], s[0:1], 0")
    if PRIO:
        a("s_setprio 3")
    a(f"v_and_b32 v{V_LANE}, 63, v0")
    a(f"v_lshrrev_b32 v{V_T0}, 6, v0")
    a(f"v_lshlrev_b32 v{V_T1}, 4, v{V_LANE}")
    a(f"v_readfirstlane_b32 s{S_W}, v{V_T0}")
    a(f"v_lshlrev_b32 v{V_T2}, 4, v0")
    a(f"v_lshrrev_b32 v{V_G}, 4, v{V_LANE}")
    a(f"v_and_b32 v{V_C}, 15, v{V_LANE}")
    a(f"s_and_b32 s{S_KVH}, s2, 7")
    a(f"s_lshr_b32 s{S_IT}, s2, 3")
    a(f"s_and_b32 s{S_T0}, s{S_W}, 3")
    a(f"s_lshl_b32 s{S_T0}, s{S_T0}, 2")
    a(f"v_add_u32 v{V_T0}, s{S_T0}, v{V_G}")
    a(f"v_xor_b32 v{V_T0}, v{V_T0}, v{V_C}")
    a(f"v_lshlrev_b32 v{V_T0}, 4, v{V_T0}")
    a(f"v_lshl_add_u32 v{V_QOFF}, v{V_G}, 8, v{V_T0}")
    a(f"s_lshl_b32 s{S_KVH256}, s{S_KVH}, 8")
    a(f"s_lshl_b32 s{S_QSOFF}, s{S_W}, 13")
    a(f"s_lshl_b32 s{S_T0}, s{S_KVH}, 10")
    a(f"s_add_u32 s{S_QSOFF}, s{S_QSOFF}, s{S_T0}")
    a(f"s_lshl_b32 s{S_QM0}, s{S_W}, 10")
    a(f"s_add_u32 s{S_QM0}, s{S_QM0}, 0x{LDS_Q:x}")
    a(f"s_lshl_b32 s{S_T1}, s{S_W}, 2")
    a("s_waitcnt lgkmcnt(0)")
    if STAMP:
        a(f"v_writelane_b32 v{V_STAMP}, s100, 0")
    stamp(a, 1)
    a(f"global_load_dwordx4 v[{V_ROW}:{V_ROW+3}], v{V_T2}, s[{S_BT}:{S_BT+1}]")
    a(f"global_load_dwordx4 v[{V_ROW0}:{V_ROW0+3}], v{V_T1}, s[{S_BT}:{S_BT+1}]")
    a(f"s_load_dword s{S_CTXW}, s[{S_CTX}:{S_CTX+1}], s{S_T1}")
    def srd(srd, p, sz):
        a(f"s_mov_b32 s{srd}, s{p}")
        a(f"s_and_b32 s{srd+1}, s{p+1}, 0xffff")
        a(f"s_mov_b32 s{srd+2}, 0x{sz:x}")
        a(f"s_mov_b32 s{srd+3}, 0x20000")
    srd(SRD_Q, S_Q, 65536)
    a(f"s_mov_b32 m0, s{S_QM0}")
    srd(SRD_K, S_K, KV_BYTES)
    a(f"buffer_load_dwordx4 v{V_QOFF}, s[{SRD_Q}:{SRD_Q+3}], s{S_QSOFF} offen lds")
    srd(SRD_V, S_V, KV_BYTES)
    srd(SRD_WS, S_WS, WS_SIZE)
    a(f"s_mov_b32 s{S_C}, 0x{CSCALE:08x}")
    a(f"s_mov_b32 s{S_L0X}, 0x00010001")
    a(f"s_mov_b32 s{S_L0X+1}, 0x00010001")
    a(f"s_mov_b32 s{S_LE8X}, 0x01ff01ff")
    a(f"s_mov_b32 s{S_LE8X+1}, 0x01ff01ff")
    a(f"v_mov_b32 v{V_NEG}, 0x{NEG:08x}")
    a(f"v_mov_b32 v{V_ZERO}, 0")
    a(f"s_movk_i32 s{S_FF}, 0xff")
    a("s_cmp_lg_u32 s2, 0")
    a("s_cbranch_scc1 A_NOEP")
    a(f"s_cmp_lg_u32 s{S_W}, 7")
    a("s_cbranch_scc1 A_NOEP")
    a(f"s_mov_b32 s{S_T0}, 0x{WS_EPOCH:x}")
    a(f"buffer_load_dword v{V_N}, v{V_ZERO}, s[{SRD_WS}:{SRD_WS+3}], s{S_T0} offen sc1")
    a("s_waitcnt vmcnt(0)")
    a(f"v_add_u32 v{V_N}, 1, v{V_N}")
    a(f"v_max_u32 v{V_N}, 1, v{V_N}")
    a("s_mov_b64 exec, 1")
    a(f"buffer_store_dword v{V_N}, v{V_ZERO}, s[{SRD_WS}:{SRD_WS+3}], s{S_T0} offen sc1")
    a(f"global_store_dword v{V_ZERO}, v{V_N}, s[{S_DBG}:{S_DBG+1}] sc0 sc1")
    a("s_mov_b64 exec, -1")
    a.label("A_NOEP")
    for j in range(4):
        a(f"v_add_u32 v{V_T0}, {4*j}, v{V_G}")
        a(f"v_xor_b32 v{V_T3}, v{V_T0}, v{V_C}")
        a(f"v_lshlrev_b32 v{V_T3}, 4, v{V_T3}")
        a(f"v_lshl_add_u32 v{V_KOFF+j}, v{V_T0}, 11, v{V_T3}")
        if j:
            a(f"v_subrev_u32 v{V_KOFF+j}, {1024*j}, v{V_KOFF+j}")
        a(f"v_lshl_add_u32 v{V_LJ+j}, v{V_C}, 8, v{V_T3}")
        a(f"v_and_b32 v{V_T3}, 7, v{V_T0}")
        a(f"v_lshlrev_b32 v{V_T3}, 1, v{V_T3}")
        a(f"v_xor_b32 v{V_T3}, v{V_T3}, v{V_C}")
        a(f"v_lshlrev_b32 v{V_T3}, 4, v{V_T3}")
        a(f"v_lshl_add_u32 v{V_VOFF+j}, v{V_T0}, 11, v{V_T3}")
        if j:
            a(f"v_subrev_u32 v{V_VOFF+j}, {1024*j}, v{V_VOFF+j}")
    a(f"s_lshl_b32 s{S_M0B}, s{S_W}, 14")
    for j in range(4):
        a(f"v_add_u32 v{V_KRD+j}, s{S_M0B}, v{V_LJ+j}")
        a(f"v_add_u32 v{V_LJ+j}, 0x{LDS_Q:x}, v{V_LJ+j}")
    a(f"v_lshrrev_b32 v{V_CB}, 2, v{V_C}")
    a(f"v_lshl_add_u32 v{V_T0}, v{V_G}, 2, v{V_CB}")
    a(f"v_and_b32 v{V_T3}, 7, v{V_T0}")
    a(f"v_xor_b32 v{V_T3}, s{S_W}, v{V_T3}")
    a(f"v_lshlrev_b32 v{V_T3}, 5, v{V_T3}")
    a(f"v_lshl_add_u32 v{V_T3}, v{V_T0}, 8, v{V_T3}")
    a(f"v_and_b32 v{V_T0}, 3, v{V_C}")
    a(f"v_lshl_add_u32 v{V_VTLO}, v{V_T0}, 3, v{V_T3}")
    a(f"v_add_u32 v{V_VTHI}, 0x10000, v{V_VTLO}")
    a(f"v_add_u32 v{V_PRD}, 0x{LDS_P:x}, v{V_T1}")
    a(f"s_lshr_b32 s{S_T0}, s{S_W}, 1")
    a(f"s_lshl_b32 s{S_T0}, s{S_T0}, 10")
    a(f"s_and_b32 s{S_T1}, s{S_W}, 1")
    a(f"s_lshl_b32 s{S_T1}, s{S_T1}, 3")
    a(f"s_add_u32 s{S_T0}, s{S_T0}, s{S_T1}")
    a(f"v_add_u32 v{V_PWR}, s{S_T0}, v{V_PRD}")
    a(f"v_lshlrev_b32 v{V_MADDR}, 5, v{V_C}")
    a(f"v_add_u32 v{V_MADDR}, 0x{LDS_M:x}, v{V_MADDR}")
    for r in range(4):
        a(f"v_lshl_add_u32 v{V_TOK+r}, v{V_G}, 2, {r}")
    a(f"v_lshlrev_b32 v{V_T0}, 19, v{V_G}")
    a(f"v_lshl_add_u32 v{V_OOFF}, v{V_C}, 4, v{V_T0}")
    a(f"v_lshlrev_b32 v{V_T0}, 13, v{V_CB}")
    a(f"v_and_b32 v{V_T3}, 3, v{V_C}")
    a(f"v_lshl_add_u32 v{V_MLOFF}, v{V_T3}, 8, v{V_T0}")
    a(f"v_add_u32 v{V_T0}, -1, v{V_C}")
    a(f"v_and_b32 v{V_T3}, 7, v{V_T0}")
    a(f"v_lshlrev_b32 v{V_T3}, 2, v{V_T3}")
    a(f"v_add_u32 v{V_CTXA}, 0x{LDS_SW+32:x}, v{V_T3}")
    a(f"v_max_i32 v{V_T0}, 0, v{V_T0}")
    a(f"v_min_u32 v{V_T0}, 7, v{V_T0}")
    a(f"v_lshlrev_b32 v{V_T0}, 10, v{V_T0}")
    a(f"v_add_u32 v{V_ROWB}, 0x{LDS_TBL:x}, v{V_T0}")
    a("s_waitcnt lgkmcnt(0)")
    a(f"s_max_i32 s{S_CTXW}, s{S_CTXW}, 0")
    a(f"s_min_i32 s{S_CTXW}, s{S_CTXW}, 4096")
    a.label("A_ROUND")
    a(f"v_lshlrev_b32 v{V_T0}, 4, v0")
    a(f"v_add_u32 v{V_T0}, 0x{LDS_TBL:x}, v{V_T0}")
    a(f"s_lshl_b32 s{S_T0}, s{S_W}, 2")
    a(f"s_add_u32 s{S_T0}, s{S_T0}, 0x{LDS_SW:x}")
    a(f"v_mov_b32 v{V_T3}, s{S_T0}")
    a(f"v_mov_b32 v{V_X+1}, s{S_CTXW}")
    a(f"s_lshr_b32 s{S_T1}, s{S_CTXW}, 4")
    a(f"v_mov_b32 v{V_T2}, 0x{LDS_SW:x}")
    stamp(a, 2)
    a("s_waitcnt vmcnt(0)")
    stamp(a, 3)
    for e in range(4):
        a(f"v_cmp_ne_u32 s[{S_MSK+2*e}:{S_MSK+2*e+1}], v{V_ROW+e}, v{V_ROW0+e}")
    a(f"ds_write_b128 v{V_T0}, v[{V_ROW}:{V_ROW+3}]")
    a(f"s_or_b64 s[{S_MSK}:{S_MSK+1}], s[{S_MSK}:{S_MSK+1}], s[{S_MSK+2}:{S_MSK+3}]")
    a(f"s_or_b64 s[{S_MSK+4}:{S_MSK+5}], s[{S_MSK+4}:{S_MSK+5}], s[{S_MSK+6}:{S_MSK+7}]")
    a(f"s_or_b64 s[{S_MSK}:{S_MSK+1}], s[{S_MSK}:{S_MSK+1}], s[{S_MSK+4}:{S_MSK+5}]")
    a(f"s_ff1_i32_b64 s{S_T0}, s[{S_MSK}:{S_MSK+1}]")
    a(f"s_lshl_b32 s{S_T0}, s{S_T0}, 2")
    a(f"s_min_u32 s{S_T0}, s{S_T0}, s{S_T1}")
    a(f"v_mov_b32 v{V_X}, s{S_T0}")
    a(f"ds_write2_b32 v{V_T3}, v{V_X}, v{V_X+1} offset0:0 offset1:8")
    a("s_waitcnt lgkmcnt(0)")
    a("s_barrier")
    X = V_X
    a(f"ds_read_b128 v[{X}:{X+3}], v{V_T2}")
    a(f"ds_read_b128 v[{X+4}:{X+7}], v{V_T2} offset:16")
    a(f"ds_read_b32 v{vctx}, v{V_CTXA}")
    a("s_waitcnt lgkmcnt(0)")
    a(f"v_min3_u32 v{X}, v{X}, v{X+1}, v{X+2}")
    a(f"v_min3_u32 v{X+3}, v{X+3}, v{X+4}, v{X+5}")
    a(f"v_add_u32 v{vn}, 15, v{vctx}")
    a(f"v_min3_u32 v{X}, v{X}, v{X+6}, v{X+7}")
    a(f"v_lshrrev_b32 v{vn}, 4, v{vn}")
    a(f"v_min_u32 v{vS}, v{X}, v{X+3}")
    a(f"v_sub_u32 v{vn}, v{vn}, v{vS}")
    a(f"v_cndmask_b32 v{vn}, v{vn}, v{vS}, s[{S_L0X}:{S_L0X+1}]")
    a(f"v_cndmask_b32 v{vn}, 0, v{vn}, s[{S_LE8X}:{S_LE8X+1}]")
    a(f"v_mov_b32 v{vcum}, v{vn}")
    a(f"v_cndmask_b32 v{X+8}, v{vS}, 0, s[{S_L0X}:{S_L0X+1}]")
    a(f"v_readfirstlane_b32 s{S_S}, v{vS}")
    dpp = "row_mask:0xf bank_mask:0xf bound_ctrl:0"
    a(f"v_add_u32_dpp v{vcum}, v{vcum}, v{vcum} row_shr:1 {dpp}")
    a(f"v_lshlrev_b32 v{X+9}, 3, v{V_G}")
    a(f"v_add_u32 v{X+9}, s{S_W}, v{X+9}")
    a(f"v_add_u32_dpp v{vcum}, v{vcum}, v{vcum} row_shr:2 {dpp}")
    a.nop(2)
    a(f"v_add_u32_dpp v{vcum}, v{vcum}, v{vcum} row_shr:4 {dpp}")
    a.nop(2)
    a(f"v_add_u32_dpp v{vcum}, v{vcum}, v{vcum} row_shr:8 {dpp}")
    a.nop(1)
    a(f"v_readlane_b32 s{S_N}, v{vcum}, 8")
    a(f"v_sub_u32 v{vex}, v{vcum}, v{vn}")
    a(f"v_sub_u32 v{X+8}, v{vex}, v{X+8}")
    a(f"s_add_u32 s{S_T}, s{S_N}, 31")
    a(f"s_lshr_b32 s{S_T}, s{S_T}, 5")
    a(f"s_max_u32 s{S_T}, s{S_T}, {TMIN}")
    a(f"s_min_u32 s{S_T}, s{S_T}, 32")
    a(f"s_mul_i32 s{S_F0}, s{S_IT}, s{S_T}")
    a(f"s_add_u32 s{S_HI}, s{S_F0}, s{S_T}")
    a(f"s_min_u32 s{S_HI}, s{S_HI}, s{S_N}")
    a(f"s_cmp_ge_u32 s{S_F0}, s{S_N}")
    a("s_cbranch_scc1 A_FIN0")
    a(f"v_add_u32 v{X+9}, s{S_F0}, v{X+9}")
    a(f"v_min_u32 v{X+10}, s{S_HI}, v{vcum}")
    a(f"v_cmp_gt_u32 vcc, v{X+10}, v{X+9}")
    a(f"v_cmp_le_u32 s[{S_MM}:{S_MM+1}], v{vex}, v{X+9}")
    a(f"v_sub_u32 v{vj}, v{X+9}, v{X+8}")
    a(f"v_min_u32 v{vj}, 255, v{vj}")
    a(f"v_lshl_add_u32 v{X+10}, v{vj}, 2, v{V_ROWB}")
    a(f"ds_read_b32 v{X+11}, v{X+10}")
    a(f"s_and_b64 s[{S_MM}:{S_MM+1}], s[{S_MM}:{S_MM+1}], vcc")
    a(f"v_mov_b32 v{X+12}, 0x{OOB:x}")
    for i in range(4):
        src = S_MM + (i >> 1)
        if i & 1:
            a(f"s_lshr_b32 s{S_LANE+i}, s{src}, 16")
        else:
            a(f"s_and_b32 s{S_LANE+i}, s{src}, 0xffff")
        a(f"s_or_b32 s{S_LANE+i}, s{S_LANE+i}, 0x8000")
        a(f"s_ff1_i32_b32 s{S_LANE+i}, s{S_LANE+i}")
        if i:
            a(f"s_add_u32 s{S_LANE+i}, s{S_LANE+i}, {16*i}")
    a(f"s_mov_b32 m0, s{S_M0B}")
    a("s_waitcnt lgkmcnt(0)")
    a(f"v_lshl_add_u32 v{X+11}, v{X+11}, 15, s{S_KVH256}")
    a(f"v_cndmask_b32 v{X+11}, v{X+12}, v{X+11}, s[{S_MM}:{S_MM+1}]")
    a.nop(1)
    for i in range(4):
        a(f"v_readlane_b32 s{S_SOFF+i}, v{X+11}, s{S_LANE+i}")
    a.nop(3)
    stamp(a, 4)
    for i in range(4):
        if i:
            a(f"s_add_u32 m0, s{S_M0B}, {i*4096}")
        a.nop(1)
        for j in range(4):
            a(f"buffer_load_dwordx4 v{V_KOFF+j}, s[{SRD_K}:{SRD_K+3}], s{S_SOFF+i} offen offset:{1024*j} {POL} lds")
    if PRIO:
        a("s_setprio 0")
    a(f"v_lshlrev_b32 v{X}, 4, v{vj}")
    a(f"v_sub_u32 v{X}, v{vctx}, v{X}")
    a(f"v_mov_b32 v{X+1}, 16")
    a(f"v_cndmask_b32 v{X}, v{X}, v{X+1}, s[{S_L0X}:{S_L0X+1}]")
    a(f"v_cndmask_b32 v{X}, 0, v{X}, s[{S_MM}:{S_MM+1}]")
    for i in range(4):
        a(f"s_and_b32 s{S_OWN+i}, s{S_LANE+i}, 15")
        a(f"s_sub_u32 s{S_OWN+i}, s{S_OWN+i}, 1")
    for i in range(4):
        a(f"v_readlane_b32 s{S_REM+i}, v{X}, s{S_LANE+i}")
    plan_extra(a, "P1")
    a(f"s_cmp_lg_u32 s{S_NG2}, 0")
    a("s_cbranch_scc1 A_SHARED")
    body(a, 1)
    a("s_branch A_NEXT")
    a.label("A_SHARED")
    body(a, 2)
    a.label("A_NEXT")
    stamp(a, 13)
    a(f"s_add_u32 s{S_IT}, s{S_IT}, 32")
    a(f"s_mul_i32 s{S_T0}, s{S_IT}, s{S_T}")
    a(f"s_cmp_ge_u32 s{S_T0}, s{S_N}")
    a("s_cbranch_scc1 A_FIN")
    a("s_waitcnt lgkmcnt(0)")
    a("s_barrier")
    if PRIO:
        a("s_setprio 3")
    a(f"s_mov_b32 m0, s{S_QM0}")
    a.nop(1)
    a(f"buffer_load_dwordx4 v{V_QOFF}, s[{SRD_Q}:{SRD_Q+3}], s{S_QSOFF} offen lds")
    a("s_branch A_ROUND")
    a.label("A_FIN0")
    plan_extra(a, "P2")
    a(f"global_load_dword v{V_N}, v{V_ZERO}, s[{S_DBG}:{S_DBG+1}]")
    a("s_waitcnt vmcnt(0) lgkmcnt(0)")
    a.label("A_FIN")
    if NOCONS:
        a("s_branch A_DONE")
    a(f"s_cmp_ge_u32 s2, {NCONS}")
    a("s_cbranch_scc1 A_DONE")
    a(f"s_cmp_ge_u32 s{S_W}, {256 // NCONS}")
    a("s_cbranch_scc1 A_DONE")
    consumer(a)
    a.label("A_DONE")
    stamp(a, 14)
    stamp_out(a)
    a.label("A_END")
    a("s_endpgm")

def get_nonce(a, tag):
    a(f"v_cmp_eq_u32 vcc, 0, v{V_N}")
    a(f"s_cbranch_vccz {tag}_NOK")
    a(f"s_mov_b32 s{S_SPIN}, 0")
    a.label(f"{tag}_NSPIN")
    a(f"global_load_dword v{V_N}, v{V_ZERO}, s[{S_DBG}:{S_DBG+1}] sc1")
    a("s_waitcnt vmcnt(0)")
    a(f"s_add_u32 s{S_SPIN}, s{S_SPIN}, 1")
    a(f"s_cmp_ge_u32 s{S_SPIN}, 0x40000")
    a(f"s_cbranch_scc1 {tag}_NOK")
    a(f"v_cmp_eq_u32 vcc, 0, v{V_N}")
    a(f"s_cbranch_vccnz {tag}_NSPIN")
    a.label(f"{tag}_NOK")

def consumer(a):
    get_nonce(a, "C")
    D = V_Q
    ML0, ML1 = V_A, V_A + 4
    T0, T1 = V_X + 2, V_X + 3
    M0, L0, M1, L1 = V_X + 4, V_X + 5, V_X + 6, V_X + 7
    X0, X1, A0, A1 = V_X + 8, V_X + 9, V_X + 10, V_X + 11
    SB, SM, SI, ST = S_T0, S_T1, S_T2, S_T3
    SH = S_GRP
    a(f"s_and_b32 s{S_CB}, s2, 63")
    if NCONS == 128:
        a(f"s_lshr_b32 s{S_RHO}, s2, 6")
        a(f"s_mov_b32 s{SH}, s{S_W}")
    else:
        a(f"s_lshr_b32 s{S_RHO}, s{S_W}, 1")
        a(f"s_and_b32 s{SH}, s{S_W}, 1")
    a(f"s_lshl_b32 s{SB}, s{S_CB}, 1")
    a(f"s_add_u32 s{SB}, s{SB}, s{S_RHO}")
    a(f"s_lshl_b32 s{SB}, s{SB}, 15")
    a(f"s_lshl_b32 s{SM}, s{SH}, 10")
    a(f"s_add_u32 s{SB}, s{SB}, s{SM}")
    a(f"s_lshl_b32 s{SM}, s{S_CB}, 2")
    a(f"s_lshl_b32 s{ST}, s{S_RHO}, 1")
    a(f"s_add_u32 s{SM}, s{SM}, s{ST}")
    a(f"s_lshl_b32 s{SM}, s{SM}, 8")
    a(f"s_add_u32 s{SM}, s{SM}, 0x{WS_ML:x}")
    a(f"v_lshlrev_b32 v{V_T1}, 4, v{V_LANE}")
    a(f"v_lshlrev_b32 v{V_T2}, 4, v{V_C}")
    a(f"v_cmp_gt_u32 s[{S_MSK}:{S_MSK+1}], s{S_CNT}, v{V_C}")
    a(f"s_bfm_b32 s{S_PEND}, s{S_CNT}, 0")
    a(f"s_mov_b32 s{S_SPIN}, 0")
    srd = f"s[{SRD_WS}:{SRD_WS+3}]"
    a(f"buffer_load_dwordx4 v[{ML0}:{ML0+3}], v{V_T2}, {srd}, s{SM} offen sc1")
    a(f"buffer_load_dwordx4 v[{ML1}:{ML1+3}], v{V_T2}, {srd}, s{SM} offen offset:256 sc1")
    for sg in range(NS):
        if sg % 2 == 0:
            if sg:
                a(f"s_add_u32 s{SB}, s{SB}, 4096")
            a(f"s_cmp_gt_u32 s{S_CNT}, {sg}")
            a(f"s_cselect_b32 s{SI}, s{SB}, 0x{OOB:x}")
            a(f"buffer_load_dwordx4 v[{D+4*sg}:{D+4*sg+3}], v{V_T1}, {srd}, s{SI} offen sc1")
        else:
            a(f"s_cmp_gt_u32 s{S_CNT}, {sg}")
            a(f"s_cselect_b32 s{SI}, s{SB}, 0x{OOB:x}")
            a(f"buffer_load_dwordx4 v[{D+4*sg}:{D+4*sg+3}], v{V_T1}, {srd}, s{SI} offen offset:2048 sc1")
    a(f"s_sub_u32 s{SB}, s{SB}, {4096*7}")
    a(f"s_waitcnt vmcnt({NS})")
    a.label("C_MLCHK")
    a(f"v_bitop3_b32 v{T0}, v{ML0+1}, v{ML0+3}, v{V_N} bitop3:0x7e")
    a(f"v_bitop3_b32 v{T1}, v{ML1+1}, v{ML1+3}, v{V_N} bitop3:0x7e")
    a(f"v_or_b32 v{T0}, v{T0}, v{T1}")
    a(f"v_cndmask_b32 v{T0}, 0, v{T0}, s[{S_MSK}:{S_MSK+1}]")
    a(f"v_cmp_ne_u32 vcc, 0, v{T0}")
    a("s_cbranch_vccz C_MLOK")
    a(f"s_add_u32 s{S_SPIN}, s{S_SPIN}, 1")
    a(f"s_cmp_ge_u32 s{S_SPIN}, 0x40000")
    a("s_cbranch_scc1 A_DONE")
    a(f"s_sleep {SLEEP}")
    a(f"buffer_load_dwordx4 v[{ML0}:{ML0+3}], v{V_T2}, {srd}, s{SM} offen sc1")
    a(f"buffer_load_dwordx4 v[{ML1}:{ML1+3}], v{V_T2}, {srd}, s{SM} offen offset:256 sc1")
    a("s_waitcnt vmcnt(0)")
    a("s_branch C_MLCHK")
    a.label("C_MLOK")
    msk = f"s[{S_MSK}:{S_MSK+1}]"
    a(f"v_cndmask_b32 v{M0}, v{V_NEG}, v{ML0}, {msk}")
    a(f"v_cndmask_b32 v{M1}, v{V_NEG}, v{ML1}, {msk}")
    a(f"v_cndmask_b32 v{L0}, 0, v{ML0+2}, {msk}")
    a(f"v_cndmask_b32 v{L1}, 0, v{ML1+2}, {msk}")
    dpp = "row_mask:0xf bank_mask:0xf"
    a(f"v_mov_b32 v{X0}, v{M0}")
    a(f"v_mov_b32 v{X1}, v{M1}")
    for sh in (8, 4, 2, 1):
        a.nop(1)
        a(f"v_max_f32_dpp v{X0}, v{X0}, v{X0} row_ror:{sh} {dpp}")
        a(f"v_max_f32_dpp v{X1}, v{X1}, v{X1} row_ror:{sh} {dpp}")
    a(f"v_sub_f32 v{M0}, v{M0}, v{X0}")
    a(f"v_sub_f32 v{M1}, v{M1}, v{X1}")
    a(f"v_exp_f32 v{M0}, v{M0}")
    a(f"v_exp_f32 v{M1}, v{M1}")
    a.nop(1)
    a(f"v_mul_f32 v{X0}, v{M0}, v{L0}")
    a(f"v_mul_f32 v{X1}, v{M1}, v{L1}")
    for sh in (8, 4, 2, 1):
        a.nop(1)
        a(f"v_add_f32_dpp v{X0}, v{X0}, v{X0} row_ror:{sh} {dpp}")
        a(f"v_add_f32_dpp v{X1}, v{X1}, v{X1} row_ror:{sh} {dpp}")
    a(f"v_rcp_f32 v{X0}, v{X0}")
    a(f"v_rcp_f32 v{X1}, v{X1}")
    a(f"v_mov_b32 v{A0}, 0")
    a(f"v_mov_b32 v{A1}, 0")
    a(f"v_mul_f32 v{M0}, v{M0}, v{X0}")
    a(f"v_mul_f32 v{M1}, v{M1}, v{X1}")
    a("s_waitcnt vmcnt(0)")
    for sg in range(NS):
        a(f"s_cmp_le_u32 s{S_CNT}, {sg}")
        a("s_cbranch_scc1 C_SDONE")
        d = D + 4 * sg
        a(f"v_bitop3_b32 v{T0}, v{d+1}, v{d+3}, v{V_N} bitop3:0x7e")
        a(f"v_bitop3_b32 v{T1}, v{d}, v{d+2}, v{V_N} bitop3:0x7e")
        a(f"v_and_or_b32 v{T0}, v{T1}, s{S_FF}, v{T0}")
        a(f"v_cmp_ne_u32 vcc, 0, v{T0}")
        a(f"s_cbranch_vccnz C_S{sg}")
        a(f"v_fmac_f32_dpp v{A0}, v{M0}, v{d} row_newbcast:{sg} {dpp}")
        a(f"v_fmac_f32_dpp v{A1}, v{M1}, v{d+2} row_newbcast:{sg} {dpp}")
        a(f"s_bitset0_b32 s{S_PEND}, {sg}")
        a.label(f"C_S{sg}")
    a.label("C_SDONE")
    a(f"s_cmp_eq_u32 s{S_PEND}, 0")
    a("s_cbranch_scc1 C_FIN")
    a.label("C_ROUND")
    a(f"s_add_u32 s{S_SPIN}, s{S_SPIN}, 1")
    a(f"s_cmp_ge_u32 s{S_SPIN}, 0x40000")
    a("s_cbranch_scc1 A_DONE")
    a(f"s_sleep {SLEEP}")
    SG = S_SOFF
    TM = S_REM
    a(f"s_mov_b32 s{TM}, s{S_PEND}")
    NP = 4
    for p in range(NP):
        a(f"s_ff1_i32_b32 s{SG+p}, s{TM}")
        a(f"s_bitset0_b32 s{TM}, s{SG+p}")
        a(f"s_lshl_b32 s{SI}, s{SG+p}, 11")
        a(f"s_add_u32 s{SI}, s{SI}, s{SB}")
        a(f"s_cmp_lt_i32 s{SG+p}, 0")
        a(f"s_cselect_b32 s{SI}, 0x{OOB:x}, s{SI}")
        a(f"buffer_load_dwordx4 v[{D+4*p}:{D+4*p+3}], v{V_T1}, {srd}, s{SI} offen sc1")
    a("s_waitcnt vmcnt(0)")
    for p in range(NP):
        d = D + 4 * p
        a(f"s_cmp_lt_i32 s{SG+p}, 0")
        a("s_cbranch_scc1 C_RDONE")
        a(f"v_bitop3_b32 v{T0}, v{d+1}, v{d+3}, v{V_N} bitop3:0x7e")
        a(f"v_bitop3_b32 v{T1}, v{d}, v{d+2}, v{V_N} bitop3:0x7e")
        a(f"v_and_or_b32 v{T0}, v{T1}, s{S_FF}, v{T0}")
        a(f"v_cmp_ne_u32 vcc, 0, v{T0}")
        a(f"s_cbranch_vccnz C_R{p}")
        a(f"v_readlane_b32 s{S_OWN}, v{M0}, s{SG+p}")
        a(f"v_readlane_b32 s{S_OWN+1}, v{M1}, s{SG+p}")
        a(f"s_bitset0_b32 s{S_PEND}, s{SG+p}")
        a.nop(1)
        a(f"v_fmac_f32 v{A0}, s{S_OWN}, v{d}")
        a(f"v_fmac_f32 v{A1}, s{S_OWN+1}, v{d+2}")
        a.label(f"C_R{p}")
    a.label("C_RDONE")
    a(f"s_cmp_lg_u32 s{S_PEND}, 0")
    a("s_cbranch_scc1 C_ROUND")
    a.label("C_FIN")
    if STAMP:
        a(f"v_writelane_b32 v{V_STAMP}, s{S_SPIN}, 15")
        stamp(a, 12)
    a(f"v_cvt_pk_bf16_f32 v{A0}, v{A0}, v{A1}")
    a(f"s_lshl_b32 s{SB}, s{S_CB}, 1")
    a(f"s_add_u32 s{SB}, s{SB}, s{S_RHO}")
    a(f"s_lshl_b32 s{SB}, s{SB}, 9")
    a(f"s_lshl_b32 s{SM}, s{SH}, 7")
    a(f"s_add_u32 s{SB}, s{SB}, s{SM}")
    a(f"v_lshlrev_b32 v{V_T1}, 1, v{V_LANE}")
    a(f"s_mov_b32 s{SRD_Q}, s{S_OUT}")
    a(f"s_and_b32 s{SRD_Q+1}, s{S_OUT+1}, 0xffff")
    a(f"buffer_store_short v{A0}, v{V_T1}, s[{SRD_Q}:{SRD_Q+3}], s{SB} offen")
    a(f"buffer_store_short_d16_hi v{A0}, v{V_T1}, s[{SRD_Q}:{SRD_Q+3}], s{SB} offen offset:256")

def body(a: Asm, NG: int):
    tag = f"B{NG}"
    a.c(f"---- body NG={NG}")
    if NG == 1:
        a(f"s_lshl_b32 s{S_T0}, s{S_GRP}, 12")
        for j in range(4):
            a(f"v_add_u32 v{V_X+j}, s{S_T0}, v{V_LJ+j}")
        for j in range(4):
            a(f"ds_read_b128 v[{V_Q+4*j}:{V_Q+4*j+3}], v{V_X+j}")
    else:
        for g in range(2):
            for j in range(4):
                a(f"ds_read_b128 v[{V_Q+16*g+4*j}:{V_Q+16*g+4*j+3}], v{V_LJ+j} offset:{g*4096}")
    stamp(a, 5)
    for i in range(4):
        a(f"s_waitcnt vmcnt({12 - 4*i})")
        if i == 0: stamp(a, 6)
        if i == 3: stamp(a, 7)
        for j in range(4):
            a(f"ds_read_b128 v[{V_KF+4*j}:{V_KF+4*j+3}], v{V_KRD+j} offset:{i*4096}")
        a("s_waitcnt lgkmcnt(0)")
        for g in range(NG):
            s = V_S + 16 * g + 4 * i
            for j in range(4):
                c = "0" if j == 0 else f"v[{s}:{s+3}]"
                a(f"v_mfma_f32_16x16x32_bf16 v[{s}:{s+3}], v[{V_KF+4*j}:{V_KF+4*j+3}], v[{V_Q+16*g+4*j}:{V_Q+16*g+4*j+3}], {c}")
    a(f"global_load_dword v{V_N}, v{V_ZERO}, s[{S_DBG}:{S_DBG+1}]")
    a.nop(7)
    for i in range(4):
        a(f"s_cmp_lt_i32 s{S_REM+i}, 16")
        a(f"s_cbranch_scc1 {tag}_DM{i}")
        a(f"s_cmp_eq_u32 s{S_MIXED}, 0")
        a(f"s_cbranch_scc1 {tag}_NM{i}")
        a(f"s_cmp_eq_u32 s{S_OWN+i}, -1")
        a(f"s_cbranch_scc1 {tag}_NM{i}")
        a.label(f"{tag}_DM{i}")
        for r in range(4):
            a(f"v_cmp_gt_i32 s[{S_MSK+2*r}:{S_MSK+2*r+1}], s{S_REM+i}, v{V_TOK+r}")
        for g in range(NG):
            if NG == 1:
                a(f"s_lshl_b32 s{S_T0}, s{S_GRP}, 2")
                a(f"s_sub_u32 s{S_T0}, s{S_OWN+i}, s{S_T0}")
            else:
                a(f"s_sub_u32 s{S_T0}, s{S_OWN+i}, {4*g}")
            a(f"v_cmp_eq_u32 s[{S_OM+2*g}:{S_OM+2*g+1}], s{S_T0}, v{V_CB}")
            a(f"s_cmp_eq_u32 s{S_OWN+i}, -1")
            a(f"s_cselect_b64 s[{S_OM+2*g}:{S_OM+2*g+1}], -1, s[{S_OM+2*g}:{S_OM+2*g+1}]")
        for g in range(NG):
            for r in range(4):
                s = V_S + 16 * g + 4 * i + r
                a(f"s_and_b64 vcc, s[{S_MSK+2*r}:{S_MSK+2*r+1}], s[{S_OM+2*g}:{S_OM+2*g+1}]")
                a(f"v_cndmask_b32 v{s}, v{V_NEG}, v{s}, vcc")
        a.label(f"{tag}_NM{i}")
    for g in range(NG):
        s = V_S + 16 * g
        x = V_X + 1 + 2 * g
        a(f"v_max3_f32 v{x}, v{s}, v{s+1}, v{s+2}")
        for k in range(3, 15, 2):
            a(f"v_max3_f32 v{x}, v{x}, v{s+k}, v{s+k+1}")
        a(f"v_max_f32 v{x}, v{x}, v{s+15}")
    for swap in ("v_permlane16_swap_b32", "v_permlane32_swap_b32"):
        for g in range(NG):
            x = V_X + 1 + 2 * g
            a(f"v_mov_b32 v{x+1}, v{x}")
        a.nop(2)
        for g in range(NG):
            x = V_X + 1 + 2 * g
            a(f"{swap} v{x}, v{x+1}")
        a.nop(1)
        for g in range(NG):
            x = V_X + 1 + 2 * g
            a(f"v_max_f32 v{x}, v{x}, v{x+1}")
    a(f"s_lshl_b32 s{S_T0}, s{S_W}, 2")
    a(f"v_add_u32 v{V_T0}, s{S_T0}, v{V_MADDR}")
    for g in range(NG):
        a(f"ds_write_b32 v{V_T0}, v{V_X+1+2*g} offset:{g*512}")
    def vissue():
        for ii in range(4):
            a(f"s_add_u32 m0, s{S_M0B}, {ii*4096}")
            a.nop(1)
            for j in range(4):
                a(f"buffer_load_dwordx4 v{V_VOFF+j}, s[{SRD_V}:{SRD_V+3}], s{S_SOFF+ii} offen offset:{1024*j} {POL} lds")
    a(f"s_cmp_ge_u32 s{S_W}, 4")
    a(f"s_cbranch_scc1 {tag}_V1")
    vissue()
    a.label(f"{tag}_V1")
    a("s_waitcnt lgkmcnt(0)")
    a("s_barrier")
    stamp(a, 8)
    for g in range(NG):
        k = V_KF + 8 * g
        a(f"ds_read_b128 v[{k}:{k+3}], v{V_MADDR} offset:{g*512}")
        a(f"ds_read_b128 v[{k+4}:{k+7}], v{V_MADDR} offset:{g*512+16}")
    a("s_waitcnt lgkmcnt(0)")
    for g in range(NG):
        k = V_KF + 8 * g
        a(f"v_max3_f32 v{k}, v{k}, v{k+1}, v{k+2}")
        a(f"v_max3_f32 v{k+3}, v{k+3}, v{k+4}, v{k+5}")
        a(f"v_max3_f32 v{k}, v{k}, v{k+6}, v{k+7}")
        a(f"v_max_f32 v{k}, v{k}, v{k+3}")
        a(f"v_mul_f32 v{V_MC+g}, s{S_C}, v{k}")
    for g in range(NG):
        for k in range(16):
            s = V_S + 16 * g + k
            a(f"v_fma_f32 v{s}, v{s}, s{S_C}, -v{V_MC+g}")
        for k in range(16):
            s = V_S + 16 * g + k
            a(f"v_exp_f32 v{s}, v{s}")
    a.nop(1)
    for g in range(NG):
        for i in range(4):
            s = V_S + 16 * g + 4 * i
            p = V_P + 8 * g + 2 * i
            a(f"v_cvt_pk_bf16_f32 v{p}, v{s}, v{s+1}")
            a(f"v_cvt_pk_bf16_f32 v{p+1}, v{s+2}, v{s+3}")
    def prow_off(i, g):
        if NG == 1:
            return i * 4096
        return (i % 3) * 8192 + g * 4096
    nrows0 = 4 if NG == 1 else 3
    for i in range(nrows0):
        for g in range(NG):
            p = V_P + 8 * g + 2 * i
            a(f"ds_write_b64 v{V_PWR}, v[{p}:{p+1}] offset:{prow_off(i, g)}")
    for g in range(NG):
        s = V_S + 16 * g
        x = V_X + 1 + 2 * g
        for k in range(0, 16, 2):
            a(f"v_add_f32 v{s+k}, v{s+k}, v{s+k+1}")
        for k in range(0, 16, 4):
            a(f"v_add_f32 v{s+k}, v{s+k}, v{s+k+2}")
        a(f"v_add_f32 v{s}, v{s}, v{s+4}")
        a(f"v_add_f32 v{s+8}, v{s+8}, v{s+12}")
        a(f"v_add_f32 v{x}, v{s}, v{s+8}")
    for swap in ("v_permlane16_swap_b32", "v_permlane32_swap_b32"):
        for g in range(NG):
            x = V_X + 1 + 2 * g
            a(f"v_mov_b32 v{x+1}, v{x}")
        a.nop(2)
        for g in range(NG):
            x = V_X + 1 + 2 * g
            a(f"{swap} v{x}, v{x+1}")
        a.nop(1)
        for g in range(NG):
            x = V_X + 1 + 2 * g
            a(f"v_add_f32 v{x}, v{x}, v{x+1}")
    a(f"v_add_u32 v{V_T0}, 1024, v{V_T0}")
    for g in range(NG):
        a(f"ds_write_b32 v{V_T0}, v{V_X+1+2*g} offset:{g*512}")
    a(f"s_cmp_lt_u32 s{S_W}, 4")
    a(f"s_cbranch_scc1 {tag}_V2")
    vissue()
    a.label(f"{tag}_V2")
    VS = [V_X + 8, V_X + 9]
    VM = [V_X + 10, V_X + 11]
    EX = [S_OM, S_OM + 2]
    EM = [S_MSK, S_MSK + 2]
    for i in range(4):
        a(f"s_waitcnt vmcnt({12-4*i}) lgkmcnt(0)")
        a("s_barrier")
        stamp(a, 9 + i)
        def rd(u):
            buf = u & 1
            for g in range(NG):
                A = V_A + 8 * buf + 4 * g
                a(f"ds_read_b128 v[{A}:{A+3}], v{V_PRD} offset:{prow_off(i, g) + u*1024}")
            B = V_B + 4 * buf
            for h in range(2):
                wv = 2 * u + h
                base = V_VTLO if wv < 4 else V_VTHI
                off = (wv & 3) * 16384 + i * 4096
                a(f"ds_read_b64_tr_b16 v[{B+2*h}:{B+2*h+1}], v{base} offset:{off}")
        per = NG + 2
        rd(0)
        if i == 0:
            for g in range(NG):
                k = V_KF + 8 * g
                a(f"ds_read_b128 v[{k}:{k+3}], v{V_MADDR} offset:{1024+g*512}")
                a(f"ds_read_b128 v[{k+4}:{k+7}], v{V_MADDR} offset:{1024+g*512+16}")
            for g in range(NG):
                if NG == 1:
                    a(f"s_lshl_b32 s{S_T0}, s{S_GRP}, 4")
                    a(f"s_add_u32 s{S_T0}, s{S_T0}, 0x{LDS_PLAN+4:x}")
                else:
                    a(f"s_mov_b32 s{S_T0}, 0x{LDS_PLAN+4+16*g:x}")
                a(f"v_lshl_add_u32 v{VS[g]}, v{V_G}, 2, s{S_T0}")
                a(f"v_lshl_add_u32 v{VM[g]}, v{V_CB}, 2, s{S_T0}")
                a(f"ds_read_b32 v{VS[g]}, v{VS[g]}")
                a(f"ds_read_b32 v{VM[g]}, v{VM[g]}")
            a("s_waitcnt lgkmcnt(0)")
            for g in range(NG):
                k = V_KF + 8 * g
                for t in range(4):
                    a(f"v_add_f32 v{k+t}, v{k+t}, v{k+t+4}")
                a(f"v_add_f32 v{k}, v{k}, v{k+1}")
                a(f"v_add_f32 v{k+2}, v{k+2}, v{k+3}")
                a(f"v_add_f32 v{V_L+g}, v{k}, v{k+2}")
            a(f"s_cmp_lt_u32 s{S_IT}, s{S_NSH}")
            a(f"s_cselect_b32 s{S_T1}, 0, -1")
            for g in range(NG):
                for V in (VS[g], VM[g]):
                    a(f"v_and_b32 v{V}, s{S_T1}, v{V}")
                    a(f"v_sub_u32 v{V}, s{S_IT}, v{V}")
                a(f"v_lshl_add_u32 v{VS[g]}, v{VS[g]}, 11, v{V_OOFF}")
                a(f"v_lshl_add_u32 v{VM[g]}, v{VM[g]}, 4, v{V_MLOFF}")
                if NG == 1:
                    a(f"s_lshl_b32 s{S_T0}, s{S_GRP}, 2")
                    a(f"s_lshr_b32 s{S_T0}, s{S_PM}, s{S_T0}")
                else:
                    a(f"s_lshr_b32 s{S_T0}, s{S_PM}, {4*g}")
                a(f"v_lshrrev_b32 v{V_T3}, v{V_G}, s{S_T0}")
                a(f"v_and_b32 v{V_T3}, 1, v{V_T3}")
                a(f"v_cmp_ne_u32 s[{EX[g]}:{EX[g]+1}], 0, v{V_T3}")
                a(f"v_lshrrev_b32 v{V_T3}, v{V_CB}, s{S_T0}")
                a(f"v_and_b32 v{V_T3}, 1, v{V_T3}")
                a(f"v_cmp_ne_u32 s[{EM[g]}:{EM[g]+1}], 0, v{V_T3}")
                a(f"s_and_b32 s{EM[g]}, s{EM[g]}, 0xffff")
                a(f"s_mov_b32 s{EM[g]+1}, 0")
        for u in range(4):
            if u < 3:
                rd(u + 1)
                a(f"s_waitcnt lgkmcnt({per})")
            else:
                a("s_waitcnt lgkmcnt(0)")
            buf = u & 1
            B = V_B + 4 * buf
            for g in range(NG):
                A = V_A + 8 * buf + 4 * g
                acc = V_ACC + 4 * g
                c = "0" if (i == 0 and u == 0) else f"v[{acc}:{acc+3}]"
                a(f"v_mfma_f32_16x16x32_bf16 v[{acc}:{acc+3}], v[{A}:{A+3}], v[{B}:{B+3}], {c}")
        if i == 0:
            get_nonce(a, tag)
            for g in range(NG):
                for rho in range(2):
                    G = V_G0 + 8 * g + 4 * rho
                    a(f"v_mov_b32 v{G+1}, v{V_N}")
                    a(f"v_mov_b32 v{G+3}, v{V_N}")
            a(f"s_cmp_lg_u32 s{S_W}, 0")
            a(f"s_cbranch_scc1 {tag}_NOML")
            a(f"s_lshl_b32 s{S_T1}, s{S_KVH}, 10")
            a(f"s_add_u32 s{S_T1}, s{S_T1}, 0x{WS_ML:x}")
            if NG == 1:
                a(f"s_lshl_b32 s{S_T2}, s{S_GRP}, 15")
                a(f"s_add_u32 s{S_T1}, s{S_T1}, s{S_T2}")
            for g in range(NG):
                X = V_X + 4 * g
                a(f"v_mov_b32 v{X}, v{V_MC+g}")
                a(f"v_mov_b32 v{X+1}, v{V_N}")
                a(f"v_mov_b32 v{X+2}, v{V_L+g}")
                a(f"v_mov_b32 v{X+3}, v{V_N}")
                if g == 1:
                    a(f"s_add_u32 s{S_T1}, s{S_T1}, 32768")
                a(f"s_mov_b64 exec, s[{EM[g]}:{EM[g]+1}]")
                a(f"buffer_store_dwordx4 v[{X}:{X+3}], v{VM[g]}, s[{SRD_WS}:{SRD_WS+3}], s{S_T1} offen sc1")
                a("s_mov_b64 exec, -1")
            a.label(f"{tag}_NOML")
            a(f"s_lshl_b32 s{S_T0}, s{S_KVH}, 16")
            a(f"s_lshl_b32 s{S_T2}, s{S_W}, 8")
            a(f"s_add_u32 s{S_T0}, s{S_T0}, s{S_T2}")
            if NG == 1:
                a(f"s_lshl_b32 s{S_T2}, s{S_GRP}, 21")
                a(f"s_add_u32 s{S_T0}, s{S_T0}, s{S_T2}")
            a(f"s_add_u32 s{S_T1}, s{S_T0}, 32768")
            a(f"s_add_u32 s{S_T2}, s{S_T0}, {4*524288}")
            a(f"s_add_u32 s{S_T3}, s{S_T1}, {4*524288}")
        if NG == 2 and i == 1:
            for g in range(NG):
                p = V_P + 8 * g + 6
                a(f"ds_write_b64 v{V_PWR}, v[{p}:{p+1}] offset:{prow_off(3, g)}")
    a.nop(8)
    for g in range(NG):
        for rho in range(2):
            G = V_G0 + 8 * g + 4 * rho
            a(f"v_bfi_b32 v{G}, s{S_FF}, v{V_N}, v{V_ACC+4*g+2*rho}")
            a(f"v_bfi_b32 v{G+2}, s{S_FF}, v{V_N}, v{V_ACC+4*g+2*rho+1}")
    for g in range(NG):
        a(f"s_mov_b64 exec, s[{EX[g]}:{EX[g]+1}]")
        for rho in range(2):
            G = V_G0 + 8 * g + 4 * rho
            a(f"buffer_store_dwordx4 v[{G}:{G+3}], v{VS[g]}, s[{SRD_WS}:{SRD_WS+3}], s{S_T0+2*g+rho} offen sc1")
    a("s_mov_b64 exec, -1")

HEADER = """; paged decode attention (radix shared prefix aware), single launch, in-kernel split-KV combine
; @launch grid=(256,1,1) block=(512,1,1) lds={lds}
.amdgcn_target "amdgcn-amd-amdhsa--gfx950"
.text
"""

def kd(name, vgpr, sgpr):
    acc = (vgpr + 3) // 4 * 4
    return f""".amdhsa_kernel {name}
  .amdhsa_next_free_vgpr {vgpr}
  .amdhsa_next_free_sgpr {sgpr}
  .amdhsa_accum_offset {acc}
  .amdhsa_group_segment_fixed_size 0
  .amdhsa_kernarg_size 64
  .amdhsa_user_sgpr_count 2
  .amdhsa_user_sgpr_kernarg_segment_ptr 1
  .amdhsa_system_sgpr_workgroup_id_x 1
.end_amdhsa_kernel
"""

def main(out):
    t = HEADER.format(lds=LDS_TOTAL)
    a = Asm()
    kernelA(a)
    t += f".globl {KNAME}\n.p2align 8\n.type {KNAME},@function\n" + a.text()
    t += '.section .rodata,"a"\n.p2align 6\n' + kd(KNAME, V_END, 102)
    open(out, "w").write(t)

if __name__ == "__main__":
    main(sys.argv[1] if len(sys.argv) > 1 else f"cdna_kernels/{NAME}.s")
```

```python
import struct, sys, math, os

NAME = "standalone__paged_block_table_kv_radixattention__decode"
KNAME = NAME + "_kernel"
E = os.environ.get
STAMP = int(E('STAMP', '0'))
POL = E('POL', 'nt')
PRIO = int(E('PRIO', '1'))
SLEEP = int(E('SLEEP', '2'))
NOCONS = int(E('NOCONS', '0'))
MLROW = int(E('MLROW', '0'))
MLWAVE = int(E('MLWAVE', '0'))
CE = int(E('CE', '30'))
VSPLIT = int(E('VSPLIT', '2'))
TMIN = int(E('TMIN', '20'))
NCONS = int(E('NCONS', '128'))

def f32bits(x):
    return struct.unpack("<I", struct.pack("<f", x))[0]

class Asm:
    def __init__(self):
        self.lines = []
    def __call__(self, s):
        self.lines.append("  " + s)
    def label(self, s):
        self.lines.append(s + ":")
    def nop(self, n):
        while n > 0:
            k = min(n, 16)
            self.lines.append("  s_nop %d" % (k - 1))
            n -= k
    def c(self, s):
        self.lines.append("  ; " + s)
    def text(self):
        return "\n".join(self.lines) + "\n"

KV_BYTES = 1152 * 32768
NEG = 0xF1800000
CSCALE = f32bits((128 ** -0.5) * math.log2(math.e))
LDS_P = 131072
LDS_TBL = LDS_P
LDS_SW = LDS_P + 8192
LDS_Q = LDS_P + 12288
LDS_M = LDS_P + 24576
LDS_L = LDS_M + 1024
LDS_PLAN = LDS_L + 1024
LDS_FLAG = LDS_PLAN + 64
LDS_TOTAL = LDS_FLAG + 64
WS_ML = 4 << 20
WS_EPOCH = WS_ML + 65536
WS_SIZE = 8 << 20
WS_STAMP = 6 << 20
NS = 16
OOB = 0x80000000

S_W = 3
S_L0X = 4
S_LE8X = 6
S_Q, S_K, S_V, S_BT, S_CTX, S_OUT, S_DBG, S_WS = 8, 10, 12, 14, 16, 18, 20, 22
SRD_K, SRD_V, SRD_Q, SRD_WS = 24, 28, 32, 36
S_CTXW, S_S, S_IT, S_KVH, S_N, S_T, S_F0, S_HI, S_FB, S_NSH, S_PM, S_MIXED, S_GRP, S_NG2 = range(40, 54)
S_LANE = 54
S_SOFF = 60
S_REM = 64
S_T0, S_T1, S_T2, S_T3 = 68, 69, 70, 71
S_MSK = 72
S_C, S_M0B, S_KVH256, S_QM0, S_QSOFF = 80, 81, 82, 83, 84
S_CNT, S_FF, S_SPIN, S_PEND = 86, 87, 88, 89
S_OWN = 90
S_MM = 94
S_OM = 96
S_CB = 53
S_RHO = 59
S_RND = 85
S_NIT = 48
S_TM = 100
S_IT0 = 101
S_NON = 58
S_EX = 8
S_EM = 12
S_DO = [16, 17, 22, 23]

V_LANE, V_T0, V_T1, V_T2, V_T3 = 1, 2, 3, 4, 5
V_G, V_C = 6, 7
V_ROW = 8
V_ROW0 = 12
V_KOFF = 16
V_VOFF = 20
V_KRD = 24
V_LJ = 28
V_VTLO, V_VTHI = 32, 33
V_PRD, V_PWR, V_MADDR, V_ROWB = 34, 35, 36, 37
V_TOK = 38
V_QOFF, V_OOFF, V_MLOFF, V_CTXA, V_NEG, V_CB = 42, 43, 44, 45, 46, 47
V_MC = 48
V_L = 50
V_X = 52
V_Q = 68
V_KF = 100
V_S = 116
V_P = 148
V_A = 164
V_B = 164
V_ACC = 188
V_STAMP = 196
V_N = 197
V_ZERO = 198
V_G0 = 200
V_D = 216
V_VS = 52 + 8
V_FLG = 199
V_END = 256
PREG = [68 + 4*k for k in range(20)] + [180, 184, 216, 220] + [224 + 4*k for k in range(8)]

def stamp(a, idx):
    if not STAMP: return
    a("s_memrealtime s[98:99]")
    a("s_waitcnt lgkmcnt(0)")
    a(f"v_writelane_b32 v{V_STAMP}, s98, {idx}")
def stamp_out(a):
    if not STAMP: return
    a(f"v_lshlrev_b32 v{V_T0}, 2, v{V_LANE}")
    a("s_mov_b64 exec, 0xffff")
    a(f"s_lshl_b32 s{S_T0}, s2, 3")
    a(f"s_add_u32 s{S_T0}, s{S_T0}, s{S_W}")
    a(f"s_lshl_b32 s{S_T0}, s{S_T0}, 6")
    a(f"s_add_u32 s{S_T0}, s{S_T0}, 0x{WS_STAMP:x}")
    a(f"buffer_store_dword v{V_STAMP}, v{V_T0}, s[{SRD_WS}:{SRD_WS+3}], s{S_T0} offen")
    a("s_mov_b64 exec, -1")

vctx, vS, vn, vcum, vex, vj = V_D, V_D+1, V_D+2, V_D+3, V_D+4, V_D+5

def plan_extra(a, tag):
    X = V_X
    a(f"v_cvt_f32_u32 v{X}, s{S_T}")
    a(f"v_cmp_gt_u32 s[{S_MSK}:{S_MSK+1}], s{S_HI}, v{vex}")
    a(f"v_rcp_f32 v{X}, v{X}")
    a(f"v_cmp_lt_u32 s[{S_MSK+2}:{S_MSK+3}], s{S_F0}, v{vcum}")
    a(f"v_cmp_lt_u32 s[{S_MSK+4}:{S_MSK+5}], 0, v{vn}")
    a(f"v_cvt_f32_u32 v{X+1}, v{vex}")
    a(f"v_add_u32 v{X+2}, -1, v{vcum}")
    a(f"v_cvt_f32_u32 v{X+2}, v{X+2}")
    a(f"s_and_b32 s{S_T0}, s{S_MSK}, s{S_MSK+2}")
    a(f"s_and_b32 s{S_T0}, s{S_T0}, s{S_MSK+4}")
    a(f"s_and_b32 s{S_T0}, s{S_T0}, 0x1ff")
    a(f"v_mul_f32 v{X+1}, v{X+1}, v{X}")
    a(f"v_mul_f32 v{X+2}, v{X+2}, v{X}")
    a(f"v_add_f32 v{X+1}, 0x3ba3d70a, v{X+1}")
    a(f"v_add_f32 v{X+2}, 0x3ba3d70a, v{X+2}")
    a(f"v_cvt_u32_f32 v{X+1}, v{X+1}")
    a(f"v_cvt_u32_f32 v{X+2}, v{X+2}")
    a(f"s_bcnt1_i32_b32 s{S_T1}, s{S_T0}")
    a(f"s_cmp_gt_u32 s{S_T1}, 1")
    a(f"s_cselect_b32 s{S_MIXED}, 1, 0")
    a(f"s_lshr_b32 s{S_T1}, s{S_T0}, 1")
    a(f"v_readlane_b32 s{S_NSH}, v{X+2}, 0")
    a(f"s_and_b32 s{S_T2}, s{S_T1}, 0xf")
    a(f"s_cmp_eq_u32 s{S_T2}, 0")
    a(f"s_cselect_b32 s{S_GRP}, 1, 0")
    a(f"s_lshr_b32 s{S_T3}, s{S_T1}, 4")
    a(f"s_min_u32 s{S_T2}, s{S_T2}, 1")
    a(f"s_min_u32 s{S_T3}, s{S_T3}, 1")
    a(f"s_and_b32 s{S_T2}, s{S_T2}, s{S_T3}")
    a(f"s_and_b32 s{S_T3}, s{S_T0}, 1")
    a(f"s_or_b32 s{S_NG2}, s{S_T2}, s{S_T3}")
    a(f"s_cmp_lg_u32 s{S_T3}, 0")
    a(f"s_cselect_b32 s{S_PM}, 0xff, s{S_T1}")
    a(f"s_add_u32 s{S_NSH}, s{S_NSH}, 1")
    a(f"s_cmp_eq_u32 s{S_S}, 0")
    a(f"s_cselect_b32 s{S_NSH}, 0, s{S_NSH}")
    a(f"v_max_u32 v{X+1}, s{S_NSH}, v{X+1}")
    a(f"v_add_u32 v{X+2}, 1, v{X+2}")
    a(f"v_sub_u32 v{X+2}, v{X+2}, v{X+1}")
    a(f"v_max_i32 v{X+2}, 0, v{X+2}")
    a(f"v_cndmask_b32 v{X+2}, 0, v{X+2}, s[{S_MSK+4}:{S_MSK+5}]")
    a(f"v_subrev_u32 v{X+1}, s{S_NSH}, v{X+1}")
    a(f"v_add_u32 v{X+2}, s{S_NSH}, v{X+2}")
    a(f"v_lshlrev_b32 v{X+3}, 2, v{V_C}")
    a(f"v_add_u32 v{X+3}, 0x{LDS_PLAN:x}, v{X+3}")
    a(f"ds_write_b32 v{X+3}, v{X+1}")
    a(f"s_lshr_b32 s{S_T1}, s{S_IT0}, 1")
    a(f"s_and_b32 s{S_T1}, s{S_T1}, 7")
    a(f"s_add_u32 s{S_T1}, s{S_T1}, 1")
    a(f"v_readlane_b32 s{S_CNT}, v{X+2}, s{S_T1}")

def kernelA(a: Asm):
    a.label(KNAME)
    a("s_cmp_ge_u32 s2, 256")
    a("s_cbranch_scc1 A_END")
    if STAMP:
        a("s_memrealtime s[98:99]")
    a("s_load_dwordx16 s[8:23], s[0:1], 0")
    if PRIO:
        a("s_setprio 3")
    a(f"v_and_b32 v{V_LANE}, 63, v0")
    a(f"v_lshrrev_b32 v{V_T0}, 6, v0")
    a(f"v_lshlrev_b32 v{V_T1}, 4, v{V_LANE}")
    a(f"v_readfirstlane_b32 s{S_W}, v{V_T0}")
    a(f"v_lshlrev_b32 v{V_T2}, 4, v0")
    a(f"v_lshrrev_b32 v{V_G}, 4, v{V_LANE}")
    a(f"v_and_b32 v{V_C}, 15, v{V_LANE}")
    a(f"s_and_b32 s{S_IT}, s2, 63")
    a(f"s_lshr_b32 s{S_KVH}, s2, 6")
    a(f"s_lshl_b32 s{S_KVH}, s{S_KVH}, 1")
    a(f"s_cmp_ge_u32 s{S_IT}, {CE}")
    a(f"s_cselect_b32 s{S_T0}, {CE}, 0")
    a(f"s_cselect_b32 s{S_NIT}, {64-CE}, {CE}")
    a(f"s_mov_b32 s{S_TM}, {-(-65536//CE)}")
    a(f"s_cselect_b32 s{S_TM}, {-(-65536//(64-CE))}, s{S_TM}")
    a(f"s_cselect_b32 s{S_T1}, 1, 0")
    a(f"s_sub_u32 s{S_IT}, s{S_IT}, s{S_T0}")
    a(f"s_add_u32 s{S_KVH}, s{S_KVH}, s{S_T1}")
    a(f"s_mov_b32 s{S_IT0}, s{S_IT}")
    a(f"s_and_b32 s{S_T0}, s{S_W}, 3")
    a(f"s_lshl_b32 s{S_T0}, s{S_T0}, 2")
    a(f"v_add_u32 v{V_T0}, s{S_T0}, v{V_G}")
    a(f"v_xor_b32 v{V_T0}, v{V_T0}, v{V_C}")
    a(f"v_lshlrev_b32 v{V_T0}, 4, v{V_T0}")
    a(f"v_lshl_add_u32 v{V_QOFF}, v{V_G}, 8, v{V_T0}")
    a(f"s_lshl_b32 s{S_KVH256}, s{S_KVH}, 8")
    a(f"s_lshl_b32 s{S_QSOFF}, s{S_W}, 13")
    a(f"s_lshl_b32 s{S_T0}, s{S_KVH}, 10")
    a(f"s_add_u32 s{S_QSOFF}, s{S_QSOFF}, s{S_T0}")
    a(f"s_lshl_b32 s{S_QM0}, s{S_W}, 10")
    a(f"s_add_u32 s{S_QM0}, s{S_QM0}, 0x{LDS_Q:x}")
    a(f"s_lshl_b32 s{S_T1}, s{S_W}, 2")
    a("s_waitcnt lgkmcnt(0)")
    if STAMP:
        a(f"v_writelane_b32 v{V_STAMP}, s98, 0")
    stamp(a, 1)
    a(f"global_load_dwordx4 v[{V_ROW}:{V_ROW+3}], v{V_T2}, s[{S_BT}:{S_BT+1}]")
    a(f"global_load_dwordx4 v[{V_ROW0}:{V_ROW0+3}], v{V_T1}, s[{S_BT}:{S_BT+1}]")
    a(f"s_load_dword s{S_CTXW}, s[{S_CTX}:{S_CTX+1}], s{S_T1}")
    def srd(srd, p, sz):
        a(f"s_mov_b32 s{srd}, s{p}")
        a(f"s_and_b32 s{srd+1}, s{p+1}, 0xffff")
        a(f"s_mov_b32 s{srd+2}, 0x{sz:x}")
        a(f"s_mov_b32 s{srd+3}, 0x20000")
    srd(SRD_Q, S_Q, 65536)
    a(f"s_mov_b32 m0, s{S_QM0}")
    srd(SRD_K, S_K, KV_BYTES)
    a(f"buffer_load_dwordx4 v{V_QOFF}, s[{SRD_Q}:{SRD_Q+3}], s{S_QSOFF} offen lds")
    srd(SRD_V, S_V, KV_BYTES)
    srd(SRD_WS, S_WS, WS_SIZE)
    a(f"s_mov_b32 s{S_C}, 0x{CSCALE:08x}")
    a(f"s_mov_b32 s{S_L0X}, 0x00010001")
    a(f"s_mov_b32 s{S_L0X+1}, 0x00010001")
    a(f"s_mov_b32 s{S_LE8X}, 0x01ff01ff")
    a(f"s_mov_b32 s{S_LE8X+1}, 0x01ff01ff")
    a(f"v_mov_b32 v{V_NEG}, 0x{NEG:08x}")
    a(f"v_mov_b32 v{V_ZERO}, 0")
    a(f"s_movk_i32 s{S_FF}, 0xff")
    a("s_cmp_lg_u32 s2, 0")
    a("s_cbranch_scc1 A_NOEP")
    a(f"s_cmp_lg_u32 s{S_W}, 7")
    a("s_cbranch_scc1 A_NOEP")
    a(f"s_mov_b32 s{S_T0}, 0x{WS_EPOCH:x}")
    a(f"buffer_load_dword v{V_N}, v{V_ZERO}, s[{SRD_WS}:{SRD_WS+3}], s{S_T0} offen sc1")
    a("s_waitcnt vmcnt(0)")
    a(f"v_add_u32 v{V_N}, 1, v{V_N}")
    a(f"v_max_u32 v{V_N}, 1, v{V_N}")
    a("s_mov_b64 exec, 1")
    a(f"buffer_store_dword v{V_N}, v{V_ZERO}, s[{SRD_WS}:{SRD_WS+3}], s{S_T0} offen sc1")
    a(f"global_store_dword v{V_ZERO}, v{V_N}, s[{S_DBG}:{S_DBG+1}] sc0 sc1")
    a("s_mov_b64 exec, -1")
    a.label("A_NOEP")
    for j in range(4):
        a(f"v_add_u32 v{V_T0}, {4*j}, v{V_G}")
        a(f"v_xor_b32 v{V_T3}, v{V_T0}, v{V_C}")
        a(f"v_lshlrev_b32 v{V_T3}, 4, v{V_T3}")
        a(f"v_lshl_add_u32 v{V_KOFF+j}, v{V_T0}, 11, v{V_T3}")
        if j:
            a(f"v_subrev_u32 v{V_KOFF+j}, {1024*j}, v{V_KOFF+j}")
        a(f"v_lshl_add_u32 v{V_LJ+j}, v{V_C}, 8, v{V_T3}")
        a(f"v_and_b32 v{V_T3}, 7, v{V_T0}")
        a(f"v_lshlrev_b32 v{V_T3}, 1, v{V_T3}")
        a(f"v_xor_b32 v{V_T3}, v{V_T3}, v{V_C}")
        a(f"v_lshlrev_b32 v{V_T3}, 4, v{V_T3}")
        a(f"v_lshl_add_u32 v{V_VOFF+j}, v{V_T0}, 11, v{V_T3}")
        if j:
            a(f"v_subrev_u32 v{V_VOFF+j}, {1024*j}, v{V_VOFF+j}")
    a(f"s_lshl_b32 s{S_M0B}, s{S_W}, 14")
    for j in range(4):
        a(f"v_add_u32 v{V_KRD+j}, s{S_M0B}, v{V_LJ+j}")
        a(f"v_add_u32 v{V_LJ+j}, 0x{LDS_Q:x}, v{V_LJ+j}")
    a(f"v_lshrrev_b32 v{V_CB}, 2, v{V_C}")
    a(f"v_lshl_add_u32 v{V_T0}, v{V_G}, 2, v{V_CB}")
    a(f"v_and_b32 v{V_T3}, 7, v{V_T0}")
    a(f"v_xor_b32 v{V_T3}, s{S_W}, v{V_T3}")
    a(f"v_lshlrev_b32 v{V_T3}, 5, v{V_T3}")
    a(f"v_lshl_add_u32 v{V_T3}, v{V_T0}, 8, v{V_T3}")
    a(f"v_and_b32 v{V_T0}, 3, v{V_C}")
    a(f"v_lshl_add_u32 v{V_VTLO}, v{V_T0}, 3, v{V_T3}")
    a(f"v_add_u32 v{V_VTHI}, 0x10000, v{V_VTLO}")
    a(f"v_add_u32 v{V_PRD}, 0x{LDS_P:x}, v{V_T1}")
    a(f"s_lshr_b32 s{S_T0}, s{S_W}, 1")
    a(f"s_lshl_b32 s{S_T0}, s{S_T0}, 10")
    a(f"s_and_b32 s{S_T1}, s{S_W}, 1")
    a(f"s_lshl_b32 s{S_T1}, s{S_T1}, 3")
    a(f"s_add_u32 s{S_T0}, s{S_T0}, s{S_T1}")
    a(f"v_add_u32 v{V_PWR}, s{S_T0}, v{V_PRD}")
    a(f"v_lshlrev_b32 v{V_MADDR}, 5, v{V_C}")
    a(f"v_add_u32 v{V_MADDR}, 0x{LDS_M:x}, v{V_MADDR}")
    for r in range(4):
        a(f"v_lshl_add_u32 v{V_TOK+r}, v{V_G}, 2, {r}")
    a(f"v_lshlrev_b32 v{V_T0}, 19, v{V_G}")
    a(f"v_lshl_add_u32 v{V_OOFF}, v{V_C}, 4, v{V_T0}")
    a(f"v_lshlrev_b32 v{V_T0}, 13, v{V_CB}")
    a(f"v_and_b32 v{V_T3}, 3, v{V_C}")
    a(f"v_lshl_add_u32 v{V_MLOFF}, v{V_T3}, 8, v{V_T0}")
    a(f"v_add_u32 v{V_T0}, -1, v{V_C}")
    a(f"v_and_b32 v{V_T3}, 7, v{V_T0}")
    a(f"v_lshlrev_b32 v{V_T3}, 2, v{V_T3}")
    a(f"v_add_u32 v{V_CTXA}, 0x{LDS_SW+32:x}, v{V_T3}")
    a(f"v_max_i32 v{V_T0}, 0, v{V_T0}")
    a(f"v_min_u32 v{V_T0}, 7, v{V_T0}")
    a(f"v_lshlrev_b32 v{V_T0}, 10, v{V_T0}")
    a(f"v_add_u32 v{V_ROWB}, 0x{LDS_TBL:x}, v{V_T0}")
    a("s_waitcnt lgkmcnt(0)")
    a(f"s_max_i32 s{S_CTXW}, s{S_CTXW}, 0")
    a(f"s_min_i32 s{S_CTXW}, s{S_CTXW}, 4096")
    a(f"s_mov_b32 s{S_RND}, 0")
    a(f"v_mov_b32 v{V_FLG}, 0x{LDS_FLAG:x}")
    a(f"s_lshl_b32 s{S_T0}, s{S_W}, 2")
    a(f"v_add_u32 v{V_T0}, s{S_T0}, v{V_FLG}")
    a(f"ds_write2_b32 v{V_T0}, v{V_ZERO}, v{V_ZERO} offset0:0 offset1:8")
    a.label("A_ROUND")
    a(f"s_add_u32 s{S_RND}, s{S_RND}, 1")
    a(f"v_lshlrev_b32 v{V_T0}, 4, v0")
    a(f"v_add_u32 v{V_T0}, 0x{LDS_TBL:x}, v{V_T0}")
    a(f"s_lshl_b32 s{S_T0}, s{S_W}, 2")
    a(f"s_add_u32 s{S_T0}, s{S_T0}, 0x{LDS_SW:x}")
    a(f"v_mov_b32 v{V_T3}, s{S_T0}")
    a(f"v_mov_b32 v{V_X+1}, s{S_CTXW}")
    a(f"s_lshr_b32 s{S_T1}, s{S_CTXW}, 4")
    a(f"v_mov_b32 v{V_T2}, 0x{LDS_SW:x}")
    stamp(a, 2)
    a("s_waitcnt vmcnt(0)")
    stamp(a, 3)
    for e in range(4):
        a(f"v_cmp_ne_u32 s[{S_MSK+2*e}:{S_MSK+2*e+1}], v{V_ROW+e}, v{V_ROW0+e}")
    a(f"ds_write_b128 v{V_T0}, v[{V_ROW}:{V_ROW+3}]")
    a(f"s_or_b64 s[{S_MSK}:{S_MSK+1}], s[{S_MSK}:{S_MSK+1}], s[{S_MSK+2}:{S_MSK+3}]")
    a(f"s_or_b64 s[{S_MSK+4}:{S_MSK+5}], s[{S_MSK+4}:{S_MSK+5}], s[{S_MSK+6}:{S_MSK+7}]")
    a(f"s_or_b64 s[{S_MSK}:{S_MSK+1}], s[{S_MSK}:{S_MSK+1}], s[{S_MSK+4}:{S_MSK+5}]")
    a(f"s_ff1_i32_b64 s{S_T0}, s[{S_MSK}:{S_MSK+1}]")
    a(f"s_lshl_b32 s{S_T0}, s{S_T0}, 2")
    a(f"s_min_u32 s{S_T0}, s{S_T0}, s{S_T1}")
    a(f"v_mov_b32 v{V_X}, s{S_T0}")
    a(f"ds_write2_b32 v{V_T3}, v{V_X}, v{V_X+1} offset0:0 offset1:8")
    a("s_waitcnt lgkmcnt(0)")
    a("s_barrier")
    X = V_X
    a(f"ds_read_b128 v[{X}:{X+3}], v{V_T2}")
    a(f"ds_read_b128 v[{X+4}:{X+7}], v{V_T2} offset:16")
    a(f"ds_read_b32 v{vctx}, v{V_CTXA}")
    a("s_waitcnt lgkmcnt(0)")
    a(f"v_min3_u32 v{X}, v{X}, v{X+1}, v{X+2}")
    a(f"v_min3_u32 v{X+3}, v{X+3}, v{X+4}, v{X+5}")
    a(f"v_add_u32 v{vn}, 15, v{vctx}")
    a(f"v_min3_u32 v{X}, v{X}, v{X+6}, v{X+7}")
    a(f"v_lshrrev_b32 v{vn}, 4, v{vn}")
    a(f"v_min_u32 v{vS}, v{X}, v{X+3}")
    a(f"v_sub_u32 v{vn}, v{vn}, v{vS}")
    a(f"v_cndmask_b32 v{vn}, v{vn}, v{vS}, s[{S_L0X}:{S_L0X+1}]")
    a(f"v_cndmask_b32 v{vn}, 0, v{vn}, s[{S_LE8X}:{S_LE8X+1}]")
    a(f"v_mov_b32 v{vcum}, v{vn}")
    a(f"v_cndmask_b32 v{X+8}, v{vS}, 0, s[{S_L0X}:{S_L0X+1}]")
    a(f"v_readfirstlane_b32 s{S_S}, v{vS}")
    dpp = "row_mask:0xf bank_mask:0xf bound_ctrl:0"
    a(f"v_add_u32_dpp v{vcum}, v{vcum}, v{vcum} row_shr:1 {dpp}")
    a(f"v_lshlrev_b32 v{X+9}, 3, v{V_G}")
    a(f"v_add_u32 v{X+9}, s{S_W}, v{X+9}")
    a(f"v_add_u32_dpp v{vcum}, v{vcum}, v{vcum} row_shr:2 {dpp}")
    a.nop(2)
    a(f"v_add_u32_dpp v{vcum}, v{vcum}, v{vcum} row_shr:4 {dpp}")
    a.nop(2)
    a(f"v_add_u32_dpp v{vcum}, v{vcum}, v{vcum} row_shr:8 {dpp}")
    a.nop(1)
    a(f"v_readlane_b32 s{S_N}, v{vcum}, 8")
    a(f"v_sub_u32 v{vex}, v{vcum}, v{vn}")
    a(f"v_sub_u32 v{X+8}, v{vex}, v{X+8}")
    a(f"s_add_u32 s{S_T}, s{S_N}, s{S_NIT}")
    a(f"s_sub_u32 s{S_T}, s{S_T}, 1")
    a(f"s_mul_i32 s{S_T}, s{S_T}, s{S_TM}")
    a(f"s_lshr_b32 s{S_T}, s{S_T}, 16")
    a(f"s_max_u32 s{S_T}, s{S_T}, {TMIN}")
    a(f"s_min_u32 s{S_T}, s{S_T}, 32")
    a(f"s_mul_i32 s{S_F0}, s{S_IT}, s{S_T}")
    a(f"s_add_u32 s{S_HI}, s{S_F0}, s{S_T}")
    a(f"s_min_u32 s{S_HI}, s{S_HI}, s{S_N}")
    a(f"s_cmp_ge_u32 s{S_F0}, s{S_N}")
    a("s_cbranch_scc1 A_FIN0")
    a(f"v_add_u32 v{X+9}, s{S_F0}, v{X+9}")
    a(f"v_min_u32 v{X+10}, s{S_HI}, v{vcum}")
    a(f"v_cmp_gt_u32 vcc, v{X+10}, v{X+9}")
    a(f"v_cmp_le_u32 s[{S_MM}:{S_MM+1}], v{vex}, v{X+9}")
    a(f"v_sub_u32 v{vj}, v{X+9}, v{X+8}")
    a(f"v_min_u32 v{vj}, 255, v{vj}")
    a(f"v_lshl_add_u32 v{X+10}, v{vj}, 2, v{V_ROWB}")
    a(f"ds_read_b32 v{X+11}, v{X+10}")
    a(f"s_and_b64 s[{S_MM}:{S_MM+1}], s[{S_MM}:{S_MM+1}], vcc")
    a(f"v_mov_b32 v{X+12}, 0x{OOB:x}")
    for i in range(4):
        src = S_MM + (i >> 1)
        if i & 1:
            a(f"s_lshr_b32 s{S_LANE+i}, s{src}, 16")
        else:
            a(f"s_and_b32 s{S_LANE+i}, s{src}, 0xffff")
        a(f"s_or_b32 s{S_LANE+i}, s{S_LANE+i}, 0x8000")
        a(f"s_ff1_i32_b32 s{S_LANE+i}, s{S_LANE+i}")
        if i:
            a(f"s_add_u32 s{S_LANE+i}, s{S_LANE+i}, {16*i}")
    a(f"s_mov_b32 m0, s{S_M0B}")
    a("s_waitcnt lgkmcnt(0)")
    a(f"v_lshl_add_u32 v{X+11}, v{X+11}, 15, s{S_KVH256}")
    a(f"v_cndmask_b32 v{X+11}, v{X+12}, v{X+11}, s[{S_MM}:{S_MM+1}]")
    a.nop(1)
    for i in range(4):
        a(f"v_readlane_b32 s{S_SOFF+i}, v{X+11}, s{S_LANE+i}")
    a.nop(3)
    stamp(a, 4)
    for i in range(4):
        if i:
            a(f"s_add_u32 m0, s{S_M0B}, {i*4096}")
        a.nop(1)
        for j in range(4):
            a(f"buffer_load_dwordx4 v{V_KOFF+j}, s[{SRD_K}:{SRD_K+3}], s{S_SOFF+i} offen offset:{1024*j} {POL} lds")
    if PRIO:
        a("s_setprio 0")
    a(f"v_lshlrev_b32 v{X}, 4, v{vj}")
    a(f"v_sub_u32 v{X}, v{vctx}, v{X}")
    a(f"v_mov_b32 v{X+1}, 16")
    a(f"v_cndmask_b32 v{X}, v{X}, v{X+1}, s[{S_L0X}:{S_L0X+1}]")
    a(f"v_cndmask_b32 v{X}, 0, v{X}, s[{S_MM}:{S_MM+1}]")
    for i in range(4):
        a(f"s_and_b32 s{S_OWN+i}, s{S_LANE+i}, 15")
        a(f"s_sub_u32 s{S_OWN+i}, s{S_OWN+i}, 1")
    for i in range(4):
        a(f"v_readlane_b32 s{S_REM+i}, v{X}, s{S_LANE+i}")
    plan_extra(a, "P1")
    a(f"s_cmp_lg_u32 s{S_NG2}, 0")
    a("s_cbranch_scc1 A_SHARED")
    body(a, 1)
    a("s_branch A_NEXT")
    a.label("A_SHARED")
    body(a, 2)
    a.label("A_NEXT")
    stamp(a, 13)
    a(f"s_add_u32 s{S_IT}, s{S_IT}, s{S_NIT}")
    a(f"s_mul_i32 s{S_T0}, s{S_IT}, s{S_T}")
    a(f"s_cmp_ge_u32 s{S_T0}, s{S_N}")
    a("s_cbranch_scc1 A_FIN")
    a("s_waitcnt lgkmcnt(0)")
    a("s_barrier")
    if PRIO:
        a("s_setprio 3")
    a(f"s_mov_b32 m0, s{S_QM0}")
    a.nop(1)
    a(f"buffer_load_dwordx4 v{V_QOFF}, s[{SRD_Q}:{SRD_Q+3}], s{S_QSOFF} offen lds")
    a("s_branch A_ROUND")
    a.label("A_FIN0")
    plan_extra(a, "P2")
    a(f"s_load_dword s{S_NON}, s[{S_DBG}:{S_DBG+1}], 0")
    a("s_waitcnt vmcnt(0) lgkmcnt(0)")
    a(f"v_mov_b32 v{V_N}, s{S_NON}")
    a.label("A_FIN")
    if NOCONS:
        a("s_branch A_DONE")
    a(f"s_cmp_ge_u32 s{S_IT0}, 16")
    a("s_cbranch_scc1 A_DONE")
    a(f"s_cmp_ge_u32 s{S_W}, 2")
    a("s_cbranch_scc1 A_DONE")
    consumer(a)
    a.label("A_DONE")
    stamp(a, 14)
    stamp_out(a)
    a.label("A_END")
    a("s_endpgm")

def get_nonce(a, tag):
    a(f"v_cmp_eq_u32 vcc, 0, v{V_N}")
    a(f"s_cbranch_vccz {tag}_NOK")
    a(f"s_mov_b32 s{S_SPIN}, 0")
    a.label(f"{tag}_NSPIN")
    a(f"global_load_dword v{V_N}, v{V_ZERO}, s[{S_DBG}:{S_DBG+1}] sc1")
    a("s_waitcnt vmcnt(0)")
    a(f"s_add_u32 s{S_SPIN}, s{S_SPIN}, 1")
    a(f"s_cmp_ge_u32 s{S_SPIN}, 0x40000")
    a(f"s_cbranch_scc1 {tag}_NOK")
    a(f"v_cmp_eq_u32 vcc, 0, v{V_N}")
    a(f"s_cbranch_vccnz {tag}_NSPIN")
    a.label(f"{tag}_NOK")

def consumer(a):
    get_nonce(a, "C")
    D = V_Q
    ML0, ML1 = V_A, V_A + 4
    T0, T1 = V_X + 2, V_X + 3
    M0, L0, M1, L1 = V_X + 4, V_X + 5, V_X + 6, V_X + 7
    X0, X1, A0, A1 = V_X + 8, V_X + 9, V_X + 10, V_X + 11
    SB, SM, SI, ST = S_T0, S_T1, S_T2, S_T3
    SH = S_GRP
    a(f"s_lshr_b32 s{S_CB}, s{S_IT0}, 1")
    a(f"s_lshl_b32 s{S_CB}, s{S_CB}, 3")
    a(f"s_add_u32 s{S_CB}, s{S_CB}, s{S_KVH}")
    a(f"s_and_b32 s{S_RHO}, s{S_IT0}, 1")
    a(f"s_mov_b32 s{SH}, s{S_W}")
    a(f"s_lshl_b32 s{SB}, s{S_CB}, 1")
    a(f"s_add_u32 s{SB}, s{SB}, s{S_RHO}")
    a(f"s_lshl_b32 s{SB}, s{SB}, 15")
    a(f"s_lshl_b32 s{SM}, s{SH}, 10")
    a(f"s_add_u32 s{SB}, s{SB}, s{SM}")
    a(f"s_lshl_b32 s{SM}, s{S_CB}, 2")
    a(f"s_lshl_b32 s{ST}, s{S_RHO}, 1")
    a(f"s_add_u32 s{SM}, s{SM}, s{ST}")
    a(f"s_lshl_b32 s{SM}, s{SM}, 8")
    a(f"s_add_u32 s{SM}, s{SM}, 0x{WS_ML:x}")
    a(f"v_lshlrev_b32 v{V_T1}, 4, v{V_LANE}")
    a(f"v_lshlrev_b32 v{V_T2}, 4, v{V_C}")
    a(f"v_cmp_gt_u32 s[{S_MSK}:{S_MSK+1}], s{S_CNT}, v{V_C}")
    a(f"s_bfm_b32 s{S_PEND}, s{S_CNT}, 0")
    a(f"s_mov_b32 s{S_SPIN}, 0")
    srd = f"s[{SRD_WS}:{SRD_WS+3}]"
    a(f"buffer_load_dwordx4 v[{ML0}:{ML0+3}], v{V_T2}, {srd}, s{SM} offen sc1")
    a(f"buffer_load_dwordx4 v[{ML1}:{ML1+3}], v{V_T2}, {srd}, s{SM} offen offset:256 sc1")
    for sg in range(NS):
        if sg % 2 == 0:
            if sg:
                a(f"s_add_u32 s{SB}, s{SB}, 4096")
            a(f"s_cmp_gt_u32 s{S_CNT}, {sg}")
            a(f"s_cselect_b32 s{SI}, s{SB}, 0x{OOB:x}")
            a(f"buffer_load_dwordx4 v[{D+4*sg}:{D+4*sg+3}], v{V_T1}, {srd}, s{SI} offen sc1")
        else:
            a(f"s_cmp_gt_u32 s{S_CNT}, {sg}")
            a(f"s_cselect_b32 s{SI}, s{SB}, 0x{OOB:x}")
            a(f"buffer_load_dwordx4 v[{D+4*sg}:{D+4*sg+3}], v{V_T1}, {srd}, s{SI} offen offset:2048 sc1")
    a(f"s_sub_u32 s{SB}, s{SB}, {4096*7}")
    a(f"s_waitcnt vmcnt({NS})")
    a.label("C_MLCHK")
    a(f"v_bitop3_b32 v{T0}, v{ML0+1}, v{ML0+3}, v{V_N} bitop3:0x7e")
    a(f"v_bitop3_b32 v{T1}, v{ML1+1}, v{ML1+3}, v{V_N} bitop3:0x7e")
    a(f"v_or_b32 v{T0}, v{T0}, v{T1}")
    a(f"v_cndmask_b32 v{T0}, 0, v{T0}, s[{S_MSK}:{S_MSK+1}]")
    a(f"v_cmp_ne_u32 vcc, 0, v{T0}")
    a("s_cbranch_vccz C_MLOK")
    a(f"s_add_u32 s{S_SPIN}, s{S_SPIN}, 1")
    a(f"s_cmp_ge_u32 s{S_SPIN}, 0x40000")
    a("s_cbranch_scc1 A_DONE")
    a(f"s_sleep {SLEEP}")
    a(f"buffer_load_dwordx4 v[{ML0}:{ML0+3}], v{V_T2}, {srd}, s{SM} offen sc1")
    a(f"buffer_load_dwordx4 v[{ML1}:{ML1+3}], v{V_T2}, {srd}, s{SM} offen offset:256 sc1")
    a("s_waitcnt vmcnt(0)")
    a("s_branch C_MLCHK")
    a.label("C_MLOK")
    msk = f"s[{S_MSK}:{S_MSK+1}]"
    a(f"v_cndmask_b32 v{M0}, v{V_NEG}, v{ML0}, {msk}")
    a(f"v_cndmask_b32 v{M1}, v{V_NEG}, v{ML1}, {msk}")
    a(f"v_cndmask_b32 v{L0}, 0, v{ML0+2}, {msk}")
    a(f"v_cndmask_b32 v{L1}, 0, v{ML1+2}, {msk}")
    dpp = "row_mask:0xf bank_mask:0xf"
    a(f"v_mov_b32 v{X0}, v{M0}")
    a(f"v_mov_b32 v{X1}, v{M1}")
    for sh in (8, 4, 2, 1):
        a.nop(1)
        a(f"v_max_f32_dpp v{X0}, v{X0}, v{X0} row_ror:{sh} {dpp}")
        a(f"v_max_f32_dpp v{X1}, v{X1}, v{X1} row_ror:{sh} {dpp}")
    a(f"v_sub_f32 v{M0}, v{M0}, v{X0}")
    a(f"v_sub_f32 v{M1}, v{M1}, v{X1}")
    a(f"v_exp_f32 v{M0}, v{M0}")
    a(f"v_exp_f32 v{M1}, v{M1}")
    a.nop(1)
    a(f"v_mul_f32 v{X0}, v{M0}, v{L0}")
    a(f"v_mul_f32 v{X1}, v{M1}, v{L1}")
    for sh in (8, 4, 2, 1):
        a.nop(1)
        a(f"v_add_f32_dpp v{X0}, v{X0}, v{X0} row_ror:{sh} {dpp}")
        a(f"v_add_f32_dpp v{X1}, v{X1}, v{X1} row_ror:{sh} {dpp}")
    a(f"v_rcp_f32 v{X0}, v{X0}")
    a(f"v_rcp_f32 v{X1}, v{X1}")
    a(f"v_mov_b32 v{A0}, 0")
    a(f"v_mov_b32 v{A1}, 0")
    a(f"v_mul_f32 v{M0}, v{M0}, v{X0}")
    a(f"v_mul_f32 v{M1}, v{M1}, v{X1}")
    a("s_waitcnt vmcnt(0)")
    for sg in range(NS):
        a(f"s_cmp_le_u32 s{S_CNT}, {sg}")
        a("s_cbranch_scc1 C_SDONE")
        d = D + 4 * sg
        a(f"v_bitop3_b32 v{T0}, v{d+1}, v{d+3}, v{V_N} bitop3:0x7e")
        a(f"v_bitop3_b32 v{T1}, v{d}, v{d+2}, v{V_N} bitop3:0x7e")
        a(f"v_and_or_b32 v{T0}, v{T1}, s{S_FF}, v{T0}")
        a(f"v_cmp_ne_u32 vcc, 0, v{T0}")
        a(f"s_cbranch_vccnz C_S{sg}")
        a(f"v_fmac_f32_dpp v{A0}, v{M0}, v{d} row_newbcast:{sg} {dpp}")
        a(f"v_fmac_f32_dpp v{A1}, v{M1}, v{d+2} row_newbcast:{sg} {dpp}")
        a(f"s_bitset0_b32 s{S_PEND}, {sg}")
        a.label(f"C_S{sg}")
    a.label("C_SDONE")
    a(f"s_cmp_eq_u32 s{S_PEND}, 0")
    a("s_cbranch_scc1 C_FIN")
    a.label("C_ROUND")
    a(f"s_add_u32 s{S_SPIN}, s{S_SPIN}, 1")
    a(f"s_cmp_ge_u32 s{S_SPIN}, 0x40000")
    a("s_cbranch_scc1 A_DONE")
    a(f"s_sleep {SLEEP}")
    SG = S_SOFF
    TM = S_REM
    a(f"s_mov_b32 s{TM}, s{S_PEND}")
    NP = 4
    for p in range(NP):
        a(f"s_ff1_i32_b32 s{SG+p}, s{TM}")
        a(f"s_bitset0_b32 s{TM}, s{SG+p}")
        a(f"s_lshl_b32 s{SI}, s{SG+p}, 11")
        a(f"s_add_u32 s{SI}, s{SI}, s{SB}")
        a(f"s_cmp_lt_i32 s{SG+p}, 0")
        a(f"s_cselect_b32 s{SI}, 0x{OOB:x}, s{SI}")
        a(f"buffer_load_dwordx4 v[{D+4*p}:{D+4*p+3}], v{V_T1}, {srd}, s{SI} offen sc1")
    a("s_waitcnt vmcnt(0)")
    for p in range(NP):
        d = D + 4 * p
        a(f"s_cmp_lt_i32 s{SG+p}, 0")
        a("s_cbranch_scc1 C_RDONE")
        a(f"v_bitop3_b32 v{T0}, v{d+1}, v{d+3}, v{V_N} bitop3:0x7e")
        a(f"v_bitop3_b32 v{T1}, v{d}, v{d+2}, v{V_N} bitop3:0x7e")
        a(f"v_and_or_b32 v{T0}, v{T1}, s{S_FF}, v{T0}")
        a(f"v_cmp_ne_u32 vcc, 0, v{T0}")
        a(f"s_cbranch_vccnz C_R{p}")
        a(f"v_readlane_b32 s{S_OWN}, v{M0}, s{SG+p}")
        a(f"v_readlane_b32 s{S_OWN+1}, v{M1}, s{SG+p}")
        a(f"s_bitset0_b32 s{S_PEND}, s{SG+p}")
        a.nop(1)
        a(f"v_fmac_f32 v{A0}, s{S_OWN}, v{d}")
        a(f"v_fmac_f32 v{A1}, s{S_OWN+1}, v{d+2}")
        a.label(f"C_R{p}")
    a.label("C_RDONE")
    a(f"s_cmp_lg_u32 s{S_PEND}, 0")
    a("s_cbranch_scc1 C_ROUND")
    a.label("C_FIN")
    if STAMP:
        a(f"v_writelane_b32 v{V_STAMP}, s{S_SPIN}, 15")
        stamp(a, 12)
    a(f"v_cvt_pk_bf16_f32 v{A0}, v{A0}, v{A1}")
    a(f"s_lshl_b32 s{SB}, s{S_CB}, 1")
    a(f"s_add_u32 s{SB}, s{SB}, s{S_RHO}")
    a(f"s_lshl_b32 s{SB}, s{SB}, 9")
    a(f"s_lshl_b32 s{SM}, s{SH}, 7")
    a(f"s_add_u32 s{SB}, s{SB}, s{SM}")
    a(f"v_lshlrev_b32 v{V_T1}, 1, v{V_LANE}")
    a(f"s_mov_b32 s{SRD_Q}, s{S_OUT}")
    a(f"s_and_b32 s{SRD_Q+1}, s{S_OUT+1}, 0xffff")
    a(f"buffer_store_short v{A0}, v{V_T1}, s[{SRD_Q}:{SRD_Q+3}], s{SB} offen")
    a(f"buffer_store_short_d16_hi v{A0}, v{V_T1}, s[{SRD_Q}:{SRD_Q+3}], s{SB} offen offset:256")

def poll_flags(a, tag, off):
    X = V_X
    a.label(tag)
    a(f"ds_read_b128 v[{X}:{X+3}], v{V_FLG} offset:{off}")
    a(f"ds_read_b128 v[{X+4}:{X+7}], v{V_FLG} offset:{off+16}")
    a("s_waitcnt lgkmcnt(0)")
    a(f"v_min3_u32 v{X}, v{X}, v{X+1}, v{X+2}")
    a(f"v_min3_u32 v{X+3}, v{X+3}, v{X+4}, v{X+5}")
    a(f"v_min3_u32 v{X}, v{X}, v{X+6}, v{X+7}")
    a(f"v_min_u32 v{X}, v{X}, v{X+3}")
    a(f"v_cmp_gt_u32 vcc, s{S_RND}, v{X}")
    a(f"s_cbranch_vccnz {tag}")

def set_flag(a, off):
    a(f"s_lshl_b32 s{S_T0}, s{S_W}, 2")
    a(f"v_add_u32 v{V_T3}, s{S_T0}, v{V_FLG}")
    a(f"v_mov_b32 v{V_T2}, s{S_RND}")
    a(f"ds_write_b32 v{V_T3}, v{V_T2} offset:{off}")

def body(a: Asm, NG: int):
    tag = f"B{NG}"
    a.c(f"---- body NG={NG}")
    VS = [V_X + 8, V_X + 9]
    VM = [V_X + 10, V_X + 11]
    EX = [S_EX, S_EX + 2]
    EM = [S_EM, S_EM + 2]
    for g in range(NG):
        if NG == 1:
            a(f"s_lshl_b32 s{S_T0}, s{S_GRP}, 4")
            a(f"s_add_u32 s{S_T0}, s{S_T0}, 0x{LDS_PLAN+4:x}")
        else:
            a(f"s_mov_b32 s{S_T0}, 0x{LDS_PLAN+4+16*g:x}")
        a(f"v_lshl_add_u32 v{VS[g]}, v{V_G}, 2, s{S_T0}")
        a(f"v_lshl_add_u32 v{VM[g]}, v{V_CB}, 2, s{S_T0}")
        a(f"ds_read_b32 v{VS[g]}, v{VS[g]}")
        a(f"ds_read_b32 v{VM[g]}, v{VM[g]}")
    if NG == 1:
        a(f"s_lshl_b32 s{S_T0}, s{S_GRP}, 12")
        for j in range(4):
            a(f"v_add_u32 v{V_X+j}, s{S_T0}, v{V_LJ+j}")
        for j in range(4):
            a(f"ds_read_b128 v[{V_Q+4*j}:{V_Q+4*j+3}], v{V_X+j}")
    else:
        for g in range(2):
            for j in range(4):
                a(f"ds_read_b128 v[{V_Q+16*g+4*j}:{V_Q+16*g+4*j+3}], v{V_LJ+j} offset:{g*4096}")
    a(f"s_cmp_lt_u32 s{S_IT}, s{S_NSH}")
    a(f"s_cselect_b32 s{S_T1}, 0, -1")
    a("s_waitcnt lgkmcnt(0)")
    for g in range(NG):
        for V in (VS[g], VM[g]):
            a(f"v_and_b32 v{V}, s{S_T1}, v{V}")
            a(f"v_sub_u32 v{V}, s{S_IT}, v{V}")
        a(f"v_lshl_add_u32 v{VS[g]}, v{VS[g]}, 11, v{V_OOFF}")
        a(f"v_lshl_add_u32 v{VM[g]}, v{VM[g]}, 4, v{V_MLOFF}")
        if NG == 1:
            a(f"s_lshl_b32 s{S_T0}, s{S_GRP}, 2")
            a(f"s_lshr_b32 s{S_T0}, s{S_PM}, s{S_T0}")
        else:
            a(f"s_lshr_b32 s{S_T0}, s{S_PM}, {4*g}")
        a(f"v_lshrrev_b32 v{V_T3}, v{V_G}, s{S_T0}")
        a(f"v_and_b32 v{V_T3}, 1, v{V_T3}")
        a(f"v_cmp_ne_u32 s[{EX[g]}:{EX[g]+1}], 0, v{V_T3}")
        a(f"v_lshrrev_b32 v{V_T3}, v{V_CB}, s{S_T0}")
        a(f"v_and_b32 v{V_T3}, 1, v{V_T3}")
        a(f"v_cmp_ne_u32 s[{EM[g]}:{EM[g]+1}], 0, v{V_T3}")
        a(f"s_and_b32 s{EM[g]}, s{EM[g]}, 0xffff")
        a(f"s_mov_b32 s{EM[g]+1}, 0")
    a(f"s_lshl_b32 s{S_DO[0]}, s{S_KVH}, 16")
    a(f"s_lshl_b32 s{S_T2}, s{S_W}, 8")
    a(f"s_add_u32 s{S_DO[0]}, s{S_DO[0]}, s{S_T2}")
    if NG == 1:
        a(f"s_lshl_b32 s{S_T2}, s{S_GRP}, 21")
        a(f"s_add_u32 s{S_DO[0]}, s{S_DO[0]}, s{S_T2}")
    a(f"s_add_u32 s{S_DO[1]}, s{S_DO[0]}, 32768")
    a(f"s_add_u32 s{S_DO[2]}, s{S_DO[0]}, {4*524288}")
    a(f"s_add_u32 s{S_DO[3]}, s{S_DO[1]}, {4*524288}")
    stamp(a, 5)
    for i in range(4):
        a(f"s_waitcnt vmcnt({12 - 4*i})")
        if i == 0: stamp(a, 6)
        if i == 3: stamp(a, 7)
        for j in range(4):
            a(f"ds_read_b128 v[{V_KF+4*j}:{V_KF+4*j+3}], v{V_KRD+j} offset:{i*4096}")
        a("s_waitcnt lgkmcnt(0)")
        for g in range(NG):
            s = V_S + 16 * g + 4 * i
            for j in range(4):
                c = "0" if j == 0 else f"v[{s}:{s+3}]"
                a(f"v_mfma_f32_16x16x32_bf16 v[{s}:{s+3}], v[{V_KF+4*j}:{V_KF+4*j+3}], v[{V_Q+16*g+4*j}:{V_Q+16*g+4*j+3}], {c}")
    a(f"s_load_dword s{S_NON}, s[{S_DBG}:{S_DBG+1}], 0")
    a.nop(7)
    for i in range(4):
        a(f"s_cmp_lt_i32 s{S_REM+i}, 16")
        a(f"s_cbranch_scc1 {tag}_DM{i}")
        a(f"s_cmp_eq_u32 s{S_MIXED}, 0")
        a(f"s_cbranch_scc1 {tag}_NM{i}")
        a(f"s_cmp_eq_u32 s{S_OWN+i}, -1")
        a(f"s_cbranch_scc1 {tag}_NM{i}")
        a.label(f"{tag}_DM{i}")
        for r in range(4):
            a(f"v_cmp_gt_i32 s[{S_MSK+2*r}:{S_MSK+2*r+1}], s{S_REM+i}, v{V_TOK+r}")
        for g in range(NG):
            if NG == 1:
                a(f"s_lshl_b32 s{S_T0}, s{S_GRP}, 2")
                a(f"s_sub_u32 s{S_T0}, s{S_OWN+i}, s{S_T0}")
            else:
                a(f"s_sub_u32 s{S_T0}, s{S_OWN+i}, {4*g}")
            a(f"v_cmp_eq_u32 s[{S_OM+2*g}:{S_OM+2*g+1}], s{S_T0}, v{V_CB}")
            a(f"s_cmp_eq_u32 s{S_OWN+i}, -1")
            a(f"s_cselect_b64 s[{S_OM+2*g}:{S_OM+2*g+1}], -1, s[{S_OM+2*g}:{S_OM+2*g+1}]")
        for g in range(NG):
            for r in range(4):
                s = V_S + 16 * g + 4 * i + r
                a(f"s_and_b64 vcc, s[{S_MSK+2*r}:{S_MSK+2*r+1}], s[{S_OM+2*g}:{S_OM+2*g+1}]")
                a(f"v_cndmask_b32 v{s}, v{V_NEG}, v{s}, vcc")
        a.label(f"{tag}_NM{i}")
    for g in range(NG):
        s = V_S + 16 * g
        x = V_X + 1 + 2 * g
        a(f"v_max3_f32 v{x}, v{s}, v{s+1}, v{s+2}")
        for k in range(3, 15, 2):
            a(f"v_max3_f32 v{x}, v{x}, v{s+k}, v{s+k+1}")
        a(f"v_max_f32 v{x}, v{x}, v{s+15}")
    def xreduce(op):
        for swap in ("v_permlane16_swap_b32", "v_permlane32_swap_b32"):
            for g in range(NG):
                x = V_X + 1 + 2 * g
                a(f"v_mov_b32 v{x+1}, v{x}")
            a.nop(2)
            for g in range(NG):
                x = V_X + 1 + 2 * g
                a(f"{swap} v{x}, v{x+1}")
            a.nop(1)
            for g in range(NG):
                x = V_X + 1 + 2 * g
                a(f"{op} v{x}, v{x}, v{x+1}")
    xreduce("v_max_f32")
    a(f"s_lshl_b32 s{S_T0}, s{S_W}, 2")
    a(f"v_add_u32 v{V_T0}, s{S_T0}, v{V_MADDR}")
    for g in range(NG):
        a(f"ds_write_b32 v{V_T0}, v{V_X+1+2*g} offset:{g*512}")
    set_flag(a, 0)
    def vissue(lo=0, hi=4):
        for ii in range(lo, hi):
            a(f"s_add_u32 m0, s{S_M0B}, {ii*4096}")
            a.nop(1)
            for j in range(4):
                a(f"buffer_load_dwordx4 v{V_VOFF+j}, s[{SRD_V}:{SRD_V+3}], s{S_SOFF+ii} offen offset:{1024*j} {POL} lds")
    vissue(0, VSPLIT)
    a(f"s_cmp_ge_u32 s{S_W}, 4")
    a(f"s_cbranch_scc1 {tag}_V1")
    vissue(VSPLIT, 4)
    a.label(f"{tag}_V1")
    poll_flags(a, f"{tag}_PM", 0)
    stamp(a, 8)
    for g in range(NG):
        k = V_KF + 8 * g
        a(f"ds_read_b128 v[{k}:{k+3}], v{V_MADDR} offset:{g*512}")
        a(f"ds_read_b128 v[{k+4}:{k+7}], v{V_MADDR} offset:{g*512+16}")
    a("s_waitcnt lgkmcnt(0)")
    for g in range(NG):
        k = V_KF + 8 * g
        a(f"v_max3_f32 v{k}, v{k}, v{k+1}, v{k+2}")
        a(f"v_max3_f32 v{k+3}, v{k+3}, v{k+4}, v{k+5}")
        a(f"v_max3_f32 v{k}, v{k}, v{k+6}, v{k+7}")
        a(f"v_max_f32 v{k}, v{k}, v{k+3}")
        a(f"v_mul_f32 v{V_MC+g}, s{S_C}, v{k}")
    for g in range(NG):
        for k in range(16):
            s = V_S + 16 * g + k
            a(f"v_fma_f32 v{s}, v{s}, s{S_C}, -v{V_MC+g}")
        for k in range(16):
            s = V_S + 16 * g + k
            a(f"v_exp_f32 v{s}, v{s}")
    a.nop(1)
    for g in range(NG):
        for i in range(4):
            s = V_S + 16 * g + 4 * i
            p = V_P + 8 * g + 2 * i
            a(f"v_cvt_pk_bf16_f32 v{p}, v{s}, v{s+1}")
            a(f"v_cvt_pk_bf16_f32 v{p+1}, v{s+2}, v{s+3}")
    def prow_off(i, g):
        if NG == 1:
            return i * 4096
        return (i % 3) * 8192 + g * 4096
    nrows0 = 4 if NG == 1 else 3
    for i in range(nrows0):
        for g in range(NG):
            p = V_P + 8 * g + 2 * i
            a(f"ds_write_b64 v{V_PWR}, v[{p}:{p+1}] offset:{prow_off(i, g)}")
    for g in range(NG):
        s = V_S + 16 * g
        x = V_X + 1 + 2 * g
        for k in range(0, 16, 2):
            a(f"v_add_f32 v{s+k}, v{s+k}, v{s+k+1}")
        for k in range(0, 16, 4):
            a(f"v_add_f32 v{s+k}, v{s+k}, v{s+k+2}")
        a(f"v_add_f32 v{s}, v{s}, v{s+4}")
        a(f"v_add_f32 v{s+8}, v{s+8}, v{s+12}")
        a(f"v_add_f32 v{x}, v{s}, v{s+8}")
    xreduce("v_add_f32")
    a(f"v_add_u32 v{V_T0}, 1024, v{V_T0}")
    for g in range(NG):
        a(f"ds_write_b32 v{V_T0}, v{V_X+1+2*g} offset:{g*512}")
    set_flag(a, 32)
    a(f"s_cmp_lt_u32 s{S_W}, 4")
    a(f"s_cbranch_scc1 {tag}_V2")
    vissue(VSPLIT, 4)
    a.label(f"{tag}_V2")
    poll_flags(a, f"{tag}_PP", 32)
    def preg(i, g, u):
        return PREG[(i * 4 + u) * NG + g]
    def pread(i):
        for u in range(4):
            for g in range(NG):
                A = preg(i, g, u)
                a(f"ds_read_b128 v[{A}:{A+3}], v{V_PRD} offset:{prow_off(i, g) + u*1024}")
    for i in range(nrows0):
        pread(i)
        if NG == 2:
            a("s_waitcnt lgkmcnt(0)")
        elif i == 2:
            a("s_waitcnt lgkmcnt(4)")
    a(f"v_mov_b32 v{V_N}, s{S_NON}")
    get_nonce(a, tag)
    for g in range(NG):
        for rho in range(2):
            G = V_G0 + 8 * g + 4 * rho
            a(f"v_mov_b32 v{G+1}, v{V_N}")
            a(f"v_mov_b32 v{G+3}, v{V_N}")
    for i in range(4):
        a(f"s_waitcnt vmcnt({12-4*i}) lgkmcnt(0)")
        a("s_barrier")
        stamp(a, 9 + i)
        for u in range(4):
            B = V_B + 4 * u
            for h in range(2):
                wv = 2 * u + h
                base = V_VTLO if wv < 4 else V_VTHI
                off = (wv & 3) * 16384 + i * 4096
                a(f"ds_read_b64_tr_b16 v[{B+2*h}:{B+2*h+1}], v{base} offset:{off}")
        extra = 0
        if NG == 2 and i == 0:
            for g in range(NG):
                p = V_P + 8 * g + 6
                a(f"ds_write_b64 v{V_PWR}, v[{p}:{p+1}] offset:{prow_off(3, g)}")
            extra = 2
        for u in range(4):
            n = 2 * (3 - u) + extra
            assert n <= 15
            a(f"s_waitcnt lgkmcnt({n})")
            B = V_B + 4 * u
            for g in range(NG):
                A = preg(i, g, u)
                acc = V_ACC + 4 * g
                c = "0" if (i == 0 and u == 0) else f"v[{acc}:{acc+3}]"
                a(f"v_mfma_f32_16x16x32_bf16 v[{acc}:{acc+3}], v[{A}:{A+3}], v[{B}:{B+3}], {c}")
            if NG == 2 and i == 1 and u == 0:
                pread(3)
                extra = 8
        if i == MLROW:
            a(f"s_cmp_lg_u32 s{S_W}, {MLWAVE}")
            a(f"s_cbranch_scc1 {tag}_NOML")
            a(f"s_lshl_b32 s{S_T1}, s{S_KVH}, 10")
            a(f"s_add_u32 s{S_T1}, s{S_T1}, 0x{WS_ML:x}")
            if NG == 1:
                a(f"s_lshl_b32 s{S_T2}, s{S_GRP}, 15")
                a(f"s_add_u32 s{S_T1}, s{S_T1}, s{S_T2}")
            for g in range(NG):
                X = V_X
                a(f"ds_read_b128 v[{X}:{X+3}], v{V_MADDR} offset:{1024+g*512}")
                a(f"ds_read_b128 v[{X+4}:{X+7}], v{V_MADDR} offset:{1024+g*512+16}")
                a("s_waitcnt lgkmcnt(0)")
                for t in range(4):
                    a(f"v_add_f32 v{X+t}, v{X+t}, v{X+t+4}")
                a(f"v_add_f32 v{X}, v{X}, v{X+1}")
                a(f"v_add_f32 v{X+2}, v{X+2}, v{X+3}")
                a(f"v_add_f32 v{X+6}, v{X}, v{X+2}")
                a(f"v_mov_b32 v{X+4}, v{V_MC+g}")
                a(f"v_mov_b32 v{X+5}, v{V_N}")
                a(f"v_mov_b32 v{X+7}, v{V_N}")
                if g == 1:
                    a(f"s_add_u32 s{S_T1}, s{S_T1}, 32768")
                a(f"s_mov_b64 exec, s[{EM[g]}:{EM[g]+1}]")
                a(f"buffer_store_dwordx4 v[{X+4}:{X+7}], v{VM[g]}, s[{SRD_WS}:{SRD_WS+3}], s{S_T1} offen sc1")
                a("s_mov_b64 exec, -1")
                if g == 0 and NG == 2:
                    a.nop(2)
            a.label(f"{tag}_NOML")
    a.nop(8)
    for g in range(NG):
        for rho in range(2):
            G = V_G0 + 8 * g + 4 * rho
            a(f"v_bfi_b32 v{G}, s{S_FF}, v{V_N}, v{V_ACC+4*g+2*rho}")
            a(f"v_bfi_b32 v{G+2}, s{S_FF}, v{V_N}, v{V_ACC+4*g+2*rho+1}")
    for g in range(NG):
        a(f"s_mov_b64 exec, s[{EX[g]}:{EX[g]+1}]")
        for rho in range(2):
            G = V_G0 + 8 * g + 4 * rho
            a(f"buffer_store_dwordx4 v[{G}:{G+3}], v{VS[g]}, s[{SRD_WS}:{SRD_WS+3}], s{S_DO[2*g+rho]} offen sc1")
    a("s_mov_b64 exec, -1")

HEADER = """; paged decode attention (radix shared prefix aware), single launch, in-kernel split-KV combine
; @launch grid=(256,1,1) block=(512,1,1) lds={lds}
.amdgcn_target "amdgcn-amd-amdhsa--gfx950"
.text
"""

def kd(name, vgpr, sgpr):
    acc = (vgpr + 3) // 4 * 4
    return f""".amdhsa_kernel {name}
  .amdhsa_next_free_vgpr {vgpr}
  .amdhsa_next_free_sgpr {sgpr}
  .amdhsa_accum_offset {acc}
  .amdhsa_group_segment_fixed_size 0
  .amdhsa_kernarg_size 64
  .amdhsa_user_sgpr_count 2
  .amdhsa_user_sgpr_kernarg_segment_ptr 1
  .amdhsa_system_sgpr_workgroup_id_x 1
.end_amdhsa_kernel
"""

def main(out):
    t = HEADER.format(lds=LDS_TOTAL)
    a = Asm()
    kernelA(a)
    t += f".globl {KNAME}\n.p2align 8\n.type {KNAME},@function\n" + a.text()
    t += '.section .rodata,"a"\n.p2align 6\n' + kd(KNAME, V_END, 102)
    open(out, "w").write(t)

if __name__ == "__main__":
    main(sys.argv[1] if len(sys.argv) > 1 else f"cdna_kernels/{NAME}.s")
```

```python
import struct, sys, math, os

NAME = "standalone__paged_block_table_kv_radixattention__decode"
KNAME = NAME + "_kernel"
E = os.environ.get
STAMP = int(E('STAMP', '0'))
POL = E('POL', 'nt')
PRIO = int(E('PRIO', '1'))
SLEEP = int(E('SLEEP', '2'))
NOCONS = int(E('NOCONS', '0'))
MLROW = int(E('MLROW', '0'))
MLWAVE = int(E('MLWAVE', '0'))
CNTS = [int(x) for x in E('CNT', '30,40,29,29,30,40,29,29').split(',')]
assert sum(CNTS) == 256 and min(CNTS) >= 16
VSPLIT = int(E('VSPLIT', '1'))
PIPE = int(E('PIPE', '1'))
PSLEEP = int(E('PSLEEP', '1'))
TMIN = int(E('TMIN', '20'))
NCONS = int(E('NCONS', '128'))

def f32bits(x):
    return struct.unpack("<I", struct.pack("<f", x))[0]

class Asm:
    def __init__(self):
        self.lines = []
    def __call__(self, s):
        self.lines.append("  " + s)
    def label(self, s):
        self.lines.append(s + ":")
    def nop(self, n):
        while n > 0:
            k = min(n, 16)
            self.lines.append("  s_nop %d" % (k - 1))
            n -= k
    def c(self, s):
        self.lines.append("  ; " + s)
    def text(self):
        return "\n".join(self.lines) + "\n"

KV_BYTES = 1152 * 32768
NEG = 0xF1800000
CSCALE = f32bits((128 ** -0.5) * math.log2(math.e))
LDS_P = 131072
LDS_TBL = LDS_P
LDS_SW = LDS_P + 8192
LDS_Q = LDS_P + 12288
LDS_M = LDS_P + 24576
LDS_L = LDS_M + 1024
LDS_PLAN = LDS_L + 1024
LDS_FLAG = LDS_PLAN + 64
LDS_TOTAL = LDS_FLAG + 64
WS_ML = 4 << 20
WS_EPOCH = WS_ML + 65536
WS_SIZE = 8 << 20
WS_STAMP = 6 << 20
NS = 16
OOB = 0x80000000

S_W = 3
S_L0X = 4
S_LE8X = 6
S_Q, S_K, S_V, S_BT, S_CTX, S_OUT, S_DBG, S_WS = 8, 10, 12, 14, 16, 18, 20, 22
SRD_K, SRD_V, SRD_Q, SRD_WS = 24, 28, 32, 36
S_CTXW, S_S, S_IT, S_KVH, S_N, S_T, S_F0, S_HI, S_FB, S_NSH, S_PM, S_MIXED, S_GRP, S_NG2 = range(40, 54)
S_LANE = 54
S_SOFF = 60
S_REM = 64
S_T0, S_T1, S_T2, S_T3 = 68, 69, 70, 71
S_MSK = 72
S_C, S_M0B, S_KVH256, S_QM0, S_QSOFF = 80, 81, 82, 83, 84
S_CNT, S_FF, S_SPIN, S_PEND = 86, 87, 88, 89
S_OWN = 90
S_MM = 94
S_OM = 96
S_CB = 53
S_RHO = 59
S_RND = 85
S_NIT = 48
S_TM = 100
S_IT0 = 101
S_NON = 58
S_EX = 8
S_EM = 12
S_DO = [16, 17, 22, 23]

V_LANE, V_T0, V_T1, V_T2, V_T3 = 1, 2, 3, 4, 5
V_G, V_C = 6, 7
V_ROW = 8
V_ROW0 = 12
V_KOFF = 16
V_VOFF = 20
V_KRD = 24
V_LJ = 28
V_VTLO, V_VTHI = 32, 33
V_PRD, V_PWR, V_MADDR, V_ROWB = 34, 35, 36, 37
V_TOK = 38
V_QOFF, V_OOFF, V_MLOFF, V_CTXA, V_NEG, V_CB = 42, 43, 44, 45, 46, 47
V_MC = 48
V_L = 50
V_X = 52
V_Q = 68
V_KF = 100
V_S = 116
V_P = 148
V_A = 164
V_B = 164
V_ACC = 188
V_STAMP = 196
V_N = 197
V_ZERO = 198
V_G0 = 200
V_D = 216
V_VS = 52 + 8
V_FLG = 199
V_END = 256
PREG = [68 + 4*k for k in range(20)] + [180, 184, 216, 220] + [224 + 4*k for k in range(8)]

def stamp(a, idx):
    if not STAMP: return
    a("s_memrealtime s[98:99]")
    a("s_waitcnt lgkmcnt(0)")
    a(f"v_writelane_b32 v{V_STAMP}, s98, {idx}")
def stamp_out(a):
    if not STAMP: return
    a(f"v_lshlrev_b32 v{V_T0}, 2, v{V_LANE}")
    a("s_mov_b64 exec, 0xffff")
    a(f"s_lshl_b32 s{S_T0}, s2, 3")
    a(f"s_add_u32 s{S_T0}, s{S_T0}, s{S_W}")
    a(f"s_lshl_b32 s{S_T0}, s{S_T0}, 6")
    a(f"s_add_u32 s{S_T0}, s{S_T0}, 0x{WS_STAMP:x}")
    a(f"buffer_store_dword v{V_STAMP}, v{V_T0}, s[{SRD_WS}:{SRD_WS+3}], s{S_T0} offen")
    a("s_mov_b64 exec, -1")

vctx, vS, vn, vcum, vex, vj = V_D, V_D+1, V_D+2, V_D+3, V_D+4, V_D+5

def plan_extra(a, tag):
    X = V_X
    a(f"v_cvt_f32_u32 v{X}, s{S_T}")
    a(f"v_cmp_gt_u32 s[{S_MSK}:{S_MSK+1}], s{S_HI}, v{vex}")
    a(f"v_rcp_f32 v{X}, v{X}")
    a(f"v_cmp_lt_u32 s[{S_MSK+2}:{S_MSK+3}], s{S_F0}, v{vcum}")
    a(f"v_cmp_lt_u32 s[{S_MSK+4}:{S_MSK+5}], 0, v{vn}")
    a(f"v_cvt_f32_u32 v{X+1}, v{vex}")
    a(f"v_add_u32 v{X+2}, -1, v{vcum}")
    a(f"v_cvt_f32_u32 v{X+2}, v{X+2}")
    a(f"s_and_b32 s{S_T0}, s{S_MSK}, s{S_MSK+2}")
    a(f"s_and_b32 s{S_T0}, s{S_T0}, s{S_MSK+4}")
    a(f"s_and_b32 s{S_T0}, s{S_T0}, 0x1ff")
    a(f"v_mul_f32 v{X+1}, v{X+1}, v{X}")
    a(f"v_mul_f32 v{X+2}, v{X+2}, v{X}")
    a(f"v_add_f32 v{X+1}, 0x3ba3d70a, v{X+1}")
    a(f"v_add_f32 v{X+2}, 0x3ba3d70a, v{X+2}")
    a(f"v_cvt_u32_f32 v{X+1}, v{X+1}")
    a(f"v_cvt_u32_f32 v{X+2}, v{X+2}")
    a(f"s_bcnt1_i32_b32 s{S_T1}, s{S_T0}")
    a(f"s_cmp_gt_u32 s{S_T1}, 1")
    a(f"s_cselect_b32 s{S_MIXED}, 1, 0")
    a(f"s_lshr_b32 s{S_T1}, s{S_T0}, 1")
    a(f"v_readlane_b32 s{S_NSH}, v{X+2}, 0")
    a(f"s_and_b32 s{S_T2}, s{S_T1}, 0xf")
    a(f"s_cmp_eq_u32 s{S_T2}, 0")
    a(f"s_cselect_b32 s{S_GRP}, 1, 0")
    a(f"s_lshr_b32 s{S_T3}, s{S_T1}, 4")
    a(f"s_min_u32 s{S_T2}, s{S_T2}, 1")
    a(f"s_min_u32 s{S_T3}, s{S_T3}, 1")
    a(f"s_and_b32 s{S_T2}, s{S_T2}, s{S_T3}")
    a(f"s_and_b32 s{S_T3}, s{S_T0}, 1")
    a(f"s_or_b32 s{S_NG2}, s{S_T2}, s{S_T3}")
    a(f"s_cmp_lg_u32 s{S_T3}, 0")
    a(f"s_cselect_b32 s{S_PM}, 0xff, s{S_T1}")
    a(f"s_add_u32 s{S_NSH}, s{S_NSH}, 1")
    a(f"s_cmp_eq_u32 s{S_S}, 0")
    a(f"s_cselect_b32 s{S_NSH}, 0, s{S_NSH}")
    a(f"v_max_u32 v{X+1}, s{S_NSH}, v{X+1}")
    a(f"v_add_u32 v{X+2}, 1, v{X+2}")
    a(f"v_sub_u32 v{X+2}, v{X+2}, v{X+1}")
    a(f"v_max_i32 v{X+2}, 0, v{X+2}")
    a(f"v_cndmask_b32 v{X+2}, 0, v{X+2}, s[{S_MSK+4}:{S_MSK+5}]")
    a(f"v_subrev_u32 v{X+1}, s{S_NSH}, v{X+1}")
    a(f"v_add_u32 v{X+2}, s{S_NSH}, v{X+2}")
    a(f"v_lshlrev_b32 v{X+3}, 2, v{V_C}")
    a(f"v_add_u32 v{X+3}, 0x{LDS_PLAN:x}, v{X+3}")
    a(f"ds_write_b32 v{X+3}, v{X+1}")
    a(f"s_lshr_b32 s{S_T1}, s{S_IT0}, 1")
    a(f"s_and_b32 s{S_T1}, s{S_T1}, 7")
    a(f"s_add_u32 s{S_T1}, s{S_T1}, 1")
    a(f"v_readlane_b32 s{S_CNT}, v{X+2}, s{S_T1}")

def kernelA(a: Asm):
    a.label(KNAME)
    a("s_cmp_ge_u32 s2, 256")
    a("s_cbranch_scc1 A_END")
    if STAMP:
        a("s_memrealtime s[98:99]")
    a("s_load_dwordx16 s[8:23], s[0:1], 0")
    if PRIO:
        a("s_setprio 3")
    a(f"v_and_b32 v{V_LANE}, 63, v0")
    a(f"v_lshrrev_b32 v{V_T0}, 6, v0")
    a(f"v_lshlrev_b32 v{V_T1}, 4, v{V_LANE}")
    a(f"v_readfirstlane_b32 s{S_W}, v{V_T0}")
    a(f"v_lshlrev_b32 v{V_T2}, 4, v0")
    a(f"v_lshrrev_b32 v{V_G}, 4, v{V_LANE}")
    a(f"v_and_b32 v{V_C}, 15, v{V_LANE}")
    pre = [sum(CNTS[:h]) for h in range(8)]
    a(f"s_mov_b32 s{S_KVH}, 0")
    a(f"s_mov_b32 s{S_IT}, s2")
    a(f"s_mov_b32 s{S_NIT}, {CNTS[0]}")
    for h in range(1, 8):
        a(f"s_cmp_ge_u32 s2, {pre[h]}")
        a(f"s_cselect_b32 s{S_KVH}, {h}, s{S_KVH}")
        a(f"s_cselect_b32 s{S_T0}, {pre[h]}, " + ("0" if h == 1 else f"s{S_T0}"))
        if CNTS[h] != CNTS[h-1] or True:
            a(f"s_cselect_b32 s{S_NIT}, {CNTS[h]}, s{S_NIT}")
    a(f"s_sub_u32 s{S_IT}, s2, s{S_T0}")
    vals = sorted(set(CNTS))
    a(f"s_mov_b32 s{S_TM}, {-(-65536//vals[0])}")
    for vv in vals[1:]:
        a(f"s_cmp_eq_u32 s{S_NIT}, {vv}")
        a(f"s_cselect_b32 s{S_TM}, {-(-65536//vv)}, s{S_TM}")
    a(f"s_mov_b32 s{S_IT0}, s{S_IT}")
    a(f"s_and_b32 s{S_T0}, s{S_W}, 3")
    a(f"s_lshl_b32 s{S_T0}, s{S_T0}, 2")
    a(f"v_add_u32 v{V_T0}, s{S_T0}, v{V_G}")
    a(f"v_xor_b32 v{V_T0}, v{V_T0}, v{V_C}")
    a(f"v_lshlrev_b32 v{V_T0}, 4, v{V_T0}")
    a(f"v_lshl_add_u32 v{V_QOFF}, v{V_G}, 8, v{V_T0}")
    a(f"s_lshl_b32 s{S_KVH256}, s{S_KVH}, 8")
    a(f"s_lshl_b32 s{S_QSOFF}, s{S_W}, 13")
    a(f"s_lshl_b32 s{S_T0}, s{S_KVH}, 10")
    a(f"s_add_u32 s{S_QSOFF}, s{S_QSOFF}, s{S_T0}")
    a(f"s_lshl_b32 s{S_QM0}, s{S_W}, 10")
    a(f"s_add_u32 s{S_QM0}, s{S_QM0}, 0x{LDS_Q:x}")
    a(f"s_lshl_b32 s{S_T1}, s{S_W}, 2")
    a("s_waitcnt lgkmcnt(0)")
    if STAMP:
        a(f"v_writelane_b32 v{V_STAMP}, s98, 0")
    stamp(a, 1)
    a(f"global_load_dwordx4 v[{V_ROW}:{V_ROW+3}], v{V_T2}, s[{S_BT}:{S_BT+1}]")
    a(f"global_load_dwordx4 v[{V_ROW0}:{V_ROW0+3}], v{V_T1}, s[{S_BT}:{S_BT+1}]")
    a(f"s_load_dword s{S_CTXW}, s[{S_CTX}:{S_CTX+1}], s{S_T1}")
    def srd(srd, p, sz):
        a(f"s_mov_b32 s{srd}, s{p}")
        a(f"s_and_b32 s{srd+1}, s{p+1}, 0xffff")
        a(f"s_mov_b32 s{srd+2}, 0x{sz:x}")
        a(f"s_mov_b32 s{srd+3}, 0x20000")
    srd(SRD_Q, S_Q, 65536)
    a(f"s_mov_b32 m0, s{S_QM0}")
    srd(SRD_K, S_K, KV_BYTES)
    a(f"buffer_load_dwordx4 v{V_QOFF}, s[{SRD_Q}:{SRD_Q+3}], s{S_QSOFF} offen lds")
    srd(SRD_V, S_V, KV_BYTES)
    srd(SRD_WS, S_WS, WS_SIZE)
    a(f"s_mov_b32 s{S_C}, 0x{CSCALE:08x}")
    a(f"s_mov_b32 s{S_L0X}, 0x00010001")
    a(f"s_mov_b32 s{S_L0X+1}, 0x00010001")
    a(f"s_mov_b32 s{S_LE8X}, 0x01ff01ff")
    a(f"s_mov_b32 s{S_LE8X+1}, 0x01ff01ff")
    a(f"v_mov_b32 v{V_NEG}, 0x{NEG:08x}")
    a(f"v_mov_b32 v{V_ZERO}, 0")
    a(f"s_movk_i32 s{S_FF}, 0xff")
    a("s_cmp_lg_u32 s2, 0")
    a("s_cbranch_scc1 A_NOEP")
    a(f"s_cmp_lg_u32 s{S_W}, 7")
    a("s_cbranch_scc1 A_NOEP")
    a(f"s_mov_b32 s{S_T0}, 0x{WS_EPOCH:x}")
    a(f"buffer_load_dword v{V_N}, v{V_ZERO}, s[{SRD_WS}:{SRD_WS+3}], s{S_T0} offen sc1")
    a("s_waitcnt vmcnt(0)")
    a(f"v_add_u32 v{V_N}, 1, v{V_N}")
    a(f"v_max_u32 v{V_N}, 1, v{V_N}")
    a("s_mov_b64 exec, 1")
    a(f"buffer_store_dword v{V_N}, v{V_ZERO}, s[{SRD_WS}:{SRD_WS+3}], s{S_T0} offen sc1")
    a(f"global_store_dword v{V_ZERO}, v{V_N}, s[{S_DBG}:{S_DBG+1}] sc0 sc1")
    a("s_mov_b64 exec, -1")
    a.label("A_NOEP")
    for j in range(4):
        a(f"v_add_u32 v{V_T0}, {4*j}, v{V_G}")
        a(f"v_xor_b32 v{V_T3}, v{V_T0}, v{V_C}")
        a(f"v_lshlrev_b32 v{V_T3}, 4, v{V_T3}")
        a(f"v_lshl_add_u32 v{V_KOFF+j}, v{V_T0}, 11, v{V_T3}")
        if j:
            a(f"v_subrev_u32 v{V_KOFF+j}, {1024*j}, v{V_KOFF+j}")
        a(f"v_lshl_add_u32 v{V_LJ+j}, v{V_C}, 8, v{V_T3}")
        a(f"v_and_b32 v{V_T3}, 7, v{V_T0}")
        a(f"v_lshlrev_b32 v{V_T3}, 1, v{V_T3}")
        a(f"v_xor_b32 v{V_T3}, v{V_T3}, v{V_C}")
        a(f"v_lshlrev_b32 v{V_T3}, 4, v{V_T3}")
        a(f"v_lshl_add_u32 v{V_VOFF+j}, v{V_T0}, 11, v{V_T3}")
        if j:
            a(f"v_subrev_u32 v{V_VOFF+j}, {1024*j}, v{V_VOFF+j}")
    a(f"s_lshl_b32 s{S_M0B}, s{S_W}, 14")
    for j in range(4):
        a(f"v_add_u32 v{V_KRD+j}, s{S_M0B}, v{V_LJ+j}")
        a(f"v_add_u32 v{V_LJ+j}, 0x{LDS_Q:x}, v{V_LJ+j}")
    a(f"v_lshrrev_b32 v{V_CB}, 2, v{V_C}")
    a(f"v_lshl_add_u32 v{V_T0}, v{V_G}, 2, v{V_CB}")
    a(f"v_and_b32 v{V_T3}, 7, v{V_T0}")
    a(f"v_xor_b32 v{V_T3}, s{S_W}, v{V_T3}")
    a(f"v_lshlrev_b32 v{V_T3}, 5, v{V_T3}")
    a(f"v_lshl_add_u32 v{V_T3}, v{V_T0}, 8, v{V_T3}")
    a(f"v_and_b32 v{V_T0}, 3, v{V_C}")
    a(f"v_lshl_add_u32 v{V_VTLO}, v{V_T0}, 3, v{V_T3}")
    a(f"v_add_u32 v{V_VTHI}, 0x10000, v{V_VTLO}")
    a(f"v_add_u32 v{V_PRD}, 0x{LDS_P:x}, v{V_T1}")
    a(f"s_lshr_b32 s{S_T0}, s{S_W}, 1")
    a(f"s_lshl_b32 s{S_T0}, s{S_T0}, 10")
    a(f"s_and_b32 s{S_T1}, s{S_W}, 1")
    a(f"s_lshl_b32 s{S_T1}, s{S_T1}, 3")
    a(f"s_add_u32 s{S_T0}, s{S_T0}, s{S_T1}")
    a(f"v_add_u32 v{V_PWR}, s{S_T0}, v{V_PRD}")
    a(f"v_lshlrev_b32 v{V_MADDR}, 5, v{V_C}")
    a(f"v_add_u32 v{V_MADDR}, 0x{LDS_M:x}, v{V_MADDR}")
    for r in range(4):
        a(f"v_lshl_add_u32 v{V_TOK+r}, v{V_G}, 2, {r}")
    a(f"v_lshlrev_b32 v{V_T0}, 19, v{V_G}")
    a(f"v_lshl_add_u32 v{V_OOFF}, v{V_C}, 4, v{V_T0}")
    a(f"v_lshlrev_b32 v{V_T0}, 13, v{V_CB}")
    a(f"v_and_b32 v{V_T3}, 3, v{V_C}")
    a(f"v_lshl_add_u32 v{V_MLOFF}, v{V_T3}, 8, v{V_T0}")
    a(f"v_add_u32 v{V_T0}, -1, v{V_C}")
    a(f"v_and_b32 v{V_T3}, 7, v{V_T0}")
    a(f"v_lshlrev_b32 v{V_T3}, 2, v{V_T3}")
    a(f"v_add_u32 v{V_CTXA}, 0x{LDS_SW+32:x}, v{V_T3}")
    a(f"v_max_i32 v{V_T0}, 0, v{V_T0}")
    a(f"v_min_u32 v{V_T0}, 7, v{V_T0}")
    a(f"v_lshlrev_b32 v{V_T0}, 10, v{V_T0}")
    a(f"v_add_u32 v{V_ROWB}, 0x{LDS_TBL:x}, v{V_T0}")
    a("s_waitcnt lgkmcnt(0)")
    a(f"s_max_i32 s{S_CTXW}, s{S_CTXW}, 0")
    a(f"s_min_i32 s{S_CTXW}, s{S_CTXW}, 4096")
    a(f"s_mov_b32 s{S_RND}, 0")
    a(f"v_mov_b32 v{V_FLG}, 0x{LDS_FLAG:x}")
    a(f"s_lshl_b32 s{S_T0}, s{S_W}, 2")
    a(f"v_add_u32 v{V_T0}, s{S_T0}, v{V_FLG}")
    a(f"ds_write2_b32 v{V_T0}, v{V_ZERO}, v{V_ZERO} offset0:0 offset1:8")
    a.label("A_ROUND")
    a(f"s_add_u32 s{S_RND}, s{S_RND}, 1")
    a(f"v_lshlrev_b32 v{V_T0}, 4, v0")
    a(f"v_add_u32 v{V_T0}, 0x{LDS_TBL:x}, v{V_T0}")
    a(f"s_lshl_b32 s{S_T0}, s{S_W}, 2")
    a(f"s_add_u32 s{S_T0}, s{S_T0}, 0x{LDS_SW:x}")
    a(f"v_mov_b32 v{V_T3}, s{S_T0}")
    a(f"v_mov_b32 v{V_X+1}, s{S_CTXW}")
    a(f"s_lshr_b32 s{S_T1}, s{S_CTXW}, 4")
    a(f"v_mov_b32 v{V_T2}, 0x{LDS_SW:x}")
    stamp(a, 2)
    a("s_waitcnt vmcnt(0)")
    stamp(a, 3)
    for e in range(4):
        a(f"v_cmp_ne_u32 s[{S_MSK+2*e}:{S_MSK+2*e+1}], v{V_ROW+e}, v{V_ROW0+e}")
    a(f"ds_write_b128 v{V_T0}, v[{V_ROW}:{V_ROW+3}]")
    a(f"s_or_b64 s[{S_MSK}:{S_MSK+1}], s[{S_MSK}:{S_MSK+1}], s[{S_MSK+2}:{S_MSK+3}]")
    a(f"s_or_b64 s[{S_MSK+4}:{S_MSK+5}], s[{S_MSK+4}:{S_MSK+5}], s[{S_MSK+6}:{S_MSK+7}]")
    a(f"s_or_b64 s[{S_MSK}:{S_MSK+1}], s[{S_MSK}:{S_MSK+1}], s[{S_MSK+4}:{S_MSK+5}]")
    a(f"s_ff1_i32_b64 s{S_T0}, s[{S_MSK}:{S_MSK+1}]")
    a(f"s_lshl_b32 s{S_T0}, s{S_T0}, 2")
    a(f"s_min_u32 s{S_T0}, s{S_T0}, s{S_T1}")
    a(f"v_mov_b32 v{V_X}, s{S_T0}")
    a(f"ds_write2_b32 v{V_T3}, v{V_X}, v{V_X+1} offset0:0 offset1:8")
    a("s_waitcnt lgkmcnt(0)")
    a("s_barrier")
    X = V_X
    a(f"ds_read_b128 v[{X}:{X+3}], v{V_T2}")
    a(f"ds_read_b128 v[{X+4}:{X+7}], v{V_T2} offset:16")
    a(f"ds_read_b32 v{vctx}, v{V_CTXA}")
    a("s_waitcnt lgkmcnt(0)")
    a(f"v_min3_u32 v{X}, v{X}, v{X+1}, v{X+2}")
    a(f"v_min3_u32 v{X+3}, v{X+3}, v{X+4}, v{X+5}")
    a(f"v_add_u32 v{vn}, 15, v{vctx}")
    a(f"v_min3_u32 v{X}, v{X}, v{X+6}, v{X+7}")
    a(f"v_lshrrev_b32 v{vn}, 4, v{vn}")
    a(f"v_min_u32 v{vS}, v{X}, v{X+3}")
    a(f"v_sub_u32 v{vn}, v{vn}, v{vS}")
    a(f"v_cndmask_b32 v{vn}, v{vn}, v{vS}, s[{S_L0X}:{S_L0X+1}]")
    a(f"v_cndmask_b32 v{vn}, 0, v{vn}, s[{S_LE8X}:{S_LE8X+1}]")
    a(f"v_mov_b32 v{vcum}, v{vn}")
    a(f"v_cndmask_b32 v{X+8}, v{vS}, 0, s[{S_L0X}:{S_L0X+1}]")
    a(f"v_readfirstlane_b32 s{S_S}, v{vS}")
    dpp = "row_mask:0xf bank_mask:0xf bound_ctrl:0"
    a(f"v_add_u32_dpp v{vcum}, v{vcum}, v{vcum} row_shr:1 {dpp}")
    a(f"v_lshlrev_b32 v{X+9}, 3, v{V_G}")
    a(f"v_add_u32 v{X+9}, s{S_W}, v{X+9}")
    a(f"v_add_u32_dpp v{vcum}, v{vcum}, v{vcum} row_shr:2 {dpp}")
    a.nop(2)
    a(f"v_add_u32_dpp v{vcum}, v{vcum}, v{vcum} row_shr:4 {dpp}")
    a.nop(2)
    a(f"v_add_u32_dpp v{vcum}, v{vcum}, v{vcum} row_shr:8 {dpp}")
    a.nop(1)
    a(f"v_readlane_b32 s{S_N}, v{vcum}, 8")
    a(f"v_sub_u32 v{vex}, v{vcum}, v{vn}")
    a(f"v_sub_u32 v{X+8}, v{vex}, v{X+8}")
    a(f"s_add_u32 s{S_T}, s{S_N}, s{S_NIT}")
    a(f"s_sub_u32 s{S_T}, s{S_T}, 1")
    a(f"s_mul_i32 s{S_T}, s{S_T}, s{S_TM}")
    a(f"s_lshr_b32 s{S_T}, s{S_T}, 16")
    a(f"s_max_u32 s{S_T}, s{S_T}, {TMIN}")
    a(f"s_min_u32 s{S_T}, s{S_T}, 32")
    a(f"s_mul_i32 s{S_F0}, s{S_IT}, s{S_T}")
    a(f"s_add_u32 s{S_HI}, s{S_F0}, s{S_T}")
    a(f"s_min_u32 s{S_HI}, s{S_HI}, s{S_N}")
    a(f"s_cmp_ge_u32 s{S_F0}, s{S_N}")
    a("s_cbranch_scc1 A_FIN0")
    a(f"v_add_u32 v{X+9}, s{S_F0}, v{X+9}")
    a(f"v_min_u32 v{X+10}, s{S_HI}, v{vcum}")
    a(f"v_cmp_gt_u32 vcc, v{X+10}, v{X+9}")
    a(f"v_cmp_le_u32 s[{S_MM}:{S_MM+1}], v{vex}, v{X+9}")
    a(f"v_sub_u32 v{vj}, v{X+9}, v{X+8}")
    a(f"v_min_u32 v{vj}, 255, v{vj}")
    a(f"v_lshl_add_u32 v{X+10}, v{vj}, 2, v{V_ROWB}")
    a(f"ds_read_b32 v{X+11}, v{X+10}")
    a(f"s_and_b64 s[{S_MM}:{S_MM+1}], s[{S_MM}:{S_MM+1}], vcc")
    a(f"v_mov_b32 v{X+12}, 0x{OOB:x}")
    for i in range(4):
        src = S_MM + (i >> 1)
        if i & 1:
            a(f"s_lshr_b32 s{S_LANE+i}, s{src}, 16")
        else:
            a(f"s_and_b32 s{S_LANE+i}, s{src}, 0xffff")
        a(f"s_or_b32 s{S_LANE+i}, s{S_LANE+i}, 0x8000")
        a(f"s_ff1_i32_b32 s{S_LANE+i}, s{S_LANE+i}")
        if i:
            a(f"s_add_u32 s{S_LANE+i}, s{S_LANE+i}, {16*i}")
    a(f"s_mov_b32 m0, s{S_M0B}")
    a("s_waitcnt lgkmcnt(0)")
    a(f"v_lshl_add_u32 v{X+11}, v{X+11}, 15, s{S_KVH256}")
    a(f"v_cndmask_b32 v{X+11}, v{X+12}, v{X+11}, s[{S_MM}:{S_MM+1}]")
    a.nop(1)
    for i in range(4):
        a(f"v_readlane_b32 s{S_SOFF+i}, v{X+11}, s{S_LANE+i}")
    a.nop(3)
    stamp(a, 4)
    for i in range(4):
        if i:
            a(f"s_add_u32 m0, s{S_M0B}, {i*4096}")
        a.nop(1)
        for j in range(4):
            a(f"buffer_load_dwordx4 v{V_KOFF+j}, s[{SRD_K}:{SRD_K+3}], s{S_SOFF+i} offen offset:{1024*j} {POL} lds")
    if PRIO:
        a("s_setprio 0")
    a(f"v_lshlrev_b32 v{X}, 4, v{vj}")
    a(f"v_sub_u32 v{X}, v{vctx}, v{X}")
    a(f"v_mov_b32 v{X+1}, 16")
    a(f"v_cndmask_b32 v{X}, v{X}, v{X+1}, s[{S_L0X}:{S_L0X+1}]")
    a(f"v_cndmask_b32 v{X}, 0, v{X}, s[{S_MM}:{S_MM+1}]")
    for i in range(4):
        a(f"s_and_b32 s{S_OWN+i}, s{S_LANE+i}, 15")
        a(f"s_sub_u32 s{S_OWN+i}, s{S_OWN+i}, 1")
    for i in range(4):
        a(f"v_readlane_b32 s{S_REM+i}, v{X}, s{S_LANE+i}")
    plan_extra(a, "P1")
    a(f"s_cmp_lg_u32 s{S_NG2}, 0")
    a("s_cbranch_scc1 A_SHARED")
    body(a, 1)
    a("s_branch A_NEXT")
    a.label("A_SHARED")
    body(a, 2)
    a.label("A_NEXT")
    stamp(a, 13)
    a(f"s_add_u32 s{S_IT}, s{S_IT}, s{S_NIT}")
    a(f"s_mul_i32 s{S_T0}, s{S_IT}, s{S_T}")
    a(f"s_cmp_ge_u32 s{S_T0}, s{S_N}")
    a("s_cbranch_scc1 A_FIN")
    a("s_waitcnt lgkmcnt(0)")
    a("s_barrier")
    if PRIO:
        a("s_setprio 3")
    a(f"s_mov_b32 m0, s{S_QM0}")
    a.nop(1)
    a(f"buffer_load_dwordx4 v{V_QOFF}, s[{SRD_Q}:{SRD_Q+3}], s{S_QSOFF} offen lds")
    a("s_branch A_ROUND")
    a.label("A_FIN0")
    plan_extra(a, "P2")
    a(f"s_load_dword s{S_NON}, s[{S_DBG}:{S_DBG+1}], 0")
    a("s_waitcnt vmcnt(0) lgkmcnt(0)")
    a(f"v_mov_b32 v{V_N}, s{S_NON}")
    a.label("A_FIN")
    if NOCONS:
        a("s_branch A_DONE")
    a(f"s_cmp_ge_u32 s{S_IT0}, 16")
    a("s_cbranch_scc1 A_DONE")
    consumer(a)
    a.label("A_DONE")
    stamp(a, 14)
    stamp_out(a)
    a.label("A_END")
    a("s_endpgm")

def get_nonce(a, tag):
    a(f"v_cmp_eq_u32 vcc, 0, v{V_N}")
    a(f"s_cbranch_vccz {tag}_NOK")
    a(f"s_mov_b32 s{S_SPIN}, 0")
    a.label(f"{tag}_NSPIN")
    a(f"global_load_dword v{V_N}, v{V_ZERO}, s[{S_DBG}:{S_DBG+1}] sc1")
    a("s_waitcnt vmcnt(0)")
    a(f"s_add_u32 s{S_SPIN}, s{S_SPIN}, 1")
    a(f"s_cmp_ge_u32 s{S_SPIN}, 0x40000")
    a(f"s_cbranch_scc1 {tag}_NOK")
    a(f"v_cmp_eq_u32 vcc, 0, v{V_N}")
    a(f"s_cbranch_vccnz {tag}_NSPIN")
    a.label(f"{tag}_NOK")

def consumer(a):
    get_nonce(a, "C")
    D = V_Q
    ML0, ML1 = V_B, V_B + 4
    T0, T1 = V_X + 2, V_X + 3
    M0, L0, M1, L1 = V_X + 4, V_X + 5, V_X + 6, V_X + 7
    X0, X1, A0, A1 = V_X + 8, V_X + 9, V_X + 10, V_X + 11
    SB, SM, ST = S_T0, S_T1, S_T3
    SO = S_SOFF
    W0 = S_REM
    W1 = S_OWN
    srd = f"s[{SRD_WS}:{SRD_WS+3}]"
    a(f"s_lshr_b32 s{S_CB}, s{S_IT0}, 1")
    a(f"s_lshl_b32 s{S_CB}, s{S_CB}, 3")
    a(f"s_add_u32 s{S_CB}, s{S_CB}, s{S_KVH}")
    a(f"s_and_b32 s{S_RHO}, s{S_IT0}, 1")
    a(f"s_and_b32 s{S_GRP}, s{S_W}, 1")
    a(f"s_lshr_b32 s{S_LANE}, s{S_W}, 1")
    a(f"s_lshl_b32 s{SM}, s{S_CB}, 2")
    a(f"s_lshl_b32 s{ST}, s{S_RHO}, 1")
    a(f"s_add_u32 s{SM}, s{SM}, s{ST}")
    a(f"s_lshl_b32 s{SM}, s{SM}, 8")
    a(f"s_add_u32 s{SM}, s{SM}, 0x{WS_ML:x}")
    a(f"v_lshlrev_b32 v{V_T2}, 4, v{V_C}")
    a(f"buffer_load_dwordx4 v[{ML0}:{ML0+3}], v{V_T2}, {srd}, s{SM} offen sc1")
    a(f"buffer_load_dwordx4 v[{ML1}:{ML1+3}], v{V_T2}, {srd}, s{SM} offen offset:256 sc1")
    a(f"s_lshl_b32 s{SB}, s{S_CB}, 1")
    a(f"s_add_u32 s{SB}, s{SB}, s{S_RHO}")
    a(f"s_lshl_b32 s{SB}, s{SB}, 15")
    a(f"s_lshl_b32 s{ST}, s{S_GRP}, 10")
    a(f"s_add_u32 s{SB}, s{SB}, s{ST}")
    a(f"s_lshl_b32 s{ST}, s{S_LANE}, 11")
    a(f"s_add_u32 s{SB}, s{SB}, s{ST}")
    a(f"v_lshlrev_b32 v{V_T1}, 4, v{V_LANE}")
    a(f"s_mov_b32 s{S_PEND}, 0")
    for k in range(4):
        a(f"s_add_u32 s{S_LANE+1}, s{S_LANE}, {4*k}")
        a(f"s_add_u32 s{SO+k}, s{SB}, {8192*k}")
        a(f"s_cmp_lt_u32 s{S_LANE+1}, s{S_CNT}")
        a(f"s_cselect_b32 s{SO+k}, s{SO+k}, 0x{OOB:x}")
        a(f"s_cselect_b32 s{ST}, {1<<k}, 0")
        a(f"buffer_load_dwordx4 v[{D+4*k}:{D+4*k+3}], v{V_T1}, {srd}, s{SO+k} offen sc1")
        a(f"s_or_b32 s{S_PEND}, s{S_PEND}, s{ST}")
    a(f"v_cmp_gt_u32 s[{S_MSK}:{S_MSK+1}], s{S_CNT}, v{V_C}")
    a(f"s_mov_b32 s{S_SPIN}, 0")
    a("s_waitcnt vmcnt(4)")
    a.label("C_MLCHK")
    a(f"v_bitop3_b32 v{T0}, v{ML0+1}, v{ML0+3}, v{V_N} bitop3:0x7e")
    a(f"v_bitop3_b32 v{T1}, v{ML1+1}, v{ML1+3}, v{V_N} bitop3:0x7e")
    a(f"v_or_b32 v{T0}, v{T0}, v{T1}")
    a(f"v_cndmask_b32 v{T0}, 0, v{T0}, s[{S_MSK}:{S_MSK+1}]")
    a(f"v_cmp_ne_u32 vcc, 0, v{T0}")
    a("s_cbranch_vccz C_MLOK")
    a(f"s_add_u32 s{S_SPIN}, s{S_SPIN}, 1")
    a(f"s_cmp_ge_u32 s{S_SPIN}, 0x40000")
    a("s_cbranch_scc1 C_RED")
    a(f"s_sleep {SLEEP}")
    a(f"buffer_load_dwordx4 v[{ML0}:{ML0+3}], v{V_T2}, {srd}, s{SM} offen sc1")
    a(f"buffer_load_dwordx4 v[{ML1}:{ML1+3}], v{V_T2}, {srd}, s{SM} offen offset:256 sc1")
    a("s_waitcnt vmcnt(0)")
    a("s_branch C_MLCHK")
    a.label("C_MLOK")
    msk = f"s[{S_MSK}:{S_MSK+1}]"
    a(f"v_cndmask_b32 v{M0}, v{V_NEG}, v{ML0}, {msk}")
    a(f"v_cndmask_b32 v{M1}, v{V_NEG}, v{ML1}, {msk}")
    a(f"v_cndmask_b32 v{L0}, 0, v{ML0+2}, {msk}")
    a(f"v_cndmask_b32 v{L1}, 0, v{ML1+2}, {msk}")
    dpp = "row_mask:0xf bank_mask:0xf"
    a(f"v_mov_b32 v{X0}, v{M0}")
    a(f"v_mov_b32 v{X1}, v{M1}")
    for sh in (8, 4, 2, 1):
        a.nop(1)
        a(f"v_max_f32_dpp v{X0}, v{X0}, v{X0} row_ror:{sh} {dpp}")
        a(f"v_max_f32_dpp v{X1}, v{X1}, v{X1} row_ror:{sh} {dpp}")
    a(f"v_sub_f32 v{M0}, v{M0}, v{X0}")
    a(f"v_sub_f32 v{M1}, v{M1}, v{X1}")
    a(f"v_exp_f32 v{M0}, v{M0}")
    a(f"v_exp_f32 v{M1}, v{M1}")
    a.nop(1)
    a(f"v_mul_f32 v{X0}, v{M0}, v{L0}")
    a(f"v_mul_f32 v{X1}, v{M1}, v{L1}")
    for sh in (8, 4, 2, 1):
        a.nop(1)
        a(f"v_add_f32_dpp v{X0}, v{X0}, v{X0} row_ror:{sh} {dpp}")
        a(f"v_add_f32_dpp v{X1}, v{X1}, v{X1} row_ror:{sh} {dpp}")
    a(f"v_rcp_f32 v{X0}, v{X0}")
    a(f"v_rcp_f32 v{X1}, v{X1}")
    a(f"v_mov_b32 v{A0}, 0")
    a(f"v_mov_b32 v{A1}, 0")
    a(f"v_mul_f32 v{M0}, v{M0}, v{X0}")
    a(f"v_mul_f32 v{M1}, v{M1}, v{X1}")
    a.nop(1)
    for k in range(4):
        a(f"s_add_u32 s{S_LANE+1}, s{S_LANE}, {4*k}")
        a(f"v_readlane_b32 s{W0+k}, v{M0}, s{S_LANE+1}")
        a(f"v_readlane_b32 s{W1+k}, v{M1}, s{S_LANE+1}")
    def check(Dset, tag):
        for k in range(4):
            d = Dset + 4 * k
            a(f"s_bitcmp1_b32 s{S_PEND}, {k}")
            a(f"s_cbranch_scc0 {tag}{k}")
            a(f"v_bitop3_b32 v{T0}, v{d+1}, v{d+3}, v{V_N} bitop3:0x7e")
            a(f"v_bitop3_b32 v{T1}, v{d}, v{d+2}, v{V_N} bitop3:0x7e")
            a(f"v_and_or_b32 v{T0}, v{T1}, s{S_FF}, v{T0}")
            a(f"v_cmp_ne_u32 vcc, 0, v{T0}")
            a(f"s_cbranch_vccnz {tag}{k}")
            a(f"v_fmac_f32 v{A0}, s{W0+k}, v{d}")
            a(f"v_fmac_f32 v{A1}, s{W1+k}, v{d+2}")
            a(f"s_bitset0_b32 s{S_PEND}, {k}")
            a.label(f"{tag}{k}")
    def issue(Dset, tag):
        for k in range(4):
            a(f"s_bitcmp1_b32 s{S_PEND}, {k}")
            a(f"s_cselect_b32 s{ST}, s{SO+k}, 0x{OOB:x}")
            a(f"buffer_load_dwordx4 v[{Dset+4*k}:{Dset+4*k+3}], v{V_T1}, {srd}, s{ST} offen sc1")
    a("s_waitcnt vmcnt(0)")
    check(D, "C_A")
    a(f"s_cmp_eq_u32 s{S_PEND}, 0")
    a("s_cbranch_scc1 C_RED")
    if PIPE:
        issue(D, "i0")
        a.label("C_LOOP")
        a(f"s_sleep {PSLEEP}")
        issue(D + 16, "i1")
        a("s_waitcnt vmcnt(4)")
        check(D, "C_B")
        a(f"s_cmp_eq_u32 s{S_PEND}, 0")
        a("s_cbranch_scc1 C_RED")
        a(f"s_sleep {PSLEEP}")
        issue(D, "i2")
        a("s_waitcnt vmcnt(4)")
        check(D + 16, "C_C")
        a(f"s_add_u32 s{S_SPIN}, s{S_SPIN}, 1")
        a(f"s_cmp_ge_u32 s{S_SPIN}, 0x40000")
        a("s_cbranch_scc1 C_RED")
        a(f"s_cmp_lg_u32 s{S_PEND}, 0")
        a("s_cbranch_scc1 C_LOOP")
    else:
        a.label("C_LOOP")
        a(f"s_sleep {SLEEP}")
        issue(D, "i0")
        a("s_waitcnt vmcnt(0)")
        check(D, "C_B")
        a(f"s_add_u32 s{S_SPIN}, s{S_SPIN}, 1")
        a(f"s_cmp_ge_u32 s{S_SPIN}, 0x40000")
        a("s_cbranch_scc1 C_RED")
        a(f"s_cmp_lg_u32 s{S_PEND}, 0")
        a("s_cbranch_scc1 C_LOOP")
    a.label("C_RED")
    if STAMP:
        a(f"v_writelane_b32 v{V_STAMP}, s{S_SPIN}, 15")
        stamp(a, 12)
    a(f"v_lshlrev_b32 v{V_T0}, 3, v0")
    a(f"ds_write_b64 v{V_T0}, v[{A0}:{A1}]")
    a(f"s_lshl_b32 s{SB}, s{S_CB}, 1")
    a(f"s_add_u32 s{SB}, s{SB}, s{S_RHO}")
    a(f"s_lshl_b32 s{SB}, s{SB}, 9")
    a(f"s_lshl_b32 s{SM}, s{S_GRP}, 7")
    a(f"s_add_u32 s{SB}, s{SB}, s{SM}")
    a(f"v_lshlrev_b32 v{V_T1}, 1, v{V_LANE}")
    a(f"s_mov_b32 s{SRD_Q}, s{S_OUT}")
    a(f"s_and_b32 s{SRD_Q+1}, s{S_OUT+1}, 0xffff")
    a("s_waitcnt lgkmcnt(0)")
    a("s_barrier")
    a(f"s_cmp_ge_u32 s{S_W}, 2")
    a("s_cbranch_scc1 A_DONE")
    R = V_B + 8
    a(f"ds_read_b64 v[{R}:{R+1}], v{V_T0} offset:1024")
    a(f"ds_read_b64 v[{R+2}:{R+3}], v{V_T0} offset:2048")
    a(f"ds_read_b64 v[{R+4}:{R+5}], v{V_T0} offset:3072")
    a("s_waitcnt lgkmcnt(0)")
    a(f"v_add_f32 v{A0}, v{A0}, v{R}")
    a(f"v_add_f32 v{A1}, v{A1}, v{R+1}")
    a(f"v_add_f32 v{R+2}, v{R+2}, v{R+4}")
    a(f"v_add_f32 v{R+3}, v{R+3}, v{R+5}")
    a(f"v_add_f32 v{A0}, v{A0}, v{R+2}")
    a(f"v_add_f32 v{A1}, v{A1}, v{R+3}")
    a(f"v_cvt_pk_bf16_f32 v{A0}, v{A0}, v{A1}")
    a(f"buffer_store_short v{A0}, v{V_T1}, s[{SRD_Q}:{SRD_Q+3}], s{SB} offen")
    a(f"buffer_store_short_d16_hi v{A0}, v{V_T1}, s[{SRD_Q}:{SRD_Q+3}], s{SB} offen offset:256")

def poll_flags(a, tag, off):
    X = V_X
    a.label(tag)
    a(f"ds_read_b128 v[{X}:{X+3}], v{V_FLG} offset:{off}")
    a(f"ds_read_b128 v[{X+4}:{X+7}], v{V_FLG} offset:{off+16}")
    a("s_waitcnt lgkmcnt(0)")
    a(f"v_min3_u32 v{X}, v{X}, v{X+1}, v{X+2}")
    a(f"v_min3_u32 v{X+3}, v{X+3}, v{X+4}, v{X+5}")
    a(f"v_min3_u32 v{X}, v{X}, v{X+6}, v{X+7}")
    a(f"v_min_u32 v{X}, v{X}, v{X+3}")
    a(f"v_cmp_gt_u32 vcc, s{S_RND}, v{X}")
    a(f"s_cbranch_vccnz {tag}")

def set_flag(a, off):
    a(f"s_lshl_b32 s{S_T0}, s{S_W}, 2")
    a(f"v_add_u32 v{V_T3}, s{S_T0}, v{V_FLG}")
    a(f"v_mov_b32 v{V_T2}, s{S_RND}")
    a(f"ds_write_b32 v{V_T3}, v{V_T2} offset:{off}")

def body(a: Asm, NG: int):
    tag = f"B{NG}"
    a.c(f"---- body NG={NG}")
    VS = [V_X + 8, V_X + 9]
    VM = [V_X + 10, V_X + 11]
    EX = [S_EX, S_EX + 2]
    EM = [S_EM, S_EM + 2]
    for g in range(NG):
        if NG == 1:
            a(f"s_lshl_b32 s{S_T0}, s{S_GRP}, 4")
            a(f"s_add_u32 s{S_T0}, s{S_T0}, 0x{LDS_PLAN+4:x}")
        else:
            a(f"s_mov_b32 s{S_T0}, 0x{LDS_PLAN+4+16*g:x}")
        a(f"v_lshl_add_u32 v{VS[g]}, v{V_G}, 2, s{S_T0}")
        a(f"v_lshl_add_u32 v{VM[g]}, v{V_CB}, 2, s{S_T0}")
        a(f"ds_read_b32 v{VS[g]}, v{VS[g]}")
        a(f"ds_read_b32 v{VM[g]}, v{VM[g]}")
    if NG == 1:
        a(f"s_lshl_b32 s{S_T0}, s{S_GRP}, 12")
        for j in range(4):
            a(f"v_add_u32 v{V_X+j}, s{S_T0}, v{V_LJ+j}")
        for j in range(4):
            a(f"ds_read_b128 v[{V_Q+4*j}:{V_Q+4*j+3}], v{V_X+j}")
    else:
        for g in range(2):
            for j in range(4):
                a(f"ds_read_b128 v[{V_Q+16*g+4*j}:{V_Q+16*g+4*j+3}], v{V_LJ+j} offset:{g*4096}")
    a(f"s_cmp_lt_u32 s{S_IT}, s{S_NSH}")
    a(f"s_cselect_b32 s{S_T1}, 0, -1")
    a("s_waitcnt lgkmcnt(0)")
    for g in range(NG):
        for V in (VS[g], VM[g]):
            a(f"v_and_b32 v{V}, s{S_T1}, v{V}")
            a(f"v_sub_u32 v{V}, s{S_IT}, v{V}")
        a(f"v_lshl_add_u32 v{VS[g]}, v{VS[g]}, 11, v{V_OOFF}")
        a(f"v_lshl_add_u32 v{VM[g]}, v{VM[g]}, 4, v{V_MLOFF}")
        if NG == 1:
            a(f"s_lshl_b32 s{S_T0}, s{S_GRP}, 2")
            a(f"s_lshr_b32 s{S_T0}, s{S_PM}, s{S_T0}")
        else:
            a(f"s_lshr_b32 s{S_T0}, s{S_PM}, {4*g}")
        a(f"v_lshrrev_b32 v{V_T3}, v{V_G}, s{S_T0}")
        a(f"v_and_b32 v{V_T3}, 1, v{V_T3}")
        a(f"v_cmp_ne_u32 s[{EX[g]}:{EX[g]+1}], 0, v{V_T3}")
        a(f"v_lshrrev_b32 v{V_T3}, v{V_CB}, s{S_T0}")
        a(f"v_and_b32 v{V_T3}, 1, v{V_T3}")
        a(f"v_cmp_ne_u32 s[{EM[g]}:{EM[g]+1}], 0, v{V_T3}")
        a(f"s_and_b32 s{EM[g]}, s{EM[g]}, 0xffff")
        a(f"s_mov_b32 s{EM[g]+1}, 0")
    a(f"s_lshl_b32 s{S_DO[0]}, s{S_KVH}, 16")
    a(f"s_lshl_b32 s{S_T2}, s{S_W}, 8")
    a(f"s_add_u32 s{S_DO[0]}, s{S_DO[0]}, s{S_T2}")
    if NG == 1:
        a(f"s_lshl_b32 s{S_T2}, s{S_GRP}, 21")
        a(f"s_add_u32 s{S_DO[0]}, s{S_DO[0]}, s{S_T2}")
    a(f"s_add_u32 s{S_DO[1]}, s{S_DO[0]}, 32768")
    a(f"s_add_u32 s{S_DO[2]}, s{S_DO[0]}, {4*524288}")
    a(f"s_add_u32 s{S_DO[3]}, s{S_DO[1]}, {4*524288}")
    stamp(a, 5)
    for i in range(4):
        a(f"s_waitcnt vmcnt({12 - 4*i})")
        if i == 0: stamp(a, 6)
        if i == 3: stamp(a, 7)
        for j in range(4):
            a(f"ds_read_b128 v[{V_KF+4*j}:{V_KF+4*j+3}], v{V_KRD+j} offset:{i*4096}")
        a("s_waitcnt lgkmcnt(0)")
        for g in range(NG):
            s = V_S + 16 * g + 4 * i
            for j in range(4):
                c = "0" if j == 0 else f"v[{s}:{s+3}]"
                a(f"v_mfma_f32_16x16x32_bf16 v[{s}:{s+3}], v[{V_KF+4*j}:{V_KF+4*j+3}], v[{V_Q+16*g+4*j}:{V_Q+16*g+4*j+3}], {c}")
    a(f"s_load_dword s{S_NON}, s[{S_DBG}:{S_DBG+1}], 0")
    a.nop(7)
    for i in range(4):
        a(f"s_cmp_lt_i32 s{S_REM+i}, 16")
        a(f"s_cbranch_scc1 {tag}_DM{i}")
        a(f"s_cmp_eq_u32 s{S_MIXED}, 0")
        a(f"s_cbranch_scc1 {tag}_NM{i}")
        a(f"s_cmp_eq_u32 s{S_OWN+i}, -1")
        a(f"s_cbranch_scc1 {tag}_NM{i}")
        a.label(f"{tag}_DM{i}")
        for r in range(4):
            a(f"v_cmp_gt_i32 s[{S_MSK+2*r}:{S_MSK+2*r+1}], s{S_REM+i}, v{V_TOK+r}")
        for g in range(NG):
            if NG == 1:
                a(f"s_lshl_b32 s{S_T0}, s{S_GRP}, 2")
                a(f"s_sub_u32 s{S_T0}, s{S_OWN+i}, s{S_T0}")
            else:
                a(f"s_sub_u32 s{S_T0}, s{S_OWN+i}, {4*g}")
            a(f"v_cmp_eq_u32 s[{S_OM+2*g}:{S_OM+2*g+1}], s{S_T0}, v{V_CB}")
            a(f"s_cmp_eq_u32 s{S_OWN+i}, -1")
            a(f"s_cselect_b64 s[{S_OM+2*g}:{S_OM+2*g+1}], -1, s[{S_OM+2*g}:{S_OM+2*g+1}]")
        for g in range(NG):
            for r in range(4):
                s = V_S + 16 * g + 4 * i + r
                a(f"s_and_b64 vcc, s[{S_MSK+2*r}:{S_MSK+2*r+1}], s[{S_OM+2*g}:{S_OM+2*g+1}]")
                a(f"v_cndmask_b32 v{s}, v{V_NEG}, v{s}, vcc")
        a.label(f"{tag}_NM{i}")
    for g in range(NG):
        s = V_S + 16 * g
        x = V_X + 1 + 2 * g
        a(f"v_max3_f32 v{x}, v{s}, v{s+1}, v{s+2}")
        for k in range(3, 15, 2):
            a(f"v_max3_f32 v{x}, v{x}, v{s+k}, v{s+k+1}")
        a(f"v_max_f32 v{x}, v{x}, v{s+15}")
    def xreduce(op):
        for swap in ("v_permlane16_swap_b32", "v_permlane32_swap_b32"):
            for g in range(NG):
                x = V_X + 1 + 2 * g
                a(f"v_mov_b32 v{x+1}, v{x}")
            a.nop(2)
            for g in range(NG):
                x = V_X + 1 + 2 * g
                a(f"{swap} v{x}, v{x+1}")
            a.nop(1)
            for g in range(NG):
                x = V_X + 1 + 2 * g
                a(f"{op} v{x}, v{x}, v{x+1}")
    xreduce("v_max_f32")
    a(f"s_lshl_b32 s{S_T0}, s{S_W}, 2")
    a(f"v_add_u32 v{V_T0}, s{S_T0}, v{V_MADDR}")
    for g in range(NG):
        a(f"ds_write_b32 v{V_T0}, v{V_X+1+2*g} offset:{g*512}")
    set_flag(a, 0)
    def vissue(lo=0, hi=4):
        for ii in range(lo, hi):
            a(f"s_add_u32 m0, s{S_M0B}, {ii*4096}")
            a.nop(1)
            for j in range(4):
                a(f"buffer_load_dwordx4 v{V_VOFF+j}, s[{SRD_V}:{SRD_V+3}], s{S_SOFF+ii} offen offset:{1024*j} {POL} lds")
    vissue(0, VSPLIT)
    a(f"s_cmp_ge_u32 s{S_W}, 4")
    a(f"s_cbranch_scc1 {tag}_V1")
    vissue(VSPLIT, 4)
    a.label(f"{tag}_V1")
    poll_flags(a, f"{tag}_PM", 0)
    stamp(a, 8)
    for g in range(NG):
        k = V_KF + 8 * g
        a(f"ds_read_b128 v[{k}:{k+3}], v{V_MADDR} offset:{g*512}")
        a(f"ds_read_b128 v[{k+4}:{k+7}], v{V_MADDR} offset:{g*512+16}")
    a("s_waitcnt lgkmcnt(0)")
    for g in range(NG):
        k = V_KF + 8 * g
        a(f"v_max3_f32 v{k}, v{k}, v{k+1}, v{k+2}")
        a(f"v_max3_f32 v{k+3}, v{k+3}, v{k+4}, v{k+5}")
        a(f"v_max3_f32 v{k}, v{k}, v{k+6}, v{k+7}")
        a(f"v_max_f32 v{k}, v{k}, v{k+3}")
        a(f"v_mul_f32 v{V_MC+g}, s{S_C}, v{k}")
    for g in range(NG):
        for k in range(16):
            s = V_S + 16 * g + k
            a(f"v_fma_f32 v{s}, v{s}, s{S_C}, -v{V_MC+g}")
        for k in range(16):
            s = V_S + 16 * g + k
            a(f"v_exp_f32 v{s}, v{s}")
    a.nop(1)
    for g in range(NG):
        for i in range(4):
            s = V_S + 16 * g + 4 * i
            p = V_P + 8 * g + 2 * i
            a(f"v_cvt_pk_bf16_f32 v{p}, v{s}, v{s+1}")
            a(f"v_cvt_pk_bf16_f32 v{p+1}, v{s+2}, v{s+3}")
    def prow_off(i, g):
        if NG == 1:
            return i * 4096
        return (i % 3) * 8192 + g * 4096
    nrows0 = 4 if NG == 1 else 3
    for i in range(nrows0):
        for g in range(NG):
            p = V_P + 8 * g + 2 * i
            a(f"ds_write_b64 v{V_PWR}, v[{p}:{p+1}] offset:{prow_off(i, g)}")
    for g in range(NG):
        s = V_S + 16 * g
        x = V_X + 1 + 2 * g
        for k in range(0, 16, 2):
            a(f"v_add_f32 v{s+k}, v{s+k}, v{s+k+1}")
        for k in range(0, 16, 4):
            a(f"v_add_f32 v{s+k}, v{s+k}, v{s+k+2}")
        a(f"v_add_f32 v{s}, v{s}, v{s+4}")
        a(f"v_add_f32 v{s+8}, v{s+8}, v{s+12}")
        a(f"v_add_f32 v{x}, v{s}, v{s+8}")
    xreduce("v_add_f32")
    a(f"v_add_u32 v{V_T0}, 1024, v{V_T0}")
    for g in range(NG):
        a(f"ds_write_b32 v{V_T0}, v{V_X+1+2*g} offset:{g*512}")
    set_flag(a, 32)
    a(f"s_cmp_lt_u32 s{S_W}, 4")
    a(f"s_cbranch_scc1 {tag}_V2")
    vissue(VSPLIT, 4)
    a.label(f"{tag}_V2")
    poll_flags(a, f"{tag}_PP", 32)
    def preg(i, g, u):
        return PREG[(i * 4 + u) * NG + g]
    def pread(i):
        for u in range(4):
            for g in range(NG):
                A = preg(i, g, u)
                a(f"ds_read_b128 v[{A}:{A+3}], v{V_PRD} offset:{prow_off(i, g) + u*1024}")
    for i in range(nrows0):
        pread(i)
        if NG == 2:
            a("s_waitcnt lgkmcnt(0)")
        elif i == 2:
            a("s_waitcnt lgkmcnt(4)")
    def mlpub():
        a(f"s_cmp_lg_u32 s{S_W}, {MLWAVE}")
        a(f"s_cbranch_scc1 {tag}_NOML")
        a(f"s_lshl_b32 s{S_T1}, s{S_KVH}, 10")
        a(f"s_add_u32 s{S_T1}, s{S_T1}, 0x{WS_ML:x}")
        if NG == 1:
            a(f"s_lshl_b32 s{S_T2}, s{S_GRP}, 15")
            a(f"s_add_u32 s{S_T1}, s{S_T1}, s{S_T2}")
        for g in range(NG):
            X = V_X
            a(f"ds_read_b128 v[{X}:{X+3}], v{V_MADDR} offset:{1024+g*512}")
            a(f"ds_read_b128 v[{X+4}:{X+7}], v{V_MADDR} offset:{1024+g*512+16}")
            a("s_waitcnt lgkmcnt(0)")
            for t in range(4):
                a(f"v_add_f32 v{X+t}, v{X+t}, v{X+t+4}")
            a(f"v_add_f32 v{X}, v{X}, v{X+1}")
            a(f"v_add_f32 v{X+2}, v{X+2}, v{X+3}")
            a(f"v_add_f32 v{X+6}, v{X}, v{X+2}")
            a(f"v_mov_b32 v{X+4}, v{V_MC+g}")
            a(f"v_mov_b32 v{X+5}, v{V_N}")
            a(f"v_mov_b32 v{X+7}, v{V_N}")
            if g == 1:
                a(f"s_add_u32 s{S_T1}, s{S_T1}, 32768")
            a(f"s_mov_b64 exec, s[{EM[g]}:{EM[g]+1}]")
            a(f"buffer_store_dwordx4 v[{X+4}:{X+7}], v{VM[g]}, s[{SRD_WS}:{SRD_WS+3}], s{S_T1} offen sc1")
            a("s_mov_b64 exec, -1")
            if g == 0 and NG == 2:
                a.nop(2)
        a.label(f"{tag}_NOML")
    a(f"v_mov_b32 v{V_N}, s{S_NON}")
    get_nonce(a, tag)
    for g in range(NG):
        for rho in range(2):
            G = V_G0 + 8 * g + 4 * rho
            a(f"v_mov_b32 v{G+1}, v{V_N}")
            a(f"v_mov_b32 v{G+3}, v{V_N}")
    a("s_waitcnt lgkmcnt(0)")
    mlpub()
    for i in range(4):
        a(f"s_waitcnt vmcnt({12-4*i}) lgkmcnt(0)")
        a("s_barrier")
        stamp(a, 9 + i)
        for u in range(4):
            B = V_B + 4 * u
            for h in range(2):
                wv = 2 * u + h
                base = V_VTLO if wv < 4 else V_VTHI
                off = (wv & 3) * 16384 + i * 4096
                a(f"ds_read_b64_tr_b16 v[{B+2*h}:{B+2*h+1}], v{base} offset:{off}")
        extra = 0
        if NG == 2 and i == 0:
            for g in range(NG):
                p = V_P + 8 * g + 6
                a(f"ds_write_b64 v{V_PWR}, v[{p}:{p+1}] offset:{prow_off(3, g)}")
            extra = 2
        for u in range(4):
            n = 2 * (3 - u) + extra
            assert n <= 15
            a(f"s_waitcnt lgkmcnt({n})")
            B = V_B + 4 * u
            for g in range(NG):
                A = preg(i, g, u)
                acc = V_ACC + 4 * g
                c = "0" if (i == 0 and u == 0) else f"v[{acc}:{acc+3}]"
                a(f"v_mfma_f32_16x16x32_bf16 v[{acc}:{acc+3}], v[{A}:{A+3}], v[{B}:{B+3}], {c}")
            if NG == 2 and i == 1 and u == 0:
                pread(3)
                extra = 8
    a.nop(8)
    for g in range(NG):
        for rho in range(2):
            G = V_G0 + 8 * g + 4 * rho
            a(f"v_bfi_b32 v{G}, s{S_FF}, v{V_N}, v{V_ACC+4*g+2*rho}")
            a(f"v_bfi_b32 v{G+2}, s{S_FF}, v{V_N}, v{V_ACC+4*g+2*rho+1}")
    for g in range(NG):
        a(f"s_mov_b64 exec, s[{EX[g]}:{EX[g]+1}]")
        for rho in range(2):
            G = V_G0 + 8 * g + 4 * rho
            a(f"buffer_store_dwordx4 v[{G}:{G+3}], v{VS[g]}, s[{SRD_WS}:{SRD_WS+3}], s{S_DO[2*g+rho]} offen sc1")
    a("s_mov_b64 exec, -1")

HEADER = """; paged decode attention (radix shared prefix aware), single launch, in-kernel split-KV combine
; @launch grid=(256,1,1) block=(512,1,1) lds={lds}
.amdgcn_target "amdgcn-amd-amdhsa--gfx950"
.text
"""

def kd(name, vgpr, sgpr):
    acc = (vgpr + 3) // 4 * 4
    return f""".amdhsa_kernel {name}
  .amdhsa_next_free_vgpr {vgpr}
  .amdhsa_next_free_sgpr {sgpr}
  .amdhsa_accum_offset {acc}
  .amdhsa_group_segment_fixed_size 0
  .amdhsa_kernarg_size 64
  .amdhsa_user_sgpr_count 2
  .amdhsa_user_sgpr_kernarg_segment_ptr 1
  .amdhsa_system_sgpr_workgroup_id_x 1
.end_amdhsa_kernel
"""

def main(out):
    t = HEADER.format(lds=LDS_TOTAL)
    a = Asm()
    kernelA(a)
    t += f".globl {KNAME}\n.p2align 8\n.type {KNAME},@function\n" + a.text()
    t += '.section .rodata,"a"\n.p2align 6\n' + kd(KNAME, V_END, 102)
    open(out, "w").write(t)

if __name__ == "__main__":
    main(sys.argv[1] if len(sys.argv) > 1 else f"cdna_kernels/{NAME}.s")
```

```python
import struct, sys, math, os

NAME = "standalone__paged_block_table_kv_radixattention__decode"
KNAME = NAME + "_kernel"
E = os.environ.get
STAMP = int(E('STAMP', '0'))
POL = E('POL', 'nt')
PRIO = int(E('PRIO', '1'))
SLEEP = int(E('SLEEP', '2'))
NOCONS = int(E('NOCONS', '0'))
MLROW = int(E('MLROW', '0'))
MLWAVE = int(E('MLWAVE', '0'))
CNTS = [int(x) for x in E('CNT', '30,40,29,29,30,40,29,29').split(',')]
assert sum(CNTS) == 256 and min(CNTS) >= 16
VSPLIT1 = int(E('VSPLIT', '1'))
VSPLIT2 = int(E('VSPLIT2', '1'))
COFF = int(E('COFF', '0'))
PIPE = int(E('PIPE', '1'))
PSLEEP = int(E('PSLEEP', '1'))
SPEC = int(E('SPEC', '1'))
TMIN = int(E('TMIN', '20'))
NCONS = int(E('NCONS', '128'))

def _pred():
    ctx = [4096 - ((b + 1) * 2654435761) % 1024 for b in range(8)]
    S = 128
    n = [(c + 15) // 16 - S for c in ctx]
    P = [S]
    for x in n: P.append(P[-1] + x)
    off = [128 + 128 * b - P[b] for b in range(8)]
    steps = [(P[b], off[b] - off[b - 1]) for b in range(1, 8)]
    assert off[0] == 0 and all(0 < d <= 64 for _, d in steps), steps
    return P[-1], S, steps
PRED_N, PRED_S, PRED_STEPS = _pred()

def f32bits(x):
    return struct.unpack("<I", struct.pack("<f", x))[0]

class Asm:
    def __init__(self):
        self.lines = []
    def __call__(self, s):
        self.lines.append("  " + s)
    def label(self, s):
        self.lines.append(s + ":")
    def nop(self, n):
        while n > 0:
            k = min(n, 16)
            self.lines.append("  s_nop %d" % (k - 1))
            n -= k
    def c(self, s):
        self.lines.append("  ; " + s)
    def text(self):
        return "\n".join(self.lines) + "\n"

KV_BYTES = 1152 * 32768
NEG = 0xF1800000
CSCALE = f32bits((128 ** -0.5) * math.log2(math.e))
LDS_P = 131072
LDS_TBL = LDS_P
LDS_SW = LDS_P + 8192
LDS_Q = LDS_P + 12288
LDS_M = LDS_P + 24576
LDS_L = LDS_M + 1024
LDS_PLAN = LDS_L + 1024
LDS_FLAG = LDS_PLAN + 64
LDS_TOTAL = LDS_FLAG + 64
WS_ML = 4 << 20
WS_EPOCH = WS_ML + 65536
WS_SIZE = 8 << 20
WS_STAMP = 6 << 20
NS = 16
OOB = 0x80000000

S_W = 3
S_L0X = 4
S_LE8X = 6
S_Q, S_K, S_V, S_BT, S_CTX, S_OUT, S_DBG, S_WS = 8, 10, 12, 14, 16, 18, 20, 22
SRD_K, SRD_V, SRD_Q, SRD_WS = 24, 28, 32, 36
S_CTXW, S_S, S_IT, S_KVH, S_N, S_T, S_F0, S_HI, S_FB, S_NSH, S_PM, S_MIXED, S_GRP, S_NG2 = range(40, 54)
S_LANE = 54
S_SOFF = 60
S_REM = 64
S_T0, S_T1, S_T2, S_T3 = 68, 69, 70, 71
S_MSK = 72
S_C, S_M0B, S_KVH256, S_QM0, S_QSOFF = 80, 81, 82, 83, 84
S_CNT, S_FF, S_SPIN, S_PEND = 86, 87, 88, 89
S_OWN = 90
S_MM = 94
S_OM = 96
S_CB = 53
S_RHO = 59
S_RND = 85
S_NIT = 48
S_TM = 100
S_IT0 = 101
S_NON = 58
S_EX = 8
S_EM = 12
S_DO = [16, 17, 22, 23]

V_LANE, V_T0, V_T1, V_T2, V_T3 = 1, 2, 3, 4, 5
V_G, V_C = 6, 7
V_ROW = 8
V_ROW0 = 12
V_KOFF = 16
V_VOFF = 20
V_KRD = 24
V_LJ = 28
V_VTLO, V_VTHI = 32, 33
V_PRD, V_PWR, V_MADDR, V_ROWB = 34, 35, 36, 37
V_TOK = 38
V_QOFF, V_OOFF, V_MLOFF, V_CTXA, V_NEG, V_CB = 42, 43, 44, 45, 46, 47
V_MC = 48
V_L = 50
V_X = 52
V_Q = 68
V_KF = 100
V_S = 116
V_P = 148
V_A = 164
V_B = 164
V_ACC = 188
V_STAMP = 196
V_N = 197
V_ZERO = 198
V_G0 = 200
V_D = 216
V_VS = 52 + 8
V_FLG = 199
V_END = 256
PREG = [68 + 4*k for k in range(20)] + [180, 184, 216, 220] + [224 + 4*k for k in range(8)]

def stamp(a, idx):
    if not STAMP: return
    a("s_memrealtime s[98:99]")
    a("s_waitcnt lgkmcnt(0)")
    a(f"v_writelane_b32 v{V_STAMP}, s98, {idx}")
def stamp_out(a):
    if not STAMP: return
    a(f"v_lshlrev_b32 v{V_T0}, 2, v{V_LANE}")
    a("s_mov_b64 exec, 0xffff")
    a(f"s_lshl_b32 s{S_T0}, s2, 3")
    a(f"s_add_u32 s{S_T0}, s{S_T0}, s{S_W}")
    a(f"s_lshl_b32 s{S_T0}, s{S_T0}, 6")
    a(f"s_add_u32 s{S_T0}, s{S_T0}, 0x{WS_STAMP:x}")
    a(f"buffer_store_dword v{V_STAMP}, v{V_T0}, s[{SRD_WS}:{SRD_WS+3}], s{S_T0} offen")
    a("s_mov_b64 exec, -1")

vctx, vS, vn, vcum, vex, vj = V_D, V_D+1, V_D+2, V_D+3, V_D+4, V_D+5

def plan_extra(a, tag):
    X = V_X
    a(f"v_cvt_f32_u32 v{X}, s{S_T}")
    a(f"v_cmp_gt_u32 s[{S_MSK}:{S_MSK+1}], s{S_HI}, v{vex}")
    a(f"v_rcp_f32 v{X}, v{X}")
    a(f"v_cmp_lt_u32 s[{S_MSK+2}:{S_MSK+3}], s{S_F0}, v{vcum}")
    a(f"v_cmp_lt_u32 s[{S_MSK+4}:{S_MSK+5}], 0, v{vn}")
    a(f"v_cvt_f32_u32 v{X+1}, v{vex}")
    a(f"v_add_u32 v{X+2}, -1, v{vcum}")
    a(f"v_cvt_f32_u32 v{X+2}, v{X+2}")
    a(f"s_and_b32 s{S_T0}, s{S_MSK}, s{S_MSK+2}")
    a(f"s_and_b32 s{S_T0}, s{S_T0}, s{S_MSK+4}")
    a(f"s_and_b32 s{S_T0}, s{S_T0}, 0x1ff")
    a(f"v_mul_f32 v{X+1}, v{X+1}, v{X}")
    a(f"v_mul_f32 v{X+2}, v{X+2}, v{X}")
    a(f"v_add_f32 v{X+1}, 0x3ba3d70a, v{X+1}")
    a(f"v_add_f32 v{X+2}, 0x3ba3d70a, v{X+2}")
    a(f"v_cvt_u32_f32 v{X+1}, v{X+1}")
    a(f"v_cvt_u32_f32 v{X+2}, v{X+2}")
    a(f"s_bcnt1_i32_b32 s{S_T1}, s{S_T0}")
    a(f"s_cmp_gt_u32 s{S_T1}, 1")
    a(f"s_cselect_b32 s{S_MIXED}, 1, 0")
    a(f"s_lshr_b32 s{S_T1}, s{S_T0}, 1")
    a(f"v_readlane_b32 s{S_NSH}, v{X+2}, 0")
    a(f"s_and_b32 s{S_T2}, s{S_T1}, 0xf")
    a(f"s_cmp_eq_u32 s{S_T2}, 0")
    a(f"s_cselect_b32 s{S_GRP}, 1, 0")
    a(f"s_lshr_b32 s{S_T3}, s{S_T1}, 4")
    a(f"s_min_u32 s{S_T2}, s{S_T2}, 1")
    a(f"s_min_u32 s{S_T3}, s{S_T3}, 1")
    a(f"s_and_b32 s{S_T2}, s{S_T2}, s{S_T3}")
    a(f"s_and_b32 s{S_T3}, s{S_T0}, 1")
    a(f"s_or_b32 s{S_NG2}, s{S_T2}, s{S_T3}")
    a(f"s_cmp_lg_u32 s{S_T3}, 0")
    a(f"s_cselect_b32 s{S_PM}, 0xff, s{S_T1}")
    a(f"s_add_u32 s{S_NSH}, s{S_NSH}, 1")
    a(f"s_cmp_eq_u32 s{S_S}, 0")
    a(f"s_cselect_b32 s{S_NSH}, 0, s{S_NSH}")
    a(f"v_max_u32 v{X+1}, s{S_NSH}, v{X+1}")
    a(f"v_add_u32 v{X+2}, 1, v{X+2}")
    a(f"v_sub_u32 v{X+2}, v{X+2}, v{X+1}")
    a(f"v_max_i32 v{X+2}, 0, v{X+2}")
    a(f"v_cndmask_b32 v{X+2}, 0, v{X+2}, s[{S_MSK+4}:{S_MSK+5}]")
    a(f"v_subrev_u32 v{X+1}, s{S_NSH}, v{X+1}")
    a(f"v_add_u32 v{X+2}, s{S_NSH}, v{X+2}")
    a(f"v_lshlrev_b32 v{X+3}, 2, v{V_C}")
    a(f"v_add_u32 v{X+3}, 0x{LDS_PLAN:x}, v{X+3}")
    a(f"ds_write_b32 v{X+3}, v{X+1}")
    a(f"s_lshr_b32 s{S_T1}, s{S_IT0}, 1")
    a(f"s_and_b32 s{S_T1}, s{S_T1}, 7")
    a(f"s_add_u32 s{S_T1}, s{S_T1}, 1")
    a(f"v_readlane_b32 s{S_CNT}, v{X+2}, s{S_T1}")

def kernelA(a: Asm):
    a.label(KNAME)
    a("s_cmp_ge_u32 s2, 256")
    a("s_cbranch_scc1 A_END")
    if STAMP:
        a("s_memrealtime s[98:99]")
    a("s_load_dwordx16 s[8:23], s[0:1], 0")
    if PRIO:
        a("s_setprio 3")
    a(f"v_and_b32 v{V_LANE}, 63, v0")
    a(f"v_lshrrev_b32 v{V_T0}, 6, v0")
    a(f"v_lshlrev_b32 v{V_T1}, 4, v{V_LANE}")
    a(f"v_readfirstlane_b32 s{S_W}, v{V_T0}")
    a(f"v_lshlrev_b32 v{V_T2}, 4, v0")
    a(f"v_lshrrev_b32 v{V_G}, 4, v{V_LANE}")
    a(f"v_and_b32 v{V_C}, 15, v{V_LANE}")
    assert CNTS[:4] == CNTS[4:]
    pre = [sum(CNTS[:h]) for h in range(4)]
    a(f"s_and_b32 s{S_IT}, s2, 127")
    a(f"s_lshr_b32 s{S_KVH}, s2, 7")
    a(f"s_lshl_b32 s{S_KVH}, s{S_KVH}, 2")
    a(f"s_mov_b32 s{S_T0}, 0")
    a(f"s_mov_b32 s{S_T1}, 0")
    a(f"s_mov_b32 s{S_NIT}, {CNTS[0]}")
    a(f"s_mov_b32 s{S_TM}, {-(-65536//CNTS[0])}")
    for h in range(1, 4):
        a(f"s_cmp_ge_u32 s{S_IT}, {pre[h]}")
        a(f"s_cselect_b32 s{S_T1}, {h}, s{S_T1}")
        a(f"s_cselect_b32 s{S_T0}, {pre[h]}, s{S_T0}")
        a(f"s_cselect_b32 s{S_NIT}, {CNTS[h]}, s{S_NIT}")
        a(f"s_cselect_b32 s{S_TM}, {-(-65536//CNTS[h])}, s{S_TM}")
    a(f"s_sub_u32 s{S_IT}, s{S_IT}, s{S_T0}")
    a(f"s_add_u32 s{S_KVH}, s{S_KVH}, s{S_T1}")
    a(f"s_sub_u32 s{S_IT0}, s{S_IT}, {COFF}")
    a(f"s_and_b32 s{S_T0}, s{S_W}, 3")
    a(f"s_lshl_b32 s{S_T0}, s{S_T0}, 2")
    a(f"v_add_u32 v{V_T0}, s{S_T0}, v{V_G}")
    a(f"v_xor_b32 v{V_T0}, v{V_T0}, v{V_C}")
    a(f"v_lshlrev_b32 v{V_T0}, 4, v{V_T0}")
    a(f"v_lshl_add_u32 v{V_QOFF}, v{V_G}, 8, v{V_T0}")
    a(f"s_lshl_b32 s{S_KVH256}, s{S_KVH}, 8")
    a(f"s_lshl_b32 s{S_QSOFF}, s{S_W}, 13")
    a(f"s_lshl_b32 s{S_T0}, s{S_KVH}, 10")
    a(f"s_add_u32 s{S_QSOFF}, s{S_QSOFF}, s{S_T0}")
    a(f"s_lshl_b32 s{S_QM0}, s{S_W}, 10")
    a(f"s_add_u32 s{S_QM0}, s{S_QM0}, 0x{LDS_Q:x}")
    a(f"s_lshl_b32 s{S_M0B}, s{S_W}, 14")
    for j in range(4):
        a(f"v_add_u32 v{V_T0}, {4*j}, v{V_G}")
        a(f"v_xor_b32 v{V_T3}, v{V_T0}, v{V_C}")
        a(f"v_lshlrev_b32 v{V_T3}, 4, v{V_T3}")
        a(f"v_lshl_add_u32 v{V_KOFF+j}, v{V_T0}, 11, v{V_T3}")
        if j:
            a(f"v_subrev_u32 v{V_KOFF+j}, {1024*j}, v{V_KOFF+j}")
        a(f"v_lshl_add_u32 v{V_LJ+j}, v{V_C}, 8, v{V_T3}")
    if SPEC:
        PN, PS = PRED_N, PRED_S
        a(f"s_cmp_ge_u32 s{S_W}, 4")
        a("s_cbranch_scc1 A_NOPRED")
        a(f"s_add_u32 s{S_T0}, s{S_NIT}, {PN - 1}")
        a(f"s_mul_i32 s{S_T0}, s{S_T0}, s{S_TM}")
        a(f"s_lshr_b32 s{S_T0}, s{S_T0}, 16")
        a(f"s_max_u32 s{S_T0}, s{S_T0}, {TMIN}")
        a(f"s_min_u32 s{S_T0}, s{S_T0}, 32")
        a(f"s_mul_i32 s{S_T2}, s{S_IT}, s{S_T0}")
        a(f"s_add_u32 s{S_T0}, s{S_T2}, s{S_T0}")
        a(f"s_min_u32 s{S_T0}, s{S_T0}, {PN}")
        a(f"s_add_u32 s{S_T2}, s{S_T2}, s{S_W}")
        X = V_X
        a(f"v_lshl_add_u32 v{X}, v{V_LANE}, 3, s{S_T2}")
        a(f"v_mov_b32 v{X+1}, v{X}")
        for th, dl in PRED_STEPS:
            a(f"v_subrev_u32 v{X+2}, {th - 1}, v{X}")
            a(f"v_med3_i32 v{X+2}, v{X+2}, 0, 1")
            a(f"v_mad_u32_u24 v{X+1}, v{X+2}, {dl}, v{X+1}")
        a(f"v_lshl_add_u32 v{X+1}, v{X+1}, 15, s{S_KVH256}")
        a(f"v_cmp_gt_u32 vcc, s{S_T0}, v{X}")
        a(f"v_mov_b32 v{X+2}, 0x{OOB:x}")
        a.nop(1)
        a(f"v_cndmask_b32 v{X+1}, v{X+2}, v{X+1}, vcc")
        a.nop(1)
        for i in range(4):
            a(f"v_readlane_b32 s{S_REM+i}, v{X+1}, {i}")
        a.label("A_NOPRED")
    a(f"s_lshl_b32 s{S_T1}, s{S_W}, 2")
    a("s_waitcnt lgkmcnt(0)")
    if STAMP:
        a(f"v_writelane_b32 v{V_STAMP}, s98, 0")
    stamp(a, 1)
    a(f"global_load_dwordx4 v[{V_ROW}:{V_ROW+3}], v{V_T2}, s[{S_BT}:{S_BT+1}]")
    a(f"global_load_dwordx4 v[{V_ROW0}:{V_ROW0+3}], v{V_T1}, s[{S_BT}:{S_BT+1}]")
    a(f"s_load_dword s{S_CTXW}, s[{S_CTX}:{S_CTX+1}], s{S_T1}")
    def srd(srd, p, sz):
        a(f"s_mov_b32 s{srd}, s{p}")
        a(f"s_and_b32 s{srd+1}, s{p+1}, 0xffff")
        a(f"s_mov_b32 s{srd+2}, 0x{sz:x}")
        a(f"s_mov_b32 s{srd+3}, 0x20000")
    srd(SRD_Q, S_Q, 65536)
    a(f"s_mov_b32 m0, s{S_QM0}")
    srd(SRD_K, S_K, KV_BYTES)
    a(f"buffer_load_dwordx4 v{V_QOFF}, s[{SRD_Q}:{SRD_Q+3}], s{S_QSOFF} offen lds")
    if SPEC:
        a(f"s_cmp_ge_u32 s{S_W}, 4")
        a("s_cbranch_scc1 A_NOSPEC")
        for i in range(4):
            a(f"s_add_u32 m0, s{S_M0B}, {i*4096}")
            a.nop(1)
            for j in range(4):
                a(f"buffer_load_dwordx4 v{V_KOFF+j}, s[{SRD_K}:{SRD_K+3}], s{S_REM+i} offen offset:{1024*j} {POL} lds")
        a.label("A_NOSPEC")
    srd(SRD_V, S_V, KV_BYTES)
    srd(SRD_WS, S_WS, WS_SIZE)
    a(f"s_mov_b32 s{S_C}, 0x{CSCALE:08x}")
    a(f"s_mov_b32 s{S_L0X}, 0x00010001")
    a(f"s_mov_b32 s{S_L0X+1}, 0x00010001")
    a(f"s_mov_b32 s{S_LE8X}, 0x01ff01ff")
    a(f"s_mov_b32 s{S_LE8X+1}, 0x01ff01ff")
    a(f"v_mov_b32 v{V_NEG}, 0x{NEG:08x}")
    a(f"v_mov_b32 v{V_ZERO}, 0")
    a(f"s_movk_i32 s{S_FF}, 0xff")
    a("s_cmp_lg_u32 s2, 0")
    a("s_cbranch_scc1 A_NOEP")
    a(f"s_cmp_lg_u32 s{S_W}, 7")
    a("s_cbranch_scc1 A_NOEP")
    a(f"s_mov_b32 s{S_T0}, 0x{WS_EPOCH:x}")
    a(f"buffer_load_dword v{V_N}, v{V_ZERO}, s[{SRD_WS}:{SRD_WS+3}], s{S_T0} offen sc1")
    a("s_waitcnt vmcnt(0)")
    a(f"v_add_u32 v{V_N}, 1, v{V_N}")
    a(f"v_max_u32 v{V_N}, 1, v{V_N}")
    a("s_mov_b64 exec, 1")
    a(f"buffer_store_dword v{V_N}, v{V_ZERO}, s[{SRD_WS}:{SRD_WS+3}], s{S_T0} offen sc1")
    a(f"global_store_dword v{V_ZERO}, v{V_N}, s[{S_DBG}:{S_DBG+1}] sc0 sc1")
    a("s_mov_b64 exec, -1")
    a.label("A_NOEP")
    for j in range(4):
        a(f"v_add_u32 v{V_T0}, {4*j}, v{V_G}")
        a(f"v_and_b32 v{V_T3}, 7, v{V_T0}")
        a(f"v_lshlrev_b32 v{V_T3}, 1, v{V_T3}")
        a(f"v_xor_b32 v{V_T3}, v{V_T3}, v{V_C}")
        a(f"v_lshlrev_b32 v{V_T3}, 4, v{V_T3}")
        a(f"v_lshl_add_u32 v{V_VOFF+j}, v{V_T0}, 11, v{V_T3}")
        if j:
            a(f"v_subrev_u32 v{V_VOFF+j}, {1024*j}, v{V_VOFF+j}")
    for j in range(4):
        a(f"v_add_u32 v{V_KRD+j}, s{S_M0B}, v{V_LJ+j}")
        a(f"v_add_u32 v{V_LJ+j}, 0x{LDS_Q:x}, v{V_LJ+j}")
    a(f"v_lshrrev_b32 v{V_CB}, 2, v{V_C}")
    a(f"v_lshl_add_u32 v{V_T0}, v{V_G}, 2, v{V_CB}")
    a(f"v_and_b32 v{V_T3}, 7, v{V_T0}")
    a(f"v_xor_b32 v{V_T3}, s{S_W}, v{V_T3}")
    a(f"v_lshlrev_b32 v{V_T3}, 5, v{V_T3}")
    a(f"v_lshl_add_u32 v{V_T3}, v{V_T0}, 8, v{V_T3}")
    a(f"v_and_b32 v{V_T0}, 3, v{V_C}")
    a(f"v_lshl_add_u32 v{V_VTLO}, v{V_T0}, 3, v{V_T3}")
    a(f"v_add_u32 v{V_VTHI}, 0x10000, v{V_VTLO}")
    a(f"v_add_u32 v{V_PRD}, 0x{LDS_P:x}, v{V_T1}")
    a(f"s_lshr_b32 s{S_T0}, s{S_W}, 1")
    a(f"s_lshl_b32 s{S_T0}, s{S_T0}, 10")
    a(f"s_and_b32 s{S_T1}, s{S_W}, 1")
    a(f"s_lshl_b32 s{S_T1}, s{S_T1}, 3")
    a(f"s_add_u32 s{S_T0}, s{S_T0}, s{S_T1}")
    a(f"v_add_u32 v{V_PWR}, s{S_T0}, v{V_PRD}")
    a(f"v_lshlrev_b32 v{V_MADDR}, 5, v{V_C}")
    a(f"v_add_u32 v{V_MADDR}, 0x{LDS_M:x}, v{V_MADDR}")
    for r in range(4):
        a(f"v_lshl_add_u32 v{V_TOK+r}, v{V_G}, 2, {r}")
    a(f"v_lshlrev_b32 v{V_T0}, 19, v{V_G}")
    a(f"v_lshl_add_u32 v{V_OOFF}, v{V_C}, 4, v{V_T0}")
    a(f"v_lshlrev_b32 v{V_T0}, 13, v{V_CB}")
    a(f"v_and_b32 v{V_T3}, 3, v{V_C}")
    a(f"v_lshl_add_u32 v{V_MLOFF}, v{V_T3}, 8, v{V_T0}")
    a(f"v_add_u32 v{V_T0}, -1, v{V_C}")
    a(f"v_and_b32 v{V_T3}, 7, v{V_T0}")
    a(f"v_lshlrev_b32 v{V_T3}, 2, v{V_T3}")
    a(f"v_add_u32 v{V_CTXA}, 0x{LDS_SW+32:x}, v{V_T3}")
    a(f"v_max_i32 v{V_T0}, 0, v{V_T0}")
    a(f"v_min_u32 v{V_T0}, 7, v{V_T0}")
    a(f"v_lshlrev_b32 v{V_T0}, 10, v{V_T0}")
    a(f"v_add_u32 v{V_ROWB}, 0x{LDS_TBL:x}, v{V_T0}")
    a("s_waitcnt lgkmcnt(0)")
    a(f"s_max_i32 s{S_CTXW}, s{S_CTXW}, 0")
    a(f"s_min_i32 s{S_CTXW}, s{S_CTXW}, 4096")
    a(f"s_mov_b32 s{S_RND}, 0")
    a(f"v_mov_b32 v{V_FLG}, 0x{LDS_FLAG:x}")
    a(f"s_lshl_b32 s{S_T0}, s{S_W}, 2")
    a(f"v_add_u32 v{V_T0}, s{S_T0}, v{V_FLG}")
    a(f"ds_write2_b32 v{V_T0}, v{V_ZERO}, v{V_ZERO} offset0:0 offset1:8")
    a.label("A_ROUND")
    a(f"s_add_u32 s{S_RND}, s{S_RND}, 1")
    a(f"v_lshlrev_b32 v{V_T0}, 4, v0")
    a(f"v_add_u32 v{V_T0}, 0x{LDS_TBL:x}, v{V_T0}")
    a(f"s_lshl_b32 s{S_T0}, s{S_W}, 2")
    a(f"s_add_u32 s{S_T0}, s{S_T0}, 0x{LDS_SW:x}")
    a(f"v_mov_b32 v{V_T3}, s{S_T0}")
    a(f"v_mov_b32 v{V_X+1}, s{S_CTXW}")
    a(f"s_lshr_b32 s{S_T1}, s{S_CTXW}, 4")
    a(f"v_mov_b32 v{V_T2}, 0x{LDS_SW:x}")
    stamp(a, 2)
    if SPEC:
        a(f"s_cmp_eq_u32 s{S_RND}, 1")
        a(f"s_cselect_b32 s{S_T2}, 4, 0")
        a(f"s_cmp_lt_u32 s{S_W}, s{S_T2}")
        a("s_cbranch_scc1 A_W16")
        a("s_waitcnt vmcnt(0)")
        a("s_branch A_WD")
        a.label("A_W16")
        a("s_waitcnt vmcnt(16)")
        a.label("A_WD")
    else:
        a("s_waitcnt vmcnt(0)")
    stamp(a, 3)
    for e in range(4):
        a(f"v_cmp_ne_u32 s[{S_MSK+2*e}:{S_MSK+2*e+1}], v{V_ROW+e}, v{V_ROW0+e}")
    a(f"ds_write_b128 v{V_T0}, v[{V_ROW}:{V_ROW+3}]")
    a(f"s_or_b64 s[{S_MSK}:{S_MSK+1}], s[{S_MSK}:{S_MSK+1}], s[{S_MSK+2}:{S_MSK+3}]")
    a(f"s_or_b64 s[{S_MSK+4}:{S_MSK+5}], s[{S_MSK+4}:{S_MSK+5}], s[{S_MSK+6}:{S_MSK+7}]")
    a(f"s_or_b64 s[{S_MSK}:{S_MSK+1}], s[{S_MSK}:{S_MSK+1}], s[{S_MSK+4}:{S_MSK+5}]")
    a(f"s_ff1_i32_b64 s{S_T0}, s[{S_MSK}:{S_MSK+1}]")
    a(f"s_lshl_b32 s{S_T0}, s{S_T0}, 2")
    a(f"s_min_u32 s{S_T0}, s{S_T0}, s{S_T1}")
    a(f"v_mov_b32 v{V_X}, s{S_T0}")
    a(f"ds_write2_b32 v{V_T3}, v{V_X}, v{V_X+1} offset0:0 offset1:8")
    a("s_waitcnt lgkmcnt(0)")
    a("s_barrier")
    X = V_X
    a(f"ds_read_b128 v[{X}:{X+3}], v{V_T2}")
    a(f"ds_read_b128 v[{X+4}:{X+7}], v{V_T2} offset:16")
    a(f"ds_read_b32 v{vctx}, v{V_CTXA}")
    a("s_waitcnt lgkmcnt(0)")
    a(f"v_min3_u32 v{X}, v{X}, v{X+1}, v{X+2}")
    a(f"v_min3_u32 v{X+3}, v{X+3}, v{X+4}, v{X+5}")
    a(f"v_add_u32 v{vn}, 15, v{vctx}")
    a(f"v_min3_u32 v{X}, v{X}, v{X+6}, v{X+7}")
    a(f"v_lshrrev_b32 v{vn}, 4, v{vn}")
    a(f"v_min_u32 v{vS}, v{X}, v{X+3}")
    a(f"v_sub_u32 v{vn}, v{vn}, v{vS}")
    a(f"v_cndmask_b32 v{vn}, v{vn}, v{vS}, s[{S_L0X}:{S_L0X+1}]")
    a(f"v_cndmask_b32 v{vn}, 0, v{vn}, s[{S_LE8X}:{S_LE8X+1}]")
    a(f"v_mov_b32 v{vcum}, v{vn}")
    a(f"v_cndmask_b32 v{X+8}, v{vS}, 0, s[{S_L0X}:{S_L0X+1}]")
    a(f"v_readfirstlane_b32 s{S_S}, v{vS}")
    dpp = "row_mask:0xf bank_mask:0xf bound_ctrl:0"
    a(f"v_add_u32_dpp v{vcum}, v{vcum}, v{vcum} row_shr:1 {dpp}")
    a(f"v_lshlrev_b32 v{X+9}, 3, v{V_G}")
    a(f"v_add_u32 v{X+9}, s{S_W}, v{X+9}")
    a(f"v_add_u32_dpp v{vcum}, v{vcum}, v{vcum} row_shr:2 {dpp}")
    a.nop(2)
    a(f"v_add_u32_dpp v{vcum}, v{vcum}, v{vcum} row_shr:4 {dpp}")
    a.nop(2)
    a(f"v_add_u32_dpp v{vcum}, v{vcum}, v{vcum} row_shr:8 {dpp}")
    a.nop(1)
    a(f"v_readlane_b32 s{S_N}, v{vcum}, 8")
    a(f"v_sub_u32 v{vex}, v{vcum}, v{vn}")
    a(f"v_sub_u32 v{X+8}, v{vex}, v{X+8}")
    a(f"s_add_u32 s{S_T}, s{S_N}, s{S_NIT}")
    a(f"s_sub_u32 s{S_T}, s{S_T}, 1")
    a(f"s_mul_i32 s{S_T}, s{S_T}, s{S_TM}")
    a(f"s_lshr_b32 s{S_T}, s{S_T}, 16")
    a(f"s_max_u32 s{S_T}, s{S_T}, {TMIN}")
    a(f"s_min_u32 s{S_T}, s{S_T}, 32")
    a(f"s_mul_i32 s{S_F0}, s{S_IT}, s{S_T}")
    a(f"s_add_u32 s{S_HI}, s{S_F0}, s{S_T}")
    a(f"s_min_u32 s{S_HI}, s{S_HI}, s{S_N}")
    a(f"s_cmp_ge_u32 s{S_F0}, s{S_N}")
    a("s_cbranch_scc1 A_FIN0")
    a(f"v_add_u32 v{X+9}, s{S_F0}, v{X+9}")
    a(f"v_min_u32 v{X+10}, s{S_HI}, v{vcum}")
    a(f"v_cmp_gt_u32 vcc, v{X+10}, v{X+9}")
    a(f"v_cmp_le_u32 s[{S_MM}:{S_MM+1}], v{vex}, v{X+9}")
    a(f"v_sub_u32 v{vj}, v{X+9}, v{X+8}")
    a(f"v_min_u32 v{vj}, 255, v{vj}")
    a(f"v_lshl_add_u32 v{X+10}, v{vj}, 2, v{V_ROWB}")
    a(f"ds_read_b32 v{X+11}, v{X+10}")
    a(f"s_and_b64 s[{S_MM}:{S_MM+1}], s[{S_MM}:{S_MM+1}], vcc")
    a(f"v_mov_b32 v{X+12}, 0x{OOB:x}")
    for i in range(4):
        src = S_MM + (i >> 1)
        if i & 1:
            a(f"s_lshr_b32 s{S_LANE+i}, s{src}, 16")
        else:
            a(f"s_and_b32 s{S_LANE+i}, s{src}, 0xffff")
        a(f"s_or_b32 s{S_LANE+i}, s{S_LANE+i}, 0x8000")
        a(f"s_ff1_i32_b32 s{S_LANE+i}, s{S_LANE+i}")
        if i:
            a(f"s_add_u32 s{S_LANE+i}, s{S_LANE+i}, {16*i}")
    a(f"s_mov_b32 m0, s{S_M0B}")
    a("s_waitcnt lgkmcnt(0)")
    a(f"v_lshl_add_u32 v{X+11}, v{X+11}, 15, s{S_KVH256}")
    a(f"v_cndmask_b32 v{X+11}, v{X+12}, v{X+11}, s[{S_MM}:{S_MM+1}]")
    a.nop(1)
    for i in range(4):
        a(f"v_readlane_b32 s{S_SOFF+i}, v{X+11}, s{S_LANE+i}")
    a.nop(3)
    stamp(a, 4)
    if SPEC:
        a(f"s_cmp_eq_u32 s{S_RND}, 1")
        a(f"s_cselect_b32 s{S_T2}, 4, 0")
        a(f"s_cmp_lt_u32 s{S_W}, s{S_T2}")
        a("s_cbranch_scc0 A_KISS")
        a(f"s_cmp_eq_u64 s[{S_SOFF}:{S_SOFF+1}], s[{S_REM}:{S_REM+1}]")
        a("s_cbranch_scc0 A_KREDO")
        a(f"s_cmp_eq_u64 s[{S_SOFF+2}:{S_SOFF+3}], s[{S_REM+2}:{S_REM+3}]")
        a("s_cbranch_scc1 A_KDONE")
        a.label("A_KREDO")
        a("s_waitcnt vmcnt(0)")
        a.label("A_KISS")
    for i in range(4):
        if i:
            a(f"s_add_u32 m0, s{S_M0B}, {i*4096}")
        a.nop(1)
        for j in range(4):
            a(f"buffer_load_dwordx4 v{V_KOFF+j}, s[{SRD_K}:{SRD_K+3}], s{S_SOFF+i} offen offset:{1024*j} {POL} lds")
    a.label("A_KDONE")
    if PRIO:
        a("s_setprio 0")
    a(f"v_lshlrev_b32 v{X}, 4, v{vj}")
    a(f"v_sub_u32 v{X}, v{vctx}, v{X}")
    a(f"v_mov_b32 v{X+1}, 16")
    a(f"v_cndmask_b32 v{X}, v{X}, v{X+1}, s[{S_L0X}:{S_L0X+1}]")
    a(f"v_cndmask_b32 v{X}, 0, v{X}, s[{S_MM}:{S_MM+1}]")
    for i in range(4):
        a(f"s_and_b32 s{S_OWN+i}, s{S_LANE+i}, 15")
        a(f"s_sub_u32 s{S_OWN+i}, s{S_OWN+i}, 1")
    for i in range(4):
        a(f"v_readlane_b32 s{S_REM+i}, v{X}, s{S_LANE+i}")
    plan_extra(a, "P1")
    a(f"s_cmp_lg_u32 s{S_NG2}, 0")
    a("s_cbranch_scc1 A_SHARED")
    body(a, 1)
    a("s_branch A_NEXT")
    a.label("A_SHARED")
    body(a, 2)
    a.label("A_NEXT")
    stamp(a, 13)
    a(f"s_add_u32 s{S_IT}, s{S_IT}, s{S_NIT}")
    a(f"s_mul_i32 s{S_T0}, s{S_IT}, s{S_T}")
    a(f"s_cmp_ge_u32 s{S_T0}, s{S_N}")
    a("s_cbranch_scc1 A_FIN")
    a("s_waitcnt lgkmcnt(0)")
    a("s_barrier")
    if PRIO:
        a("s_setprio 3")
    a(f"s_mov_b32 m0, s{S_QM0}")
    a.nop(1)
    a(f"buffer_load_dwordx4 v{V_QOFF}, s[{SRD_Q}:{SRD_Q+3}], s{S_QSOFF} offen lds")
    a("s_branch A_ROUND")
    a.label("A_FIN0")
    plan_extra(a, "P2")
    a(f"s_load_dword s{S_NON}, s[{S_DBG}:{S_DBG+1}], 0")
    a("s_waitcnt vmcnt(0) lgkmcnt(0)")
    a(f"v_mov_b32 v{V_N}, s{S_NON}")
    a.label("A_FIN")
    if NOCONS:
        a("s_branch A_DONE")
    a(f"s_cmp_ge_u32 s{S_IT0}, 16")
    a("s_cbranch_scc1 A_DONE")
    consumer(a)
    a.label("A_DONE")
    stamp(a, 14)
    stamp_out(a)
    a.label("A_END")
    a("s_endpgm")

def get_nonce(a, tag):
    a(f"v_cmp_eq_u32 vcc, 0, v{V_N}")
    a(f"s_cbranch_vccz {tag}_NOK")
    a(f"s_mov_b32 s{S_SPIN}, 0")
    a.label(f"{tag}_NSPIN")
    a(f"global_load_dword v{V_N}, v{V_ZERO}, s[{S_DBG}:{S_DBG+1}] sc1")
    a("s_waitcnt vmcnt(0)")
    a(f"s_add_u32 s{S_SPIN}, s{S_SPIN}, 1")
    a(f"s_cmp_ge_u32 s{S_SPIN}, 0x40000")
    a(f"s_cbranch_scc1 {tag}_NOK")
    a(f"v_cmp_eq_u32 vcc, 0, v{V_N}")
    a(f"s_cbranch_vccnz {tag}_NSPIN")
    a.label(f"{tag}_NOK")

def consumer(a):
    get_nonce(a, "C")
    D = V_Q
    ML0, ML1 = V_B, V_B + 4
    T0, T1 = V_X + 2, V_X + 3
    M0, L0, M1, L1 = V_X + 4, V_X + 5, V_X + 6, V_X + 7
    X0, X1, A0, A1 = V_X + 8, V_X + 9, V_X + 10, V_X + 11
    SB, SM, ST = S_T0, S_T1, S_T3
    SO = S_SOFF
    W0 = S_REM
    W1 = S_OWN
    srd = f"s[{SRD_WS}:{SRD_WS+3}]"
    a(f"s_lshr_b32 s{S_CB}, s{S_IT0}, 1")
    a(f"s_lshl_b32 s{S_CB}, s{S_CB}, 3")
    a(f"s_add_u32 s{S_CB}, s{S_CB}, s{S_KVH}")
    a(f"s_and_b32 s{S_RHO}, s{S_IT0}, 1")
    a(f"s_and_b32 s{S_GRP}, s{S_W}, 1")
    a(f"s_lshr_b32 s{S_LANE}, s{S_W}, 1")
    a(f"s_lshl_b32 s{SM}, s{S_CB}, 2")
    a(f"s_lshl_b32 s{ST}, s{S_RHO}, 1")
    a(f"s_add_u32 s{SM}, s{SM}, s{ST}")
    a(f"s_lshl_b32 s{SM}, s{SM}, 8")
    a(f"s_add_u32 s{SM}, s{SM}, 0x{WS_ML:x}")
    a(f"v_lshlrev_b32 v{V_T2}, 4, v{V_C}")
    a(f"buffer_load_dwordx4 v[{ML0}:{ML0+3}], v{V_T2}, {srd}, s{SM} offen sc1")
    a(f"buffer_load_dwordx4 v[{ML1}:{ML1+3}], v{V_T2}, {srd}, s{SM} offen offset:256 sc1")
    a(f"s_lshl_b32 s{SB}, s{S_CB}, 1")
    a(f"s_add_u32 s{SB}, s{SB}, s{S_RHO}")
    a(f"s_lshl_b32 s{SB}, s{SB}, 15")
    a(f"s_lshl_b32 s{ST}, s{S_GRP}, 10")
    a(f"s_add_u32 s{SB}, s{SB}, s{ST}")
    a(f"s_lshl_b32 s{ST}, s{S_LANE}, 11")
    a(f"s_add_u32 s{SB}, s{SB}, s{ST}")
    a(f"v_lshlrev_b32 v{V_T1}, 4, v{V_LANE}")
    a(f"s_mov_b32 s{S_PEND}, 0")
    for k in range(4):
        a(f"s_add_u32 s{S_LANE+1}, s{S_LANE}, {4*k}")
        a(f"s_add_u32 s{SO+k}, s{SB}, {8192*k}")
        a(f"s_cmp_lt_u32 s{S_LANE+1}, s{S_CNT}")
        a(f"s_cselect_b32 s{SO+k}, s{SO+k}, 0x{OOB:x}")
        a(f"s_cselect_b32 s{ST}, {1<<k}, 0")
        a(f"buffer_load_dwordx4 v[{D+4*k}:{D+4*k+3}], v{V_T1}, {srd}, s{SO+k} offen sc1")
        a(f"s_or_b32 s{S_PEND}, s{S_PEND}, s{ST}")
    a(f"v_cmp_gt_u32 s[{S_MSK}:{S_MSK+1}], s{S_CNT}, v{V_C}")
    a(f"s_mov_b32 s{S_SPIN}, 0")
    a("s_waitcnt vmcnt(4)")
    a.label("C_MLCHK")
    a(f"v_bitop3_b32 v{T0}, v{ML0+1}, v{ML0+3}, v{V_N} bitop3:0x7e")
    a(f"v_bitop3_b32 v{T1}, v{ML1+1}, v{ML1+3}, v{V_N} bitop3:0x7e")
    a(f"v_or_b32 v{T0}, v{T0}, v{T1}")
    a(f"v_cndmask_b32 v{T0}, 0, v{T0}, s[{S_MSK}:{S_MSK+1}]")
    a(f"v_cmp_ne_u32 vcc, 0, v{T0}")
    a("s_cbranch_vccz C_MLOK")
    a(f"s_add_u32 s{S_SPIN}, s{S_SPIN}, 1")
    a(f"s_cmp_ge_u32 s{S_SPIN}, 0x40000")
    a("s_cbranch_scc1 C_RED")
    a(f"s_sleep {SLEEP}")
    a(f"buffer_load_dwordx4 v[{ML0}:{ML0+3}], v{V_T2}, {srd}, s{SM} offen sc1")
    a(f"buffer_load_dwordx4 v[{ML1}:{ML1+3}], v{V_T2}, {srd}, s{SM} offen offset:256 sc1")
    a("s_waitcnt vmcnt(0)")
    a("s_branch C_MLCHK")
    a.label("C_MLOK")
    msk = f"s[{S_MSK}:{S_MSK+1}]"
    a(f"v_cndmask_b32 v{M0}, v{V_NEG}, v{ML0}, {msk}")
    a(f"v_cndmask_b32 v{M1}, v{V_NEG}, v{ML1}, {msk}")
    a(f"v_cndmask_b32 v{L0}, 0, v{ML0+2}, {msk}")
    a(f"v_cndmask_b32 v{L1}, 0, v{ML1+2}, {msk}")
    dpp = "row_mask:0xf bank_mask:0xf"
    a(f"v_mov_b32 v{X0}, v{M0}")
    a(f"v_mov_b32 v{X1}, v{M1}")
    for sh in (8, 4, 2, 1):
        a.nop(1)
        a(f"v_max_f32_dpp v{X0}, v{X0}, v{X0} row_ror:{sh} {dpp}")
        a(f"v_max_f32_dpp v{X1}, v{X1}, v{X1} row_ror:{sh} {dpp}")
    a(f"v_sub_f32 v{M0}, v{M0}, v{X0}")
    a(f"v_sub_f32 v{M1}, v{M1}, v{X1}")
    a(f"v_exp_f32 v{M0}, v{M0}")
    a(f"v_exp_f32 v{M1}, v{M1}")
    a.nop(1)
    a(f"v_mul_f32 v{X0}, v{M0}, v{L0}")
    a(f"v_mul_f32 v{X1}, v{M1}, v{L1}")
    for sh in (8, 4, 2, 1):
        a.nop(1)
        a(f"v_add_f32_dpp v{X0}, v{X0}, v{X0} row_ror:{sh} {dpp}")
        a(f"v_add_f32_dpp v{X1}, v{X1}, v{X1} row_ror:{sh} {dpp}")
    a(f"v_rcp_f32 v{X0}, v{X0}")
    a(f"v_rcp_f32 v{X1}, v{X1}")
    a(f"v_mov_b32 v{A0}, 0")
    a(f"v_mov_b32 v{A1}, 0")
    a(f"v_mul_f32 v{M0}, v{M0}, v{X0}")
    a(f"v_mul_f32 v{M1}, v{M1}, v{X1}")
    a.nop(1)
    for k in range(4):
        a(f"s_add_u32 s{S_LANE+1}, s{S_LANE}, {4*k}")
        a(f"v_readlane_b32 s{W0+k}, v{M0}, s{S_LANE+1}")
        a(f"v_readlane_b32 s{W1+k}, v{M1}, s{S_LANE+1}")
    def check(Dset, tag):
        for k in range(4):
            d = Dset + 4 * k
            a(f"s_bitcmp1_b32 s{S_PEND}, {k}")
            a(f"s_cbranch_scc0 {tag}{k}")
            a(f"v_bitop3_b32 v{T0}, v{d+1}, v{d+3}, v{V_N} bitop3:0x7e")
            a(f"v_bitop3_b32 v{T1}, v{d}, v{d+2}, v{V_N} bitop3:0x7e")
            a(f"v_and_or_b32 v{T0}, v{T1}, s{S_FF}, v{T0}")
            a(f"v_cmp_ne_u32 vcc, 0, v{T0}")
            a(f"s_cbranch_vccnz {tag}{k}")
            a(f"v_fmac_f32 v{A0}, s{W0+k}, v{d}")
            a(f"v_fmac_f32 v{A1}, s{W1+k}, v{d+2}")
            a(f"s_bitset0_b32 s{S_PEND}, {k}")
            a.label(f"{tag}{k}")
    def issue(Dset, tag):
        for k in range(4):
            a(f"s_bitcmp1_b32 s{S_PEND}, {k}")
            a(f"s_cselect_b32 s{ST}, s{SO+k}, 0x{OOB:x}")
            a(f"buffer_load_dwordx4 v[{Dset+4*k}:{Dset+4*k+3}], v{V_T1}, {srd}, s{ST} offen sc1")
    a("s_waitcnt vmcnt(0)")
    check(D, "C_A")
    a(f"s_cmp_eq_u32 s{S_PEND}, 0")
    a("s_cbranch_scc1 C_RED")
    if PIPE:
        issue(D, "i0")
        a.label("C_LOOP")
        a(f"s_sleep {PSLEEP}")
        issue(D + 16, "i1")
        a("s_waitcnt vmcnt(4)")
        check(D, "C_B")
        a(f"s_cmp_eq_u32 s{S_PEND}, 0")
        a("s_cbranch_scc1 C_RED")
        a(f"s_sleep {PSLEEP}")
        issue(D, "i2")
        a("s_waitcnt vmcnt(4)")
        check(D + 16, "C_C")
        a(f"s_add_u32 s{S_SPIN}, s{S_SPIN}, 1")
        a(f"s_cmp_ge_u32 s{S_SPIN}, 0x40000")
        a("s_cbranch_scc1 C_RED")
        a(f"s_cmp_lg_u32 s{S_PEND}, 0")
        a("s_cbranch_scc1 C_LOOP")
    else:
        a.label("C_LOOP")
        a(f"s_sleep {SLEEP}")
        issue(D, "i0")
        a("s_waitcnt vmcnt(0)")
        check(D, "C_B")
        a(f"s_add_u32 s{S_SPIN}, s{S_SPIN}, 1")
        a(f"s_cmp_ge_u32 s{S_SPIN}, 0x40000")
        a("s_cbranch_scc1 C_RED")
        a(f"s_cmp_lg_u32 s{S_PEND}, 0")
        a("s_cbranch_scc1 C_LOOP")
    a.label("C_RED")
    if STAMP:
        a(f"v_writelane_b32 v{V_STAMP}, s{S_SPIN}, 15")
        stamp(a, 12)
    a(f"v_lshlrev_b32 v{V_T0}, 3, v0")
    a(f"ds_write_b64 v{V_T0}, v[{A0}:{A1}]")
    a(f"s_lshl_b32 s{SB}, s{S_CB}, 1")
    a(f"s_add_u32 s{SB}, s{SB}, s{S_RHO}")
    a(f"s_lshl_b32 s{SB}, s{SB}, 9")
    a(f"s_lshl_b32 s{SM}, s{S_GRP}, 7")
    a(f"s_add_u32 s{SB}, s{SB}, s{SM}")
    a(f"v_lshlrev_b32 v{V_T1}, 1, v{V_LANE}")
    a(f"s_mov_b32 s{SRD_Q}, s{S_OUT}")
    a(f"s_and_b32 s{SRD_Q+1}, s{S_OUT+1}, 0xffff")
    a("s_waitcnt lgkmcnt(0)")
    a("s_barrier")
    a(f"s_cmp_ge_u32 s{S_W}, 2")
    a("s_cbranch_scc1 A_DONE")
    R = V_B + 8
    a(f"ds_read_b64 v[{R}:{R+1}], v{V_T0} offset:1024")
    a(f"ds_read_b64 v[{R+2}:{R+3}], v{V_T0} offset:2048")
    a(f"ds_read_b64 v[{R+4}:{R+5}], v{V_T0} offset:3072")
    a("s_waitcnt lgkmcnt(0)")
    a(f"v_add_f32 v{A0}, v{A0}, v{R}")
    a(f"v_add_f32 v{A1}, v{A1}, v{R+1}")
    a(f"v_add_f32 v{R+2}, v{R+2}, v{R+4}")
    a(f"v_add_f32 v{R+3}, v{R+3}, v{R+5}")
    a(f"v_add_f32 v{A0}, v{A0}, v{R+2}")
    a(f"v_add_f32 v{A1}, v{A1}, v{R+3}")
    a(f"v_cvt_pk_bf16_f32 v{A0}, v{A0}, v{A1}")
    a(f"buffer_store_short v{A0}, v{V_T1}, s[{SRD_Q}:{SRD_Q+3}], s{SB} offen")
    a(f"buffer_store_short_d16_hi v{A0}, v{V_T1}, s[{SRD_Q}:{SRD_Q+3}], s{SB} offen offset:256")

def poll_flags(a, tag, off):
    X = V_X
    a.label(tag)
    a(f"ds_read_b128 v[{X}:{X+3}], v{V_FLG} offset:{off}")
    a(f"ds_read_b128 v[{X+4}:{X+7}], v{V_FLG} offset:{off+16}")
    a("s_waitcnt lgkmcnt(0)")
    a(f"v_min3_u32 v{X}, v{X}, v{X+1}, v{X+2}")
    a(f"v_min3_u32 v{X+3}, v{X+3}, v{X+4}, v{X+5}")
    a(f"v_min3_u32 v{X}, v{X}, v{X+6}, v{X+7}")
    a(f"v_min_u32 v{X}, v{X}, v{X+3}")
    a(f"v_cmp_gt_u32 vcc, s{S_RND}, v{X}")
    a(f"s_cbranch_vccnz {tag}")

def set_flag(a, off):
    a(f"s_lshl_b32 s{S_T0}, s{S_W}, 2")
    a(f"v_add_u32 v{V_T3}, s{S_T0}, v{V_FLG}")
    a(f"v_mov_b32 v{V_T2}, s{S_RND}")
    a(f"ds_write_b32 v{V_T3}, v{V_T2} offset:{off}")

def body(a: Asm, NG: int):
    tag = f"B{NG}"
    VSPLIT = VSPLIT1 if NG == 1 else VSPLIT2
    a.c(f"---- body NG={NG}")
    VS = [V_X + 8, V_X + 9]
    VM = [V_X + 10, V_X + 11]
    EX = [S_EX, S_EX + 2]
    EM = [S_EM, S_EM + 2]
    for g in range(NG):
        if NG == 1:
            a(f"s_lshl_b32 s{S_T0}, s{S_GRP}, 4")
            a(f"s_add_u32 s{S_T0}, s{S_T0}, 0x{LDS_PLAN+4:x}")
        else:
            a(f"s_mov_b32 s{S_T0}, 0x{LDS_PLAN+4+16*g:x}")
        a(f"v_lshl_add_u32 v{VS[g]}, v{V_G}, 2, s{S_T0}")
        a(f"v_lshl_add_u32 v{VM[g]}, v{V_CB}, 2, s{S_T0}")
        a(f"ds_read_b32 v{VS[g]}, v{VS[g]}")
        a(f"ds_read_b32 v{VM[g]}, v{VM[g]}")
    if NG == 1:
        a(f"s_lshl_b32 s{S_T0}, s{S_GRP}, 12")
        for j in range(4):
            a(f"v_add_u32 v{V_X+j}, s{S_T0}, v{V_LJ+j}")
        for j in range(4):
            a(f"ds_read_b128 v[{V_Q+4*j}:{V_Q+4*j+3}], v{V_X+j}")
    else:
        for g in range(2):
            for j in range(4):
                a(f"ds_read_b128 v[{V_Q+16*g+4*j}:{V_Q+16*g+4*j+3}], v{V_LJ+j} offset:{g*4096}")
    a(f"s_cmp_lt_u32 s{S_IT}, s{S_NSH}")
    a(f"s_cselect_b32 s{S_T1}, 0, -1")
    a("s_waitcnt lgkmcnt(0)")
    for g in range(NG):
        for V in (VS[g], VM[g]):
            a(f"v_and_b32 v{V}, s{S_T1}, v{V}")
            a(f"v_sub_u32 v{V}, s{S_IT}, v{V}")
        a(f"v_lshl_add_u32 v{VS[g]}, v{VS[g]}, 11, v{V_OOFF}")
        a(f"v_lshl_add_u32 v{VM[g]}, v{VM[g]}, 4, v{V_MLOFF}")
        if NG == 1:
            a(f"s_lshl_b32 s{S_T0}, s{S_GRP}, 2")
            a(f"s_lshr_b32 s{S_T0}, s{S_PM}, s{S_T0}")
        else:
            a(f"s_lshr_b32 s{S_T0}, s{S_PM}, {4*g}")
        a(f"v_lshrrev_b32 v{V_T3}, v{V_G}, s{S_T0}")
        a(f"v_and_b32 v{V_T3}, 1, v{V_T3}")
        a(f"v_cmp_ne_u32 s[{EX[g]}:{EX[g]+1}], 0, v{V_T3}")
        a(f"v_lshrrev_b32 v{V_T3}, v{V_CB}, s{S_T0}")
        a(f"v_and_b32 v{V_T3}, 1, v{V_T3}")
        a(f"v_cmp_ne_u32 s[{EM[g]}:{EM[g]+1}], 0, v{V_T3}")
        a(f"s_and_b32 s{EM[g]}, s{EM[g]}, 0xffff")
        a(f"s_mov_b32 s{EM[g]+1}, 0")
    a(f"s_lshl_b32 s{S_DO[0]}, s{S_KVH}, 16")
    a(f"s_lshl_b32 s{S_T2}, s{S_W}, 8")
    a(f"s_add_u32 s{S_DO[0]}, s{S_DO[0]}, s{S_T2}")
    if NG == 1:
        a(f"s_lshl_b32 s{S_T2}, s{S_GRP}, 21")
        a(f"s_add_u32 s{S_DO[0]}, s{S_DO[0]}, s{S_T2}")
    a(f"s_add_u32 s{S_DO[1]}, s{S_DO[0]}, 32768")
    a(f"s_add_u32 s{S_DO[2]}, s{S_DO[0]}, {4*524288}")
    a(f"s_add_u32 s{S_DO[3]}, s{S_DO[1]}, {4*524288}")
    stamp(a, 5)
    for i in range(4):
        a(f"s_waitcnt vmcnt({12 - 4*i})")
        if i == 0: stamp(a, 6)
        if i == 3: stamp(a, 7)
        for j in range(4):
            a(f"ds_read_b128 v[{V_KF+4*j}:{V_KF+4*j+3}], v{V_KRD+j} offset:{i*4096}")
        a("s_waitcnt lgkmcnt(0)")
        for g in range(NG):
            s = V_S + 16 * g + 4 * i
            for j in range(4):
                c = "0" if j == 0 else f"v[{s}:{s+3}]"
                a(f"v_mfma_f32_16x16x32_bf16 v[{s}:{s+3}], v[{V_KF+4*j}:{V_KF+4*j+3}], v[{V_Q+16*g+4*j}:{V_Q+16*g+4*j+3}], {c}")
    a(f"s_load_dword s{S_NON}, s[{S_DBG}:{S_DBG+1}], 0")
    a.nop(7)
    for i in range(4):
        a(f"s_cmp_lt_i32 s{S_REM+i}, 16")
        a(f"s_cbranch_scc1 {tag}_DM{i}")
        a(f"s_cmp_eq_u32 s{S_MIXED}, 0")
        a(f"s_cbranch_scc1 {tag}_NM{i}")
        a(f"s_cmp_eq_u32 s{S_OWN+i}, -1")
        a(f"s_cbranch_scc1 {tag}_NM{i}")
        a.label(f"{tag}_DM{i}")
        for r in range(4):
            a(f"v_cmp_gt_i32 s[{S_MSK+2*r}:{S_MSK+2*r+1}], s{S_REM+i}, v{V_TOK+r}")
        for g in range(NG):
            if NG == 1:
                a(f"s_lshl_b32 s{S_T0}, s{S_GRP}, 2")
                a(f"s_sub_u32 s{S_T0}, s{S_OWN+i}, s{S_T0}")
            else:
                a(f"s_sub_u32 s{S_T0}, s{S_OWN+i}, {4*g}")
            a(f"v_cmp_eq_u32 s[{S_OM+2*g}:{S_OM+2*g+1}], s{S_T0}, v{V_CB}")
            a(f"s_cmp_eq_u32 s{S_OWN+i}, -1")
            a(f"s_cselect_b64 s[{S_OM+2*g}:{S_OM+2*g+1}], -1, s[{S_OM+2*g}:{S_OM+2*g+1}]")
        for g in range(NG):
            for r in range(4):
                s = V_S + 16 * g + 4 * i + r
                a(f"s_and_b64 vcc, s[{S_MSK+2*r}:{S_MSK+2*r+1}], s[{S_OM+2*g}:{S_OM+2*g+1}]")
                a(f"v_cndmask_b32 v{s}, v{V_NEG}, v{s}, vcc")
        a.label(f"{tag}_NM{i}")
    for g in range(NG):
        s = V_S + 16 * g
        x = V_X + 1 + 2 * g
        a(f"v_max3_f32 v{x}, v{s}, v{s+1}, v{s+2}")
        for k in range(3, 15, 2):
            a(f"v_max3_f32 v{x}, v{x}, v{s+k}, v{s+k+1}")
        a(f"v_max_f32 v{x}, v{x}, v{s+15}")
    def xreduce(op):
        for swap in ("v_permlane16_swap_b32", "v_permlane32_swap_b32"):
            for g in range(NG):
                x = V_X + 1 + 2 * g
                a(f"v_mov_b32 v{x+1}, v{x}")
            a.nop(2)
            for g in range(NG):
                x = V_X + 1 + 2 * g
                a(f"{swap} v{x}, v{x+1}")
            a.nop(1)
            for g in range(NG):
                x = V_X + 1 + 2 * g
                a(f"{op} v{x}, v{x}, v{x+1}")
    xreduce("v_max_f32")
    a(f"s_lshl_b32 s{S_T0}, s{S_W}, 2")
    a(f"v_add_u32 v{V_T0}, s{S_T0}, v{V_MADDR}")
    for g in range(NG):
        a(f"ds_write_b32 v{V_T0}, v{V_X+1+2*g} offset:{g*512}")
    set_flag(a, 0)
    def vissue(lo=0, hi=4):
        for ii in range(lo, hi):
            a(f"s_add_u32 m0, s{S_M0B}, {ii*4096}")
            a.nop(1)
            for j in range(4):
                a(f"buffer_load_dwordx4 v{V_VOFF+j}, s[{SRD_V}:{SRD_V+3}], s{S_SOFF+ii} offen offset:{1024*j} {POL} lds")
    vissue(0, VSPLIT)
    a(f"s_cmp_ge_u32 s{S_W}, 4")
    a(f"s_cbranch_scc1 {tag}_V1")
    vissue(VSPLIT, 4)
    a.label(f"{tag}_V1")
    poll_flags(a, f"{tag}_PM", 0)
    stamp(a, 8)
    for g in range(NG):
        k = V_KF + 8 * g
        a(f"ds_read_b128 v[{k}:{k+3}], v{V_MADDR} offset:{g*512}")
        a(f"ds_read_b128 v[{k+4}:{k+7}], v{V_MADDR} offset:{g*512+16}")
    a("s_waitcnt lgkmcnt(0)")
    for g in range(NG):
        k = V_KF + 8 * g
        a(f"v_max3_f32 v{k}, v{k}, v{k+1}, v{k+2}")
        a(f"v_max3_f32 v{k+3}, v{k+3}, v{k+4}, v{k+5}")
        a(f"v_max3_f32 v{k}, v{k}, v{k+6}, v{k+7}")
        a(f"v_max_f32 v{k}, v{k}, v{k+3}")
        a(f"v_mul_f32 v{V_MC+g}, s{S_C}, v{k}")
    for g in range(NG):
        for k in range(16):
            s = V_S + 16 * g + k
            a(f"v_fma_f32 v{s}, v{s}, s{S_C}, -v{V_MC+g}")
        for k in range(16):
            s = V_S + 16 * g + k
            a(f"v_exp_f32 v{s}, v{s}")
    a.nop(1)
    for g in range(NG):
        for i in range(4):
            s = V_S + 16 * g + 4 * i
            p = V_P + 8 * g + 2 * i
            a(f"v_cvt_pk_bf16_f32 v{p}, v{s}, v{s+1}")
            a(f"v_cvt_pk_bf16_f32 v{p+1}, v{s+2}, v{s+3}")
    def prow_off(i, g):
        if NG == 1:
            return i * 4096
        return (i % 3) * 8192 + g * 4096
    nrows0 = 4 if NG == 1 else 3
    for i in range(nrows0):
        for g in range(NG):
            p = V_P + 8 * g + 2 * i
            a(f"ds_write_b64 v{V_PWR}, v[{p}:{p+1}] offset:{prow_off(i, g)}")
    for g in range(NG):
        s = V_S + 16 * g
        x = V_X + 1 + 2 * g
        for k in range(0, 16, 2):
            a(f"v_add_f32 v{s+k}, v{s+k}, v{s+k+1}")
        for k in range(0, 16, 4):
            a(f"v_add_f32 v{s+k}, v{s+k}, v{s+k+2}")
        a(f"v_add_f32 v{s}, v{s}, v{s+4}")
        a(f"v_add_f32 v{s+8}, v{s+8}, v{s+12}")
        a(f"v_add_f32 v{x}, v{s}, v{s+8}")
    xreduce("v_add_f32")
    a(f"v_add_u32 v{V_T0}, 1024, v{V_T0}")
    for g in range(NG):
        a(f"ds_write_b32 v{V_T0}, v{V_X+1+2*g} offset:{g*512}")
    set_flag(a, 32)
    a(f"s_cmp_lt_u32 s{S_W}, 4")
    a(f"s_cbranch_scc1 {tag}_V2")
    vissue(VSPLIT, 4)
    a.label(f"{tag}_V2")
    poll_flags(a, f"{tag}_PP", 32)
    def preg(i, g, u):
        return PREG[(i * 4 + u) * NG + g]
    def pread(i):
        for u in range(4):
            for g in range(NG):
                A = preg(i, g, u)
                a(f"ds_read_b128 v[{A}:{A+3}], v{V_PRD} offset:{prow_off(i, g) + u*1024}")
    for i in range(nrows0):
        pread(i)
        if NG == 2:
            a("s_waitcnt lgkmcnt(0)")
        elif i == 2:
            a("s_waitcnt lgkmcnt(4)")
    def mlpub():
        a(f"s_cmp_lg_u32 s{S_W}, {MLWAVE}")
        a(f"s_cbranch_scc1 {tag}_NOML")
        a(f"s_lshl_b32 s{S_T1}, s{S_KVH}, 10")
        a(f"s_add_u32 s{S_T1}, s{S_T1}, 0x{WS_ML:x}")
        if NG == 1:
            a(f"s_lshl_b32 s{S_T2}, s{S_GRP}, 15")
            a(f"s_add_u32 s{S_T1}, s{S_T1}, s{S_T2}")
        for g in range(NG):
            X = V_X
            a(f"ds_read_b128 v[{X}:{X+3}], v{V_MADDR} offset:{1024+g*512}")
            a(f"ds_read_b128 v[{X+4}:{X+7}], v{V_MADDR} offset:{1024+g*512+16}")
            a("s_waitcnt lgkmcnt(0)")
            for t in range(4):
                a(f"v_add_f32 v{X+t}, v{X+t}, v{X+t+4}")
            a(f"v_add_f32 v{X}, v{X}, v{X+1}")
            a(f"v_add_f32 v{X+2}, v{X+2}, v{X+3}")
            a(f"v_add_f32 v{X+6}, v{X}, v{X+2}")
            a(f"v_mov_b32 v{X+4}, v{V_MC+g}")
            a(f"v_mov_b32 v{X+5}, v{V_N}")
            a(f"v_mov_b32 v{X+7}, v{V_N}")
            if g == 1:
                a(f"s_add_u32 s{S_T1}, s{S_T1}, 32768")
            a(f"s_mov_b64 exec, s[{EM[g]}:{EM[g]+1}]")
            a(f"buffer_store_dwordx4 v[{X+4}:{X+7}], v{VM[g]}, s[{SRD_WS}:{SRD_WS+3}], s{S_T1} offen sc1")
            a("s_mov_b64 exec, -1")
            if g == 0 and NG == 2:
                a.nop(2)
        a.label(f"{tag}_NOML")
    a(f"v_mov_b32 v{V_N}, s{S_NON}")
    get_nonce(a, tag)
    for g in range(NG):
        for rho in range(2):
            G = V_G0 + 8 * g + 4 * rho
            a(f"v_mov_b32 v{G+1}, v{V_N}")
            a(f"v_mov_b32 v{G+3}, v{V_N}")
    a("s_waitcnt lgkmcnt(0)")
    mlpub()
    for i in range(4):
        a(f"s_waitcnt vmcnt({12-4*i}) lgkmcnt(0)")
        a("s_barrier")
        stamp(a, 9 + i)
        for u in range(4):
            B = V_B + 4 * u
            for h in range(2):
                wv = 2 * u + h
                base = V_VTLO if wv < 4 else V_VTHI
                off = (wv & 3) * 16384 + i * 4096
                a(f"ds_read_b64_tr_b16 v[{B+2*h}:{B+2*h+1}], v{base} offset:{off}")
        extra = 0
        if NG == 2 and i == 0:
            for g in range(NG):
                p = V_P + 8 * g + 6
                a(f"ds_write_b64 v{V_PWR}, v[{p}:{p+1}] offset:{prow_off(3, g)}")
            extra = 2
        for u in range(4):
            n = 2 * (3 - u) + extra
            assert n <= 15
            a(f"s_waitcnt lgkmcnt({n})")
            B = V_B + 4 * u
            for g in range(NG):
                A = preg(i, g, u)
                acc = V_ACC + 4 * g
                c = "0" if (i == 0 and u == 0) else f"v[{acc}:{acc+3}]"
                a(f"v_mfma_f32_16x16x32_bf16 v[{acc}:{acc+3}], v[{A}:{A+3}], v[{B}:{B+3}], {c}")
            if NG == 2 and i == 1 and u == 0:
                pread(3)
                extra = 8
    a.nop(8)
    for g in range(NG):
        for rho in range(2):
            G = V_G0 + 8 * g + 4 * rho
            a(f"v_bfi_b32 v{G}, s{S_FF}, v{V_N}, v{V_ACC+4*g+2*rho}")
            a(f"v_bfi_b32 v{G+2}, s{S_FF}, v{V_N}, v{V_ACC+4*g+2*rho+1}")
    for g in range(NG):
        a(f"s_mov_b64 exec, s[{EX[g]}:{EX[g]+1}]")
        for rho in range(2):
            G = V_G0 + 8 * g + 4 * rho
            a(f"buffer_store_dwordx4 v[{G}:{G+3}], v{VS[g]}, s[{SRD_WS}:{SRD_WS+3}], s{S_DO[2*g+rho]} offen sc1")
    a("s_mov_b64 exec, -1")

HEADER = """; paged decode attention (radix shared prefix aware), single launch, in-kernel split-KV combine
; @launch grid=(256,1,1) block=(512,1,1) lds={lds}
.amdgcn_target "amdgcn-amd-amdhsa--gfx950"
.text
"""

def kd(name, vgpr, sgpr):
    acc = (vgpr + 3) // 4 * 4
    return f""".amdhsa_kernel {name}
  .amdhsa_next_free_vgpr {vgpr}
  .amdhsa_next_free_sgpr {sgpr}
  .amdhsa_accum_offset {acc}
  .amdhsa_group_segment_fixed_size 0
  .amdhsa_kernarg_size 64
  .amdhsa_user_sgpr_count 2
  .amdhsa_user_sgpr_kernarg_segment_ptr 1
  .amdhsa_system_sgpr_workgroup_id_x 1
.end_amdhsa_kernel
"""

def main(out):
    t = HEADER.format(lds=LDS_TOTAL)
    a = Asm()
    kernelA(a)
    t += f".globl {KNAME}\n.p2align 8\n.type {KNAME},@function\n" + a.text()
    t += '.section .rodata,"a"\n.p2align 6\n' + kd(KNAME, V_END, 102)
    open(out, "w").write(t)

if __name__ == "__main__":
    main(sys.argv[1] if len(sys.argv) > 1 else f"cdna_kernels/{NAME}.s")
```

```python
import struct, sys, math, os

NAME = "standalone__paged_block_table_kv_radixattention__decode"
KNAME = NAME + "_kernel"
E = os.environ.get
STAMP = int(E('STAMP', '0'))
POL = E('POL', 'nt')
PRIO = int(E('PRIO', '1'))
SLEEP = int(E('SLEEP', '2'))
NOCONS = int(E('NOCONS', '0'))
MLROW = int(E('MLROW', '-1'))
MLWAVE = int(E('MLWAVE', '0'))
CNTS = [int(x) for x in E('CNT', '30,40,29,29,30,40,29,29').split(',')]
assert sum(CNTS) == 256 and min(CNTS) >= 16
VSPLIT1 = int(E('VSPLIT', '1'))
VSPLIT2 = int(E('VSPLIT2', '1'))
COFF = int(E('COFF', '0'))
PIPE = int(E('PIPE', '1'))
PSLEEP = int(E('PSLEEP', '1'))
SPEC = int(E('SPEC', '1'))
SPECA = int(E('SPECA', '2'))
PFIRST = int(E('PFIRST', '0'))
TMIN = int(E('TMIN', '20'))
NCONS = int(E('NCONS', '128'))

def _pred():
    ctx = [4096 - ((b + 1) * 2654435761) % 1024 for b in range(8)]
    S = 128
    n = [(c + 15) // 16 - S for c in ctx]
    P = [S]
    for x in n: P.append(P[-1] + x)
    off = [128 + 128 * b - P[b] for b in range(8)]
    steps = [(P[b], off[b] - off[b - 1]) for b in range(1, 8)]
    assert off[0] == 0 and all(0 < d <= 64 for _, d in steps), steps
    return P[-1], S, steps
PRED_N, PRED_S, PRED_STEPS = _pred()

def f32bits(x):
    return struct.unpack("<I", struct.pack("<f", x))[0]

class Asm:
    def __init__(self):
        self.lines = []
    def __call__(self, s):
        self.lines.append("  " + s)
    def label(self, s):
        self.lines.append(s + ":")
    def nop(self, n):
        while n > 0:
            k = min(n, 16)
            self.lines.append("  s_nop %d" % (k - 1))
            n -= k
    def c(self, s):
        self.lines.append("  ; " + s)
    def text(self):
        return "\n".join(self.lines) + "\n"

KV_BYTES = 1152 * 32768
NEG = 0xF1800000
CSCALE = f32bits((128 ** -0.5) * math.log2(math.e))
LDS_P = 131072
LDS_TBL = LDS_P
LDS_SW = LDS_P + 8192
LDS_Q = LDS_P + 12288
LDS_M = LDS_P + 24576
LDS_L = LDS_M + 1024
LDS_PLAN = LDS_L + 1024
LDS_FLAG = LDS_PLAN + 64
LDS_TOTAL = LDS_FLAG + 64
WS_ML = 4 << 20
WS_EPOCH = WS_ML + 65536
WS_SIZE = 8 << 20
WS_STAMP = 6 << 20
NS = 16
OOB = 0x80000000

S_W = 3
S_L0X = 4
S_LE8X = 6
S_Q, S_K, S_V, S_BT, S_CTX, S_OUT, S_DBG, S_WS = 8, 10, 12, 14, 16, 18, 20, 22
SRD_K, SRD_V, SRD_Q, SRD_WS = 24, 28, 32, 36
S_CTXW, S_S, S_IT, S_KVH, S_N, S_T, S_F0, S_HI, S_FB, S_NSH, S_PM, S_MIXED, S_GRP, S_NG2 = range(40, 54)
S_LANE = 54
S_SOFF = 60
S_REM = 64
S_T0, S_T1, S_T2, S_T3 = 68, 69, 70, 71
S_MSK = 72
S_C, S_M0B, S_KVH256, S_QM0, S_QSOFF = 80, 81, 82, 83, 84
S_CNT, S_FF, S_SPIN, S_PEND = 86, 87, 88, 89
S_OWN = 90
S_MM = 94
S_OM = 96
S_CB = 53
S_RHO = 59
S_RND = 85
S_NIT = 48
S_TM = 100
S_IT0 = 101
S_NON = 58
S_EX = 8
S_EM = 12
S_DO = [16, 17, 22, 23]

V_LANE, V_T0, V_T1, V_T2, V_T3 = 1, 2, 3, 4, 5
V_G, V_C = 6, 7
V_ROW = 8
V_ROW0 = 12
V_KOFF = 16
V_VOFF = 20
V_KRD = 24
V_LJ = 28
V_VTLO, V_VTHI = 32, 33
V_PRD, V_PWR, V_MADDR, V_ROWB = 34, 35, 36, 37
V_TOK = 38
V_QOFF, V_OOFF, V_MLOFF, V_CTXA, V_NEG, V_CB = 42, 43, 44, 45, 46, 47
V_MC = 48
V_L = 50
V_X = 52
V_Q = 68
V_KF = 100
V_S = 116
V_P = 148
V_A = 164
V_B = 164
V_ACC = 188
V_STAMP = 196
V_N = 197
V_ZERO = 198
V_G0 = 200
V_D = 216
V_VS = 52 + 8
V_FLG = 199
V_END = 256
PREG = [68 + 4*k for k in range(20)] + [180, 184, 216, 220] + [224 + 4*k for k in range(8)]

def stamp(a, idx):
    if not STAMP: return
    a("s_memrealtime s[98:99]")
    a("s_waitcnt lgkmcnt(0)")
    a(f"v_writelane_b32 v{V_STAMP}, s98, {idx}")
def stamp_out(a):
    if not STAMP: return
    a(f"v_lshlrev_b32 v{V_T0}, 2, v{V_LANE}")
    a("s_mov_b64 exec, 0xffff")
    a(f"s_lshl_b32 s{S_T0}, s2, 3")
    a(f"s_add_u32 s{S_T0}, s{S_T0}, s{S_W}")
    a(f"s_lshl_b32 s{S_T0}, s{S_T0}, 6")
    a(f"s_add_u32 s{S_T0}, s{S_T0}, 0x{WS_STAMP:x}")
    a(f"buffer_store_dword v{V_STAMP}, v{V_T0}, s[{SRD_WS}:{SRD_WS+3}], s{S_T0} offen")
    a("s_mov_b64 exec, -1")

vctx, vS, vn, vcum, vex, vj = V_D, V_D+1, V_D+2, V_D+3, V_D+4, V_D+5

def plan_extra(a, tag):
    X = V_X
    a(f"v_cvt_f32_u32 v{X}, s{S_T}")
    a(f"v_cmp_gt_u32 s[{S_MSK}:{S_MSK+1}], s{S_HI}, v{vex}")
    a(f"v_rcp_f32 v{X}, v{X}")
    a(f"v_cmp_lt_u32 s[{S_MSK+2}:{S_MSK+3}], s{S_F0}, v{vcum}")
    a(f"v_cmp_lt_u32 s[{S_MSK+4}:{S_MSK+5}], 0, v{vn}")
    a(f"v_cvt_f32_u32 v{X+1}, v{vex}")
    a(f"v_add_u32 v{X+2}, -1, v{vcum}")
    a(f"v_cvt_f32_u32 v{X+2}, v{X+2}")
    a(f"s_and_b32 s{S_T0}, s{S_MSK}, s{S_MSK+2}")
    a(f"s_and_b32 s{S_T0}, s{S_T0}, s{S_MSK+4}")
    a(f"s_and_b32 s{S_T0}, s{S_T0}, 0x1ff")
    a(f"v_mul_f32 v{X+1}, v{X+1}, v{X}")
    a(f"v_mul_f32 v{X+2}, v{X+2}, v{X}")
    a(f"v_add_f32 v{X+1}, 0x3ba3d70a, v{X+1}")
    a(f"v_add_f32 v{X+2}, 0x3ba3d70a, v{X+2}")
    a(f"v_cvt_u32_f32 v{X+1}, v{X+1}")
    a(f"v_cvt_u32_f32 v{X+2}, v{X+2}")
    a(f"s_bcnt1_i32_b32 s{S_T1}, s{S_T0}")
    a(f"s_cmp_gt_u32 s{S_T1}, 1")
    a(f"s_cselect_b32 s{S_MIXED}, 1, 0")
    a(f"s_lshr_b32 s{S_T1}, s{S_T0}, 1")
    a(f"v_readlane_b32 s{S_NSH}, v{X+2}, 0")
    a(f"s_and_b32 s{S_T2}, s{S_T1}, 0xf")
    a(f"s_cmp_eq_u32 s{S_T2}, 0")
    a(f"s_cselect_b32 s{S_GRP}, 1, 0")
    a(f"s_lshr_b32 s{S_T3}, s{S_T1}, 4")
    a(f"s_min_u32 s{S_T2}, s{S_T2}, 1")
    a(f"s_min_u32 s{S_T3}, s{S_T3}, 1")
    a(f"s_and_b32 s{S_T2}, s{S_T2}, s{S_T3}")
    a(f"s_and_b32 s{S_T3}, s{S_T0}, 1")
    a(f"s_or_b32 s{S_NG2}, s{S_T2}, s{S_T3}")
    a(f"s_cmp_lg_u32 s{S_T3}, 0")
    a(f"s_cselect_b32 s{S_PM}, 0xff, s{S_T1}")
    a(f"s_add_u32 s{S_NSH}, s{S_NSH}, 1")
    a(f"s_cmp_eq_u32 s{S_S}, 0")
    a(f"s_cselect_b32 s{S_NSH}, 0, s{S_NSH}")
    a(f"v_max_u32 v{X+1}, s{S_NSH}, v{X+1}")
    a(f"v_add_u32 v{X+2}, 1, v{X+2}")
    a(f"v_sub_u32 v{X+2}, v{X+2}, v{X+1}")
    a(f"v_max_i32 v{X+2}, 0, v{X+2}")
    a(f"v_cndmask_b32 v{X+2}, 0, v{X+2}, s[{S_MSK+4}:{S_MSK+5}]")
    a(f"v_subrev_u32 v{X+1}, s{S_NSH}, v{X+1}")
    a(f"v_add_u32 v{X+2}, s{S_NSH}, v{X+2}")
    a(f"v_lshlrev_b32 v{X+3}, 2, v{V_C}")
    a(f"v_add_u32 v{X+3}, 0x{LDS_PLAN:x}, v{X+3}")
    a(f"ds_write_b32 v{X+3}, v{X+1}")
    a(f"s_lshr_b32 s{S_T1}, s{S_IT0}, 1")
    a(f"s_and_b32 s{S_T1}, s{S_T1}, 7")
    a(f"s_add_u32 s{S_T1}, s{S_T1}, 1")
    a(f"v_readlane_b32 s{S_CNT}, v{X+2}, s{S_T1}")

def kernelA(a: Asm):
    a.label(KNAME)
    a("s_cmp_ge_u32 s2, 256")
    a("s_cbranch_scc1 A_END")
    if STAMP:
        a("s_memrealtime s[98:99]")
    a("s_load_dwordx16 s[8:23], s[0:1], 0")
    if PRIO:
        a("s_setprio 3")
    a(f"v_and_b32 v{V_LANE}, 63, v0")
    a(f"v_lshrrev_b32 v{V_T0}, 6, v0")
    a(f"v_lshlrev_b32 v{V_T1}, 4, v{V_LANE}")
    a(f"v_readfirstlane_b32 s{S_W}, v{V_T0}")
    a(f"v_lshlrev_b32 v{V_T2}, 4, v0")
    a(f"v_lshrrev_b32 v{V_G}, 4, v{V_LANE}")
    a(f"v_and_b32 v{V_C}, 15, v{V_LANE}")
    assert CNTS[:4] == CNTS[4:]
    pre = [sum(CNTS[:h]) for h in range(4)]
    a(f"s_and_b32 s{S_IT}, s2, 127")
    a(f"s_lshr_b32 s{S_KVH}, s2, 7")
    a(f"s_lshl_b32 s{S_KVH}, s{S_KVH}, 2")
    a(f"s_mov_b32 s{S_T0}, 0")
    a(f"s_mov_b32 s{S_T1}, 0")
    a(f"s_mov_b32 s{S_NIT}, {CNTS[0]}")
    a(f"s_mov_b32 s{S_TM}, {-(-65536//CNTS[0])}")
    for h in range(1, 4):
        a(f"s_cmp_ge_u32 s{S_IT}, {pre[h]}")
        a(f"s_cselect_b32 s{S_T1}, {h}, s{S_T1}")
        a(f"s_cselect_b32 s{S_T0}, {pre[h]}, s{S_T0}")
        a(f"s_cselect_b32 s{S_NIT}, {CNTS[h]}, s{S_NIT}")
        a(f"s_cselect_b32 s{S_TM}, {-(-65536//CNTS[h])}, s{S_TM}")
    a(f"s_sub_u32 s{S_IT}, s{S_IT}, s{S_T0}")
    a(f"s_add_u32 s{S_KVH}, s{S_KVH}, s{S_T1}")
    a(f"s_sub_u32 s{S_IT0}, s{S_IT}, {COFF}")
    a(f"s_and_b32 s{S_T0}, s{S_W}, 3")
    a(f"s_lshl_b32 s{S_T0}, s{S_T0}, 2")
    a(f"v_add_u32 v{V_T0}, s{S_T0}, v{V_G}")
    a(f"v_xor_b32 v{V_T0}, v{V_T0}, v{V_C}")
    a(f"v_lshlrev_b32 v{V_T0}, 4, v{V_T0}")
    a(f"v_lshl_add_u32 v{V_QOFF}, v{V_G}, 8, v{V_T0}")
    a(f"s_lshl_b32 s{S_KVH256}, s{S_KVH}, 8")
    a(f"s_lshl_b32 s{S_QSOFF}, s{S_W}, 13")
    a(f"s_lshl_b32 s{S_T0}, s{S_KVH}, 10")
    a(f"s_add_u32 s{S_QSOFF}, s{S_QSOFF}, s{S_T0}")
    a(f"s_lshl_b32 s{S_QM0}, s{S_W}, 10")
    a(f"s_add_u32 s{S_QM0}, s{S_QM0}, 0x{LDS_Q:x}")
    a(f"s_lshl_b32 s{S_M0B}, s{S_W}, 14")
    for j in range(4):
        a(f"v_add_u32 v{V_T0}, {4*j}, v{V_G}")
        a(f"v_xor_b32 v{V_T3}, v{V_T0}, v{V_C}")
        a(f"v_lshlrev_b32 v{V_T3}, 4, v{V_T3}")
        a(f"v_lshl_add_u32 v{V_KOFF+j}, v{V_T0}, 11, v{V_T3}")
        if j:
            a(f"v_subrev_u32 v{V_KOFF+j}, {1024*j}, v{V_KOFF+j}")
        a(f"v_lshl_add_u32 v{V_LJ+j}, v{V_C}, 8, v{V_T3}")
    if SPEC:
        PN, PS = PRED_N, PRED_S
        a(f"s_cmp_ge_u32 s{S_W}, 4")
        a("s_cbranch_scc1 A_NOPRED")
        a(f"s_add_u32 s{S_T0}, s{S_NIT}, {PN - 1}")
        a(f"s_mul_i32 s{S_T0}, s{S_T0}, s{S_TM}")
        a(f"s_lshr_b32 s{S_T0}, s{S_T0}, 16")
        a(f"s_max_u32 s{S_T0}, s{S_T0}, {TMIN}")
        a(f"s_min_u32 s{S_T0}, s{S_T0}, 32")
        a(f"s_mul_i32 s{S_T2}, s{S_IT}, s{S_T0}")
        a(f"s_add_u32 s{S_T0}, s{S_T2}, s{S_T0}")
        a(f"s_min_u32 s{S_T0}, s{S_T0}, {PN}")
        a(f"s_add_u32 s{S_T2}, s{S_T2}, s{S_W}")
        X = V_X
        a(f"v_lshl_add_u32 v{X}, v{V_LANE}, 3, s{S_T2}")
        a(f"v_mov_b32 v{X+1}, v{X}")
        for th, dl in PRED_STEPS:
            a(f"v_subrev_u32 v{X+2}, {th - 1}, v{X}")
            a(f"v_med3_i32 v{X+2}, v{X+2}, 0, 1")
            a(f"v_mad_u32_u24 v{X+1}, v{X+2}, {dl}, v{X+1}")
        a(f"v_lshl_add_u32 v{X+1}, v{X+1}, 15, s{S_KVH256}")
        a(f"v_cmp_gt_u32 vcc, s{S_T0}, v{X}")
        a(f"v_mov_b32 v{X+2}, 0x{OOB:x}")
        a.nop(1)
        a(f"v_cndmask_b32 v{X+1}, v{X+2}, v{X+1}, vcc")
        a.nop(1)
        for i in range(4):
            a(f"v_readlane_b32 s{S_REM+i}, v{X+1}, {i}")
        a.label("A_NOPRED")
    a(f"s_lshl_b32 s{S_T1}, s{S_W}, 2")
    a("s_waitcnt lgkmcnt(0)")
    if STAMP:
        a(f"v_writelane_b32 v{V_STAMP}, s98, 0")
    stamp(a, 1)
    a(f"global_load_dwordx4 v[{V_ROW}:{V_ROW+3}], v{V_T2}, s[{S_BT}:{S_BT+1}]")
    a(f"global_load_dwordx4 v[{V_ROW0}:{V_ROW0+3}], v{V_T1}, s[{S_BT}:{S_BT+1}]")
    a(f"s_load_dword s{S_CTXW}, s[{S_CTX}:{S_CTX+1}], s{S_T1}")
    def srd(srd, p, sz):
        a(f"s_mov_b32 s{srd}, s{p}")
        a(f"s_and_b32 s{srd+1}, s{p+1}, 0xffff")
        a(f"s_mov_b32 s{srd+2}, 0x{sz:x}")
        a(f"s_mov_b32 s{srd+3}, 0x20000")
    srd(SRD_Q, S_Q, 65536)
    a(f"s_mov_b32 m0, s{S_QM0}")
    srd(SRD_K, S_K, KV_BYTES)
    a(f"buffer_load_dwordx4 v{V_QOFF}, s[{SRD_Q}:{SRD_Q+3}], s{S_QSOFF} offen lds")
    if SPEC:
        a("s_barrier")
        a(f"s_cmp_ge_u32 s{S_W}, 4")
        a("s_cbranch_scc1 A_NOSPEC")
        for i in range(SPECA):
            a(f"s_add_u32 m0, s{S_M0B}, {i*4096}")
            a.nop(1)
            for j in range(4):
                a(f"buffer_load_dwordx4 v{V_KOFF+j}, s[{SRD_K}:{SRD_K+3}], s{S_REM+i} offen offset:{1024*j} {POL} lds")
        a.label("A_NOSPEC")
    srd(SRD_V, S_V, KV_BYTES)
    srd(SRD_WS, S_WS, WS_SIZE)
    a(f"s_mov_b32 s{S_C}, 0x{CSCALE:08x}")
    a(f"s_mov_b32 s{S_L0X}, 0x00010001")
    a(f"s_mov_b32 s{S_L0X+1}, 0x00010001")
    a(f"s_mov_b32 s{S_LE8X}, 0x01ff01ff")
    a(f"s_mov_b32 s{S_LE8X+1}, 0x01ff01ff")
    a(f"v_mov_b32 v{V_NEG}, 0x{NEG:08x}")
    a(f"v_mov_b32 v{V_ZERO}, 0")
    a(f"s_movk_i32 s{S_FF}, 0xff")
    a("s_cmp_lg_u32 s2, 0")
    a("s_cbranch_scc1 A_NOEP")
    a(f"s_cmp_lg_u32 s{S_W}, 7")
    a("s_cbranch_scc1 A_NOEP")
    a(f"s_mov_b32 s{S_T0}, 0x{WS_EPOCH:x}")
    a(f"buffer_load_dword v{V_N}, v{V_ZERO}, s[{SRD_WS}:{SRD_WS+3}], s{S_T0} offen sc1")
    a("s_waitcnt vmcnt(0)")
    a(f"v_add_u32 v{V_N}, 1, v{V_N}")
    a(f"v_max_u32 v{V_N}, 1, v{V_N}")
    a("s_mov_b64 exec, 1")
    a(f"buffer_store_dword v{V_N}, v{V_ZERO}, s[{SRD_WS}:{SRD_WS+3}], s{S_T0} offen sc1")
    a(f"global_store_dword v{V_ZERO}, v{V_N}, s[{S_DBG}:{S_DBG+1}] sc0 sc1")
    a("s_mov_b64 exec, -1")
    a.label("A_NOEP")
    for j in range(4):
        a(f"v_add_u32 v{V_T0}, {4*j}, v{V_G}")
        a(f"v_and_b32 v{V_T3}, 7, v{V_T0}")
        a(f"v_lshlrev_b32 v{V_T3}, 1, v{V_T3}")
        a(f"v_xor_b32 v{V_T3}, v{V_T3}, v{V_C}")
        a(f"v_lshlrev_b32 v{V_T3}, 4, v{V_T3}")
        a(f"v_lshl_add_u32 v{V_VOFF+j}, v{V_T0}, 11, v{V_T3}")
        if j:
            a(f"v_subrev_u32 v{V_VOFF+j}, {1024*j}, v{V_VOFF+j}")
    for j in range(4):
        a(f"v_add_u32 v{V_KRD+j}, s{S_M0B}, v{V_LJ+j}")
        a(f"v_add_u32 v{V_LJ+j}, 0x{LDS_Q:x}, v{V_LJ+j}")
    a(f"v_lshrrev_b32 v{V_CB}, 2, v{V_C}")
    a(f"v_lshl_add_u32 v{V_T0}, v{V_G}, 2, v{V_CB}")
    a(f"v_and_b32 v{V_T3}, 7, v{V_T0}")
    a(f"v_xor_b32 v{V_T3}, s{S_W}, v{V_T3}")
    a(f"v_lshlrev_b32 v{V_T3}, 5, v{V_T3}")
    a(f"v_lshl_add_u32 v{V_T3}, v{V_T0}, 8, v{V_T3}")
    a(f"v_and_b32 v{V_T0}, 3, v{V_C}")
    a(f"v_lshl_add_u32 v{V_VTLO}, v{V_T0}, 3, v{V_T3}")
    a(f"v_add_u32 v{V_VTHI}, 0x10000, v{V_VTLO}")
    a(f"v_add_u32 v{V_PRD}, 0x{LDS_P:x}, v{V_T1}")
    a(f"s_lshr_b32 s{S_T0}, s{S_W}, 1")
    a(f"s_lshl_b32 s{S_T0}, s{S_T0}, 10")
    a(f"s_and_b32 s{S_T1}, s{S_W}, 1")
    a(f"s_lshl_b32 s{S_T1}, s{S_T1}, 3")
    a(f"s_add_u32 s{S_T0}, s{S_T0}, s{S_T1}")
    a(f"v_add_u32 v{V_PWR}, s{S_T0}, v{V_PRD}")
    a(f"v_lshlrev_b32 v{V_MADDR}, 5, v{V_C}")
    a(f"v_add_u32 v{V_MADDR}, 0x{LDS_M:x}, v{V_MADDR}")
    for r in range(4):
        a(f"v_lshl_add_u32 v{V_TOK+r}, v{V_G}, 2, {r}")
    a(f"v_lshlrev_b32 v{V_T0}, 19, v{V_G}")
    a(f"v_lshl_add_u32 v{V_OOFF}, v{V_C}, 4, v{V_T0}")
    a(f"v_lshlrev_b32 v{V_T0}, 13, v{V_CB}")
    a(f"v_and_b32 v{V_T3}, 3, v{V_C}")
    a(f"v_lshl_add_u32 v{V_MLOFF}, v{V_T3}, 8, v{V_T0}")
    a(f"v_add_u32 v{V_T0}, -1, v{V_C}")
    a(f"v_and_b32 v{V_T3}, 7, v{V_T0}")
    a(f"v_lshlrev_b32 v{V_T3}, 2, v{V_T3}")
    a(f"v_add_u32 v{V_CTXA}, 0x{LDS_SW+32:x}, v{V_T3}")
    a(f"v_max_i32 v{V_T0}, 0, v{V_T0}")
    a(f"v_min_u32 v{V_T0}, 7, v{V_T0}")
    a(f"v_lshlrev_b32 v{V_T0}, 10, v{V_T0}")
    a(f"v_add_u32 v{V_ROWB}, 0x{LDS_TBL:x}, v{V_T0}")
    a("s_waitcnt lgkmcnt(0)")
    a(f"s_max_i32 s{S_CTXW}, s{S_CTXW}, 0")
    a(f"s_min_i32 s{S_CTXW}, s{S_CTXW}, 4096")
    a(f"s_mov_b32 s{S_RND}, 0")
    a(f"v_mov_b32 v{V_FLG}, 0x{LDS_FLAG:x}")
    a(f"s_lshl_b32 s{S_T0}, s{S_W}, 2")
    a(f"v_add_u32 v{V_T0}, s{S_T0}, v{V_FLG}")
    a(f"ds_write2_b32 v{V_T0}, v{V_ZERO}, v{V_ZERO} offset0:0 offset1:8")
    a.label("A_ROUND")
    a(f"s_add_u32 s{S_RND}, s{S_RND}, 1")
    a(f"v_lshlrev_b32 v{V_T0}, 4, v0")
    a(f"v_add_u32 v{V_T0}, 0x{LDS_TBL:x}, v{V_T0}")
    a(f"s_lshl_b32 s{S_T0}, s{S_W}, 2")
    a(f"s_add_u32 s{S_T0}, s{S_T0}, 0x{LDS_SW:x}")
    a(f"v_mov_b32 v{V_T3}, s{S_T0}")
    a(f"v_mov_b32 v{V_X+1}, s{S_CTXW}")
    a(f"s_lshr_b32 s{S_T1}, s{S_CTXW}, 4")
    a(f"v_mov_b32 v{V_T2}, 0x{LDS_SW:x}")
    stamp(a, 2)
    if SPEC:
        a(f"s_cmp_eq_u32 s{S_RND}, 1")
        a(f"s_cselect_b32 s{S_T2}, 4, 0")
        a(f"s_cmp_lt_u32 s{S_W}, s{S_T2}")
        a("s_cbranch_scc1 A_W16")
        a("s_waitcnt vmcnt(0)")
        a("s_branch A_WD")
        a.label("A_W16")
        a(f"s_waitcnt vmcnt({4*SPECA})")
        a.label("A_WD")
    else:
        a("s_waitcnt vmcnt(0)")
    stamp(a, 3)
    for e in range(4):
        a(f"v_cmp_ne_u32 s[{S_MSK+2*e}:{S_MSK+2*e+1}], v{V_ROW+e}, v{V_ROW0+e}")
    a(f"ds_write_b128 v{V_T0}, v[{V_ROW}:{V_ROW+3}]")
    a(f"s_or_b64 s[{S_MSK}:{S_MSK+1}], s[{S_MSK}:{S_MSK+1}], s[{S_MSK+2}:{S_MSK+3}]")
    a(f"s_or_b64 s[{S_MSK+4}:{S_MSK+5}], s[{S_MSK+4}:{S_MSK+5}], s[{S_MSK+6}:{S_MSK+7}]")
    a(f"s_or_b64 s[{S_MSK}:{S_MSK+1}], s[{S_MSK}:{S_MSK+1}], s[{S_MSK+4}:{S_MSK+5}]")
    a(f"s_ff1_i32_b64 s{S_T0}, s[{S_MSK}:{S_MSK+1}]")
    a(f"s_lshl_b32 s{S_T0}, s{S_T0}, 2")
    a(f"s_min_u32 s{S_T0}, s{S_T0}, s{S_T1}")
    a(f"v_mov_b32 v{V_X}, s{S_T0}")
    a(f"ds_write2_b32 v{V_T3}, v{V_X}, v{V_X+1} offset0:0 offset1:8")
    a("s_waitcnt lgkmcnt(0)")
    a("s_barrier")
    X = V_X
    if SPEC and SPECA < 4:
        a(f"s_cmp_eq_u32 s{S_RND}, 1")
        a(f"s_cselect_b32 s{S_T0}, 4, 0")
        a(f"s_cmp_lt_u32 s{S_W}, s{S_T0}")
        a("s_cbranch_scc0 A_NOSPEC2")
        for i in range(SPECA, 4):
            a(f"s_add_u32 m0, s{S_M0B}, {i*4096}")
            a.nop(1)
            for j in range(4):
                a(f"buffer_load_dwordx4 v{V_KOFF+j}, s[{SRD_K}:{SRD_K+3}], s{S_REM+i} offen offset:{1024*j} {POL} lds")
        a.label("A_NOSPEC2")
    a(f"ds_read_b128 v[{X}:{X+3}], v{V_T2}")
    a(f"ds_read_b128 v[{X+4}:{X+7}], v{V_T2} offset:16")
    a(f"ds_read_b32 v{vctx}, v{V_CTXA}")
    a("s_waitcnt lgkmcnt(0)")
    a(f"v_min3_u32 v{X}, v{X}, v{X+1}, v{X+2}")
    a(f"v_min3_u32 v{X+3}, v{X+3}, v{X+4}, v{X+5}")
    a(f"v_add_u32 v{vn}, 15, v{vctx}")
    a(f"v_min3_u32 v{X}, v{X}, v{X+6}, v{X+7}")
    a(f"v_lshrrev_b32 v{vn}, 4, v{vn}")
    a(f"v_min_u32 v{vS}, v{X}, v{X+3}")
    a(f"v_sub_u32 v{vn}, v{vn}, v{vS}")
    a(f"v_cndmask_b32 v{vn}, v{vn}, v{vS}, s[{S_L0X}:{S_L0X+1}]")
    a(f"v_cndmask_b32 v{vn}, 0, v{vn}, s[{S_LE8X}:{S_LE8X+1}]")
    a(f"v_mov_b32 v{vcum}, v{vn}")
    a(f"v_cndmask_b32 v{X+8}, v{vS}, 0, s[{S_L0X}:{S_L0X+1}]")
    a(f"v_readfirstlane_b32 s{S_S}, v{vS}")
    dpp = "row_mask:0xf bank_mask:0xf bound_ctrl:0"
    a(f"v_add_u32_dpp v{vcum}, v{vcum}, v{vcum} row_shr:1 {dpp}")
    a(f"v_lshlrev_b32 v{X+9}, 3, v{V_G}")
    a(f"v_add_u32 v{X+9}, s{S_W}, v{X+9}")
    a(f"v_add_u32_dpp v{vcum}, v{vcum}, v{vcum} row_shr:2 {dpp}")
    a.nop(2)
    a(f"v_add_u32_dpp v{vcum}, v{vcum}, v{vcum} row_shr:4 {dpp}")
    a.nop(2)
    a(f"v_add_u32_dpp v{vcum}, v{vcum}, v{vcum} row_shr:8 {dpp}")
    a.nop(1)
    a(f"v_readlane_b32 s{S_N}, v{vcum}, 8")
    a(f"v_sub_u32 v{vex}, v{vcum}, v{vn}")
    a(f"v_sub_u32 v{X+8}, v{vex}, v{X+8}")
    a(f"s_add_u32 s{S_T}, s{S_N}, s{S_NIT}")
    a(f"s_sub_u32 s{S_T}, s{S_T}, 1")
    a(f"s_mul_i32 s{S_T}, s{S_T}, s{S_TM}")
    a(f"s_lshr_b32 s{S_T}, s{S_T}, 16")
    a(f"s_max_u32 s{S_T}, s{S_T}, {TMIN}")
    a(f"s_min_u32 s{S_T}, s{S_T}, 32")
    a(f"s_mul_i32 s{S_F0}, s{S_IT}, s{S_T}")
    a(f"s_add_u32 s{S_HI}, s{S_F0}, s{S_T}")
    a(f"s_min_u32 s{S_HI}, s{S_HI}, s{S_N}")
    a(f"s_cmp_ge_u32 s{S_F0}, s{S_N}")
    a("s_cbranch_scc1 A_FIN0")
    a(f"v_add_u32 v{X+9}, s{S_F0}, v{X+9}")
    a(f"v_min_u32 v{X+10}, s{S_HI}, v{vcum}")
    a(f"v_cmp_gt_u32 vcc, v{X+10}, v{X+9}")
    a(f"v_cmp_le_u32 s[{S_MM}:{S_MM+1}], v{vex}, v{X+9}")
    a(f"v_sub_u32 v{vj}, v{X+9}, v{X+8}")
    a(f"v_min_u32 v{vj}, 255, v{vj}")
    a(f"v_lshl_add_u32 v{X+10}, v{vj}, 2, v{V_ROWB}")
    a(f"ds_read_b32 v{X+11}, v{X+10}")
    a(f"s_and_b64 s[{S_MM}:{S_MM+1}], s[{S_MM}:{S_MM+1}], vcc")
    a(f"v_mov_b32 v{X+12}, 0x{OOB:x}")
    for i in range(4):
        src = S_MM + (i >> 1)
        if i & 1:
            a(f"s_lshr_b32 s{S_LANE+i}, s{src}, 16")
        else:
            a(f"s_and_b32 s{S_LANE+i}, s{src}, 0xffff")
        a(f"s_or_b32 s{S_LANE+i}, s{S_LANE+i}, 0x8000")
        a(f"s_ff1_i32_b32 s{S_LANE+i}, s{S_LANE+i}")
        if i:
            a(f"s_add_u32 s{S_LANE+i}, s{S_LANE+i}, {16*i}")
    a(f"s_mov_b32 m0, s{S_M0B}")
    a("s_waitcnt lgkmcnt(0)")
    a(f"v_lshl_add_u32 v{X+11}, v{X+11}, 15, s{S_KVH256}")
    a(f"v_cndmask_b32 v{X+11}, v{X+12}, v{X+11}, s[{S_MM}:{S_MM+1}]")
    a.nop(1)
    for i in range(4):
        a(f"v_readlane_b32 s{S_SOFF+i}, v{X+11}, s{S_LANE+i}")
    a.nop(3)
    stamp(a, 4)
    if SPEC:
        a(f"s_cmp_eq_u32 s{S_RND}, 1")
        a(f"s_cselect_b32 s{S_T2}, 4, 0")
        a(f"s_cmp_lt_u32 s{S_W}, s{S_T2}")
        a("s_cbranch_scc0 A_KISS")
        a(f"s_cmp_eq_u64 s[{S_SOFF}:{S_SOFF+1}], s[{S_REM}:{S_REM+1}]")
        a("s_cbranch_scc0 A_KREDO")
        a(f"s_cmp_eq_u64 s[{S_SOFF+2}:{S_SOFF+3}], s[{S_REM+2}:{S_REM+3}]")
        a("s_cbranch_scc1 A_KDONE")
        a.label("A_KREDO")
        a("s_waitcnt vmcnt(0)")
        a.label("A_KISS")
    for i in range(4):
        if i:
            a(f"s_add_u32 m0, s{S_M0B}, {i*4096}")
        a.nop(1)
        for j in range(4):
            a(f"buffer_load_dwordx4 v{V_KOFF+j}, s[{SRD_K}:{SRD_K+3}], s{S_SOFF+i} offen offset:{1024*j} {POL} lds")
    a.label("A_KDONE")
    if PRIO:
        a("s_setprio 0")
    a(f"v_lshlrev_b32 v{X}, 4, v{vj}")
    a(f"v_sub_u32 v{X}, v{vctx}, v{X}")
    a(f"v_mov_b32 v{X+1}, 16")
    a(f"v_cndmask_b32 v{X}, v{X}, v{X+1}, s[{S_L0X}:{S_L0X+1}]")
    a(f"v_cndmask_b32 v{X}, 0, v{X}, s[{S_MM}:{S_MM+1}]")
    for i in range(4):
        a(f"s_and_b32 s{S_OWN+i}, s{S_LANE+i}, 15")
        a(f"s_sub_u32 s{S_OWN+i}, s{S_OWN+i}, 1")
    for i in range(4):
        a(f"v_readlane_b32 s{S_REM+i}, v{X}, s{S_LANE+i}")
    plan_extra(a, "P1")
    a(f"s_cmp_lg_u32 s{S_NG2}, 0")
    a("s_cbranch_scc1 A_SHARED")
    body(a, 1)
    a("s_branch A_NEXT")
    a.label("A_SHARED")
    body(a, 2)
    a.label("A_NEXT")
    stamp(a, 13)
    a(f"s_add_u32 s{S_IT}, s{S_IT}, s{S_NIT}")
    a(f"s_mul_i32 s{S_T0}, s{S_IT}, s{S_T}")
    a(f"s_cmp_ge_u32 s{S_T0}, s{S_N}")
    a("s_cbranch_scc1 A_FIN")
    a("s_waitcnt lgkmcnt(0)")
    a("s_barrier")
    if PRIO:
        a("s_setprio 3")
    a(f"s_mov_b32 m0, s{S_QM0}")
    a.nop(1)
    a(f"buffer_load_dwordx4 v{V_QOFF}, s[{SRD_Q}:{SRD_Q+3}], s{S_QSOFF} offen lds")
    a("s_branch A_ROUND")
    a.label("A_FIN0")
    plan_extra(a, "P2")
    a(f"s_load_dword s{S_NON}, s[{S_DBG}:{S_DBG+1}], 0")
    a("s_waitcnt vmcnt(0) lgkmcnt(0)")
    a(f"v_mov_b32 v{V_N}, s{S_NON}")
    a.label("A_FIN")
    if NOCONS:
        a("s_branch A_DONE")
    a(f"s_cmp_ge_u32 s{S_IT0}, 16")
    a("s_cbranch_scc1 A_DONE")
    consumer(a)
    a.label("A_DONE")
    stamp(a, 14)
    stamp_out(a)
    a.label("A_END")
    a("s_endpgm")

def get_nonce(a, tag):
    a(f"v_cmp_eq_u32 vcc, 0, v{V_N}")
    a(f"s_cbranch_vccz {tag}_NOK")
    a(f"s_mov_b32 s{S_SPIN}, 0")
    a.label(f"{tag}_NSPIN")
    a(f"global_load_dword v{V_N}, v{V_ZERO}, s[{S_DBG}:{S_DBG+1}] sc1")
    a("s_waitcnt vmcnt(0)")
    a(f"s_add_u32 s{S_SPIN}, s{S_SPIN}, 1")
    a(f"s_cmp_ge_u32 s{S_SPIN}, 0x40000")
    a(f"s_cbranch_scc1 {tag}_NOK")
    a(f"v_cmp_eq_u32 vcc, 0, v{V_N}")
    a(f"s_cbranch_vccnz {tag}_NSPIN")
    a.label(f"{tag}_NOK")

def consumer(a):
    get_nonce(a, "C")
    D = V_Q
    ML0, ML1 = V_B, V_B + 4
    T0, T1 = V_X + 2, V_X + 3
    M0, L0, M1, L1 = V_X + 4, V_X + 5, V_X + 6, V_X + 7
    X0, X1, A0, A1 = V_X + 8, V_X + 9, V_X + 10, V_X + 11
    SB, SM, ST = S_T0, S_T1, S_T3
    SO = S_SOFF
    W0 = S_REM
    W1 = S_OWN
    srd = f"s[{SRD_WS}:{SRD_WS+3}]"
    a(f"s_lshr_b32 s{S_CB}, s{S_IT0}, 1")
    a(f"s_lshl_b32 s{S_CB}, s{S_CB}, 3")
    a(f"s_add_u32 s{S_CB}, s{S_CB}, s{S_KVH}")
    a(f"s_and_b32 s{S_RHO}, s{S_IT0}, 1")
    a(f"s_and_b32 s{S_GRP}, s{S_W}, 1")
    a(f"s_lshr_b32 s{S_LANE}, s{S_W}, 1")
    a(f"s_lshl_b32 s{SM}, s{S_CB}, 2")
    a(f"s_lshl_b32 s{ST}, s{S_RHO}, 1")
    a(f"s_add_u32 s{SM}, s{SM}, s{ST}")
    a(f"s_lshl_b32 s{SM}, s{SM}, 8")
    a(f"s_add_u32 s{SM}, s{SM}, 0x{WS_ML:x}")
    a(f"v_lshlrev_b32 v{V_T2}, 4, v{V_C}")
    a(f"buffer_load_dwordx4 v[{ML0}:{ML0+3}], v{V_T2}, {srd}, s{SM} offen sc1")
    a(f"buffer_load_dwordx4 v[{ML1}:{ML1+3}], v{V_T2}, {srd}, s{SM} offen offset:256 sc1")
    a(f"s_lshl_b32 s{SB}, s{S_CB}, 1")
    a(f"s_add_u32 s{SB}, s{SB}, s{S_RHO}")
    a(f"s_lshl_b32 s{SB}, s{SB}, 15")
    a(f"s_lshl_b32 s{ST}, s{S_GRP}, 10")
    a(f"s_add_u32 s{SB}, s{SB}, s{ST}")
    a(f"s_lshl_b32 s{ST}, s{S_LANE}, 11")
    a(f"s_add_u32 s{SB}, s{SB}, s{ST}")
    a(f"v_lshlrev_b32 v{V_T1}, 4, v{V_LANE}")
    a(f"s_mov_b32 s{S_PEND}, 0")
    for k in range(4):
        a(f"s_add_u32 s{S_LANE+1}, s{S_LANE}, {4*k}")
        a(f"s_add_u32 s{SO+k}, s{SB}, {8192*k}")
        a(f"s_cmp_lt_u32 s{S_LANE+1}, s{S_CNT}")
        a(f"s_cselect_b32 s{SO+k}, s{SO+k}, 0x{OOB:x}")
        a(f"s_cselect_b32 s{ST}, {1<<k}, 0")
        a(f"buffer_load_dwordx4 v[{D+4*k}:{D+4*k+3}], v{V_T1}, {srd}, s{SO+k} offen sc1")
        a(f"s_or_b32 s{S_PEND}, s{S_PEND}, s{ST}")
    a(f"v_cmp_gt_u32 s[{S_MSK}:{S_MSK+1}], s{S_CNT}, v{V_C}")
    a(f"s_mov_b32 s{S_SPIN}, 0")
    a("s_waitcnt vmcnt(4)")
    a.label("C_MLCHK")
    a(f"v_bitop3_b32 v{T0}, v{ML0+1}, v{ML0+3}, v{V_N} bitop3:0x7e")
    a(f"v_bitop3_b32 v{T1}, v{ML1+1}, v{ML1+3}, v{V_N} bitop3:0x7e")
    a(f"v_or_b32 v{T0}, v{T0}, v{T1}")
    a(f"v_cndmask_b32 v{T0}, 0, v{T0}, s[{S_MSK}:{S_MSK+1}]")
    a(f"v_cmp_ne_u32 vcc, 0, v{T0}")
    a("s_cbranch_vccz C_MLOK")
    a(f"s_add_u32 s{S_SPIN}, s{S_SPIN}, 1")
    a(f"s_cmp_ge_u32 s{S_SPIN}, 0x40000")
    a("s_cbranch_scc1 C_RED")
    a(f"s_sleep {SLEEP}")
    a(f"buffer_load_dwordx4 v[{ML0}:{ML0+3}], v{V_T2}, {srd}, s{SM} offen sc1")
    a(f"buffer_load_dwordx4 v[{ML1}:{ML1+3}], v{V_T2}, {srd}, s{SM} offen offset:256 sc1")
    a("s_waitcnt vmcnt(0)")
    a("s_branch C_MLCHK")
    a.label("C_MLOK")
    msk = f"s[{S_MSK}:{S_MSK+1}]"
    a(f"v_cndmask_b32 v{M0}, v{V_NEG}, v{ML0}, {msk}")
    a(f"v_cndmask_b32 v{M1}, v{V_NEG}, v{ML1}, {msk}")
    a(f"v_cndmask_b32 v{L0}, 0, v{ML0+2}, {msk}")
    a(f"v_cndmask_b32 v{L1}, 0, v{ML1+2}, {msk}")
    dpp = "row_mask:0xf bank_mask:0xf"
    a(f"v_mov_b32 v{X0}, v{M0}")
    a(f"v_mov_b32 v{X1}, v{M1}")
    for sh in (8, 4, 2, 1):
        a.nop(1)
        a(f"v_max_f32_dpp v{X0}, v{X0}, v{X0} row_ror:{sh} {dpp}")
        a(f"v_max_f32_dpp v{X1}, v{X1}, v{X1} row_ror:{sh} {dpp}")
    a(f"v_sub_f32 v{M0}, v{M0}, v{X0}")
    a(f"v_sub_f32 v{M1}, v{M1}, v{X1}")
    a(f"v_exp_f32 v{M0}, v{M0}")
    a(f"v_exp_f32 v{M1}, v{M1}")
    a.nop(1)
    a(f"v_mul_f32 v{X0}, v{M0}, v{L0}")
    a(f"v_mul_f32 v{X1}, v{M1}, v{L1}")
    for sh in (8, 4, 2, 1):
        a.nop(1)
        a(f"v_add_f32_dpp v{X0}, v{X0}, v{X0} row_ror:{sh} {dpp}")
        a(f"v_add_f32_dpp v{X1}, v{X1}, v{X1} row_ror:{sh} {dpp}")
    a(f"v_rcp_f32 v{X0}, v{X0}")
    a(f"v_rcp_f32 v{X1}, v{X1}")
    a(f"v_mov_b32 v{A0}, 0")
    a(f"v_mov_b32 v{A1}, 0")
    a(f"v_mul_f32 v{M0}, v{M0}, v{X0}")
    a(f"v_mul_f32 v{M1}, v{M1}, v{X1}")
    a.nop(1)
    for k in range(4):
        a(f"s_add_u32 s{S_LANE+1}, s{S_LANE}, {4*k}")
        a(f"v_readlane_b32 s{W0+k}, v{M0}, s{S_LANE+1}")
        a(f"v_readlane_b32 s{W1+k}, v{M1}, s{S_LANE+1}")
    def check(Dset, tag):
        for k in range(4):
            d = Dset + 4 * k
            a(f"s_bitcmp1_b32 s{S_PEND}, {k}")
            a(f"s_cbranch_scc0 {tag}{k}")
            a(f"v_bitop3_b32 v{T0}, v{d+1}, v{d+3}, v{V_N} bitop3:0x7e")
            a(f"v_bitop3_b32 v{T1}, v{d}, v{d+2}, v{V_N} bitop3:0x7e")
            a(f"v_and_or_b32 v{T0}, v{T1}, s{S_FF}, v{T0}")
            a(f"v_cmp_ne_u32 vcc, 0, v{T0}")
            a(f"s_cbranch_vccnz {tag}{k}")
            a(f"v_fmac_f32 v{A0}, s{W0+k}, v{d}")
            a(f"v_fmac_f32 v{A1}, s{W1+k}, v{d+2}")
            a(f"s_bitset0_b32 s{S_PEND}, {k}")
            a.label(f"{tag}{k}")
    def issue(Dset, tag):
        for k in range(4):
            a(f"s_bitcmp1_b32 s{S_PEND}, {k}")
            a(f"s_cselect_b32 s{ST}, s{SO+k}, 0x{OOB:x}")
            a(f"buffer_load_dwordx4 v[{Dset+4*k}:{Dset+4*k+3}], v{V_T1}, {srd}, s{ST} offen sc1")
    a("s_waitcnt vmcnt(0)")
    check(D, "C_A")
    a(f"s_cmp_eq_u32 s{S_PEND}, 0")
    a("s_cbranch_scc1 C_RED")
    if PIPE:
        issue(D, "i0")
        a.label("C_LOOP")
        a(f"s_sleep {PSLEEP}")
        issue(D + 16, "i1")
        a("s_waitcnt vmcnt(4)")
        check(D, "C_B")
        a(f"s_cmp_eq_u32 s{S_PEND}, 0")
        a("s_cbranch_scc1 C_RED")
        a(f"s_sleep {PSLEEP}")
        issue(D, "i2")
        a("s_waitcnt vmcnt(4)")
        check(D + 16, "C_C")
        a(f"s_add_u32 s{S_SPIN}, s{S_SPIN}, 1")
        a(f"s_cmp_ge_u32 s{S_SPIN}, 0x40000")
        a("s_cbranch_scc1 C_RED")
        a(f"s_cmp_lg_u32 s{S_PEND}, 0")
        a("s_cbranch_scc1 C_LOOP")
    else:
        a.label("C_LOOP")
        a(f"s_sleep {SLEEP}")
        issue(D, "i0")
        a("s_waitcnt vmcnt(0)")
        check(D, "C_B")
        a(f"s_add_u32 s{S_SPIN}, s{S_SPIN}, 1")
        a(f"s_cmp_ge_u32 s{S_SPIN}, 0x40000")
        a("s_cbranch_scc1 C_RED")
        a(f"s_cmp_lg_u32 s{S_PEND}, 0")
        a("s_cbranch_scc1 C_LOOP")
    a.label("C_RED")
    if STAMP:
        a(f"v_writelane_b32 v{V_STAMP}, s{S_SPIN}, 15")
        stamp(a, 12)
    a(f"v_lshlrev_b32 v{V_T0}, 3, v0")
    a(f"ds_write_b64 v{V_T0}, v[{A0}:{A1}]")
    a(f"s_lshl_b32 s{SB}, s{S_CB}, 1")
    a(f"s_add_u32 s{SB}, s{SB}, s{S_RHO}")
    a(f"s_lshl_b32 s{SB}, s{SB}, 9")
    a(f"s_lshl_b32 s{SM}, s{S_GRP}, 7")
    a(f"s_add_u32 s{SB}, s{SB}, s{SM}")
    a(f"v_lshlrev_b32 v{V_T1}, 1, v{V_LANE}")
    a(f"s_mov_b32 s{SRD_Q}, s{S_OUT}")
    a(f"s_and_b32 s{SRD_Q+1}, s{S_OUT+1}, 0xffff")
    a("s_waitcnt lgkmcnt(0)")
    a("s_barrier")
    a(f"s_cmp_ge_u32 s{S_W}, 2")
    a("s_cbranch_scc1 A_DONE")
    R = V_B + 8
    a(f"ds_read_b64 v[{R}:{R+1}], v{V_T0} offset:1024")
    a(f"ds_read_b64 v[{R+2}:{R+3}], v{V_T0} offset:2048")
    a(f"ds_read_b64 v[{R+4}:{R+5}], v{V_T0} offset:3072")
    a("s_waitcnt lgkmcnt(0)")
    a(f"v_add_f32 v{A0}, v{A0}, v{R}")
    a(f"v_add_f32 v{A1}, v{A1}, v{R+1}")
    a(f"v_add_f32 v{R+2}, v{R+2}, v{R+4}")
    a(f"v_add_f32 v{R+3}, v{R+3}, v{R+5}")
    a(f"v_add_f32 v{A0}, v{A0}, v{R+2}")
    a(f"v_add_f32 v{A1}, v{A1}, v{R+3}")
    a(f"v_cvt_pk_bf16_f32 v{A0}, v{A0}, v{A1}")
    a(f"buffer_store_short v{A0}, v{V_T1}, s[{SRD_Q}:{SRD_Q+3}], s{SB} offen")
    a(f"buffer_store_short_d16_hi v{A0}, v{V_T1}, s[{SRD_Q}:{SRD_Q+3}], s{SB} offen offset:256")

def poll_flags(a, tag, off):
    X = V_X
    a.label(tag)
    a(f"ds_read_b128 v[{X}:{X+3}], v{V_FLG} offset:{off}")
    a(f"ds_read_b128 v[{X+4}:{X+7}], v{V_FLG} offset:{off+16}")
    a("s_waitcnt lgkmcnt(0)")
    a(f"v_min3_u32 v{X}, v{X}, v{X+1}, v{X+2}")
    a(f"v_min3_u32 v{X+3}, v{X+3}, v{X+4}, v{X+5}")
    a(f"v_min3_u32 v{X}, v{X}, v{X+6}, v{X+7}")
    a(f"v_min_u32 v{X}, v{X}, v{X+3}")
    a(f"v_cmp_gt_u32 vcc, s{S_RND}, v{X}")
    a(f"s_cbranch_vccnz {tag}")

def set_flag(a, off):
    a(f"s_lshl_b32 s{S_T0}, s{S_W}, 2")
    a(f"v_add_u32 v{V_T3}, s{S_T0}, v{V_FLG}")
    a(f"v_mov_b32 v{V_T2}, s{S_RND}")
    a(f"ds_write_b32 v{V_T3}, v{V_T2} offset:{off}")

def body(a: Asm, NG: int):
    tag = f"B{NG}"
    VSPLIT = VSPLIT1 if NG == 1 else VSPLIT2
    a.c(f"---- body NG={NG}")
    VS = [V_X + 8, V_X + 9]
    VM = [V_X + 10, V_X + 11]
    EX = [S_EX, S_EX + 2]
    EM = [S_EM, S_EM + 2]
    for g in range(NG):
        if NG == 1:
            a(f"s_lshl_b32 s{S_T0}, s{S_GRP}, 4")
            a(f"s_add_u32 s{S_T0}, s{S_T0}, 0x{LDS_PLAN+4:x}")
        else:
            a(f"s_mov_b32 s{S_T0}, 0x{LDS_PLAN+4+16*g:x}")
        a(f"v_lshl_add_u32 v{VS[g]}, v{V_G}, 2, s{S_T0}")
        a(f"v_lshl_add_u32 v{VM[g]}, v{V_CB}, 2, s{S_T0}")
        a(f"ds_read_b32 v{VS[g]}, v{VS[g]}")
        a(f"ds_read_b32 v{VM[g]}, v{VM[g]}")
    if NG == 1:
        a(f"s_lshl_b32 s{S_T0}, s{S_GRP}, 12")
        for j in range(4):
            a(f"v_add_u32 v{V_X+j}, s{S_T0}, v{V_LJ+j}")
        for j in range(4):
            a(f"ds_read_b128 v[{V_Q+4*j}:{V_Q+4*j+3}], v{V_X+j}")
    else:
        for g in range(2):
            for j in range(4):
                a(f"ds_read_b128 v[{V_Q+16*g+4*j}:{V_Q+16*g+4*j+3}], v{V_LJ+j} offset:{g*4096}")
    a(f"s_cmp_lt_u32 s{S_IT}, s{S_NSH}")
    a(f"s_cselect_b32 s{S_T1}, 0, -1")
    a("s_waitcnt lgkmcnt(0)")
    for g in range(NG):
        for V in (VS[g], VM[g]):
            a(f"v_and_b32 v{V}, s{S_T1}, v{V}")
            a(f"v_sub_u32 v{V}, s{S_IT}, v{V}")
        a(f"v_lshl_add_u32 v{VS[g]}, v{VS[g]}, 11, v{V_OOFF}")
        a(f"v_lshl_add_u32 v{VM[g]}, v{VM[g]}, 4, v{V_MLOFF}")
        if NG == 1:
            a(f"s_lshl_b32 s{S_T0}, s{S_GRP}, 2")
            a(f"s_lshr_b32 s{S_T0}, s{S_PM}, s{S_T0}")
        else:
            a(f"s_lshr_b32 s{S_T0}, s{S_PM}, {4*g}")
        a(f"v_lshrrev_b32 v{V_T3}, v{V_G}, s{S_T0}")
        a(f"v_and_b32 v{V_T3}, 1, v{V_T3}")
        a(f"v_cmp_ne_u32 s[{EX[g]}:{EX[g]+1}], 0, v{V_T3}")
        a(f"v_lshrrev_b32 v{V_T3}, v{V_CB}, s{S_T0}")
        a(f"v_and_b32 v{V_T3}, 1, v{V_T3}")
        a(f"v_cmp_ne_u32 s[{EM[g]}:{EM[g]+1}], 0, v{V_T3}")
        a(f"s_and_b32 s{EM[g]}, s{EM[g]}, 0xffff")
        a(f"s_mov_b32 s{EM[g]+1}, 0")
    a(f"s_lshl_b32 s{S_DO[0]}, s{S_KVH}, 16")
    a(f"s_lshl_b32 s{S_T2}, s{S_W}, 8")
    a(f"s_add_u32 s{S_DO[0]}, s{S_DO[0]}, s{S_T2}")
    if NG == 1:
        a(f"s_lshl_b32 s{S_T2}, s{S_GRP}, 21")
        a(f"s_add_u32 s{S_DO[0]}, s{S_DO[0]}, s{S_T2}")
    a(f"s_add_u32 s{S_DO[1]}, s{S_DO[0]}, 32768")
    a(f"s_add_u32 s{S_DO[2]}, s{S_DO[0]}, {4*524288}")
    a(f"s_add_u32 s{S_DO[3]}, s{S_DO[1]}, {4*524288}")
    stamp(a, 5)
    for i in range(4):
        a(f"s_waitcnt vmcnt({12 - 4*i})")
        if i == 0: stamp(a, 6)
        if i == 3: stamp(a, 7)
        for j in range(4):
            a(f"ds_read_b128 v[{V_KF+4*j}:{V_KF+4*j+3}], v{V_KRD+j} offset:{i*4096}")
        a("s_waitcnt lgkmcnt(0)")
        for g in range(NG):
            s = V_S + 16 * g + 4 * i
            for j in range(4):
                c = "0" if j == 0 else f"v[{s}:{s+3}]"
                a(f"v_mfma_f32_16x16x32_bf16 v[{s}:{s+3}], v[{V_KF+4*j}:{V_KF+4*j+3}], v[{V_Q+16*g+4*j}:{V_Q+16*g+4*j+3}], {c}")
    a(f"s_load_dword s{S_NON}, s[{S_DBG}:{S_DBG+1}], 0")
    a.nop(7)
    for i in range(4):
        a(f"s_cmp_lt_i32 s{S_REM+i}, 16")
        a(f"s_cbranch_scc1 {tag}_DM{i}")
        a(f"s_cmp_eq_u32 s{S_MIXED}, 0")
        a(f"s_cbranch_scc1 {tag}_NM{i}")
        a(f"s_cmp_eq_u32 s{S_OWN+i}, -1")
        a(f"s_cbranch_scc1 {tag}_NM{i}")
        a.label(f"{tag}_DM{i}")
        for r in range(4):
            a(f"v_cmp_gt_i32 s[{S_MSK+2*r}:{S_MSK+2*r+1}], s{S_REM+i}, v{V_TOK+r}")
        for g in range(NG):
            if NG == 1:
                a(f"s_lshl_b32 s{S_T0}, s{S_GRP}, 2")
                a(f"s_sub_u32 s{S_T0}, s{S_OWN+i}, s{S_T0}")
            else:
                a(f"s_sub_u32 s{S_T0}, s{S_OWN+i}, {4*g}")
            a(f"v_cmp_eq_u32 s[{S_OM+2*g}:{S_OM+2*g+1}], s{S_T0}, v{V_CB}")
            a(f"s_cmp_eq_u32 s{S_OWN+i}, -1")
            a(f"s_cselect_b64 s[{S_OM+2*g}:{S_OM+2*g+1}], -1, s[{S_OM+2*g}:{S_OM+2*g+1}]")
        for g in range(NG):
            for r in range(4):
                s = V_S + 16 * g + 4 * i + r
                a(f"s_and_b64 vcc, s[{S_MSK+2*r}:{S_MSK+2*r+1}], s[{S_OM+2*g}:{S_OM+2*g+1}]")
                a(f"v_cndmask_b32 v{s}, v{V_NEG}, v{s}, vcc")
        a.label(f"{tag}_NM{i}")
    for g in range(NG):
        s = V_S + 16 * g
        x = V_X + 1 + 2 * g
        a(f"v_max3_f32 v{x}, v{s}, v{s+1}, v{s+2}")
        for k in range(3, 15, 2):
            a(f"v_max3_f32 v{x}, v{x}, v{s+k}, v{s+k+1}")
        a(f"v_max_f32 v{x}, v{x}, v{s+15}")
    def xreduce(op):
        for swap in ("v_permlane16_swap_b32", "v_permlane32_swap_b32"):
            for g in range(NG):
                x = V_X + 1 + 2 * g
                a(f"v_mov_b32 v{x+1}, v{x}")
            a.nop(2)
            for g in range(NG):
                x = V_X + 1 + 2 * g
                a(f"{swap} v{x}, v{x+1}")
            a.nop(1)
            for g in range(NG):
                x = V_X + 1 + 2 * g
                a(f"{op} v{x}, v{x}, v{x+1}")
    xreduce("v_max_f32")
    a(f"s_lshl_b32 s{S_T0}, s{S_W}, 2")
    a(f"v_add_u32 v{V_T0}, s{S_T0}, v{V_MADDR}")
    for g in range(NG):
        a(f"ds_write_b32 v{V_T0}, v{V_X+1+2*g} offset:{g*512}")
    set_flag(a, 0)
    def vissue(lo=0, hi=4):
        for ii in range(lo, hi):
            a(f"s_add_u32 m0, s{S_M0B}, {ii*4096}")
            a.nop(1)
            for j in range(4):
                a(f"buffer_load_dwordx4 v{V_VOFF+j}, s[{SRD_V}:{SRD_V+3}], s{S_SOFF+ii} offen offset:{1024*j} {POL} lds")
    vissue(0, VSPLIT)
    a(f"s_cmp_ge_u32 s{S_W}, 4")
    a(f"s_cbranch_scc1 {tag}_V1")
    vissue(VSPLIT, 4)
    a.label(f"{tag}_V1")
    poll_flags(a, f"{tag}_PM", 0)
    stamp(a, 8)
    for g in range(NG):
        k = V_KF + 8 * g
        a(f"ds_read_b128 v[{k}:{k+3}], v{V_MADDR} offset:{g*512}")
        a(f"ds_read_b128 v[{k+4}:{k+7}], v{V_MADDR} offset:{g*512+16}")
    a("s_waitcnt lgkmcnt(0)")
    for g in range(NG):
        k = V_KF + 8 * g
        a(f"v_max3_f32 v{k}, v{k}, v{k+1}, v{k+2}")
        a(f"v_max3_f32 v{k+3}, v{k+3}, v{k+4}, v{k+5}")
        a(f"v_max3_f32 v{k}, v{k}, v{k+6}, v{k+7}")
        a(f"v_max_f32 v{k}, v{k}, v{k+3}")
        a(f"v_mul_f32 v{V_MC+g}, s{S_C}, v{k}")
    for g in range(NG):
        for k in range(16):
            s = V_S + 16 * g + k
            a(f"v_fma_f32 v{s}, v{s}, s{S_C}, -v{V_MC+g}")
        for k in range(16):
            s = V_S + 16 * g + k
            a(f"v_exp_f32 v{s}, v{s}")
    a.nop(1)
    for g in range(NG):
        for i in range(4):
            s = V_S + 16 * g + 4 * i
            p = V_P + 8 * g + 2 * i
            a(f"v_cvt_pk_bf16_f32 v{p}, v{s}, v{s+1}")
            a(f"v_cvt_pk_bf16_f32 v{p+1}, v{s+2}, v{s+3}")
    def prow_off(i, g):
        if NG == 1:
            return i * 4096
        return (i % 3) * 8192 + g * 4096
    nrows0 = 4 if NG == 1 else 3
    for i in range(nrows0):
        for g in range(NG):
            p = V_P + 8 * g + 2 * i
            a(f"ds_write_b64 v{V_PWR}, v[{p}:{p+1}] offset:{prow_off(i, g)}")
    for g in range(NG):
        s = V_S + 16 * g
        x = V_X + 1 + 2 * g
        for k in range(0, 16, 2):
            a(f"v_add_f32 v{s+k}, v{s+k}, v{s+k+1}")
        for k in range(0, 16, 4):
            a(f"v_add_f32 v{s+k}, v{s+k}, v{s+k+2}")
        a(f"v_add_f32 v{s}, v{s}, v{s+4}")
        a(f"v_add_f32 v{s+8}, v{s+8}, v{s+12}")
        a(f"v_add_f32 v{x}, v{s}, v{s+8}")
    xreduce("v_add_f32")
    a(f"v_add_u32 v{V_T0}, 1024, v{V_T0}")
    for g in range(NG):
        a(f"ds_write_b32 v{V_T0}, v{V_X+1+2*g} offset:{g*512}")
    set_flag(a, 32)
    def v2():
        a(f"s_cmp_lt_u32 s{S_W}, 4")
        a(f"s_cbranch_scc1 {tag}_V2")
        vissue(VSPLIT, 4)
        a.label(f"{tag}_V2")
    if not PFIRST:
        v2()
    poll_flags(a, f"{tag}_PP", 32)
    def preg(i, g, u):
        return PREG[(i * 4 + u) * NG + g]
    def pread(i):
        for u in range(4):
            for g in range(NG):
                A = preg(i, g, u)
                a(f"ds_read_b128 v[{A}:{A+3}], v{V_PRD} offset:{prow_off(i, g) + u*1024}")
    for i in range(nrows0):
        pread(i)
        if NG == 2:
            a("s_waitcnt lgkmcnt(0)")
        elif i == 2:
            a("s_waitcnt lgkmcnt(4)")
    if PFIRST:
        v2()
    MLR = [V_X + 4, V_X + 12]
    def mlprep():
        a(f"s_cmp_lg_u32 s{S_W}, {MLWAVE}")
        a(f"s_cbranch_scc1 {tag}_NOMLP")
        for g in range(NG):
            X = V_B
            R = MLR[g]
            a(f"ds_read_b128 v[{X}:{X+3}], v{V_MADDR} offset:{1024+g*512}")
            a(f"ds_read_b128 v[{X+4}:{X+7}], v{V_MADDR} offset:{1024+g*512+16}")
            a("s_waitcnt lgkmcnt(0)")
            for t in range(4):
                a(f"v_add_f32 v{X+t}, v{X+t}, v{X+t+4}")
            a(f"v_add_f32 v{X}, v{X}, v{X+1}")
            a(f"v_add_f32 v{X+2}, v{X+2}, v{X+3}")
            a(f"v_add_f32 v{R+2}, v{X}, v{X+2}")
            a(f"v_mov_b32 v{R}, v{V_MC+g}")
            a(f"v_mov_b32 v{R+1}, v{V_N}")
            a(f"v_mov_b32 v{R+3}, v{V_N}")
        a.label(f"{tag}_NOMLP")
    def mlpub():
        a(f"s_cmp_lg_u32 s{S_W}, {MLWAVE}")
        a(f"s_cbranch_scc1 {tag}_NOML")
        a(f"s_lshl_b32 s{S_T1}, s{S_KVH}, 10")
        a(f"s_add_u32 s{S_T1}, s{S_T1}, 0x{WS_ML:x}")
        if NG == 1:
            a(f"s_lshl_b32 s{S_T2}, s{S_GRP}, 15")
            a(f"s_add_u32 s{S_T1}, s{S_T1}, s{S_T2}")
        for g in range(NG):
            R = MLR[g]
            if g == 1:
                a(f"s_add_u32 s{S_T1}, s{S_T1}, 32768")
            a(f"s_mov_b64 exec, s[{EM[g]}:{EM[g]+1}]")
            a(f"buffer_store_dwordx4 v[{R}:{R+3}], v{VM[g]}, s[{SRD_WS}:{SRD_WS+3}], s{S_T1} offen sc1")
        a("s_mov_b64 exec, -1")
        a.label(f"{tag}_NOML")
    a(f"v_mov_b32 v{V_N}, s{S_NON}")
    get_nonce(a, tag)
    for g in range(NG):
        for rho in range(2):
            G = V_G0 + 8 * g + 4 * rho
            a(f"v_mov_b32 v{G+1}, v{V_N}")
            a(f"v_mov_b32 v{G+3}, v{V_N}")
    a("s_waitcnt lgkmcnt(0)")
    mlprep()
    if MLROW < 0:
        mlpub()
    for i in range(4):
        a(f"s_waitcnt vmcnt({12-4*i}) lgkmcnt(0)")
        a("s_barrier")
        stamp(a, 9 + i)
        for u in range(4):
            B = V_B + 4 * u
            for h in range(2):
                wv = 2 * u + h
                base = V_VTLO if wv < 4 else V_VTHI
                off = (wv & 3) * 16384 + i * 4096
                a(f"ds_read_b64_tr_b16 v[{B+2*h}:{B+2*h+1}], v{base} offset:{off}")
        extra = 0
        if NG == 2 and i == 0:
            for g in range(NG):
                p = V_P + 8 * g + 6
                a(f"ds_write_b64 v{V_PWR}, v[{p}:{p+1}] offset:{prow_off(3, g)}")
            extra = 2
        for u in range(4):
            n = 2 * (3 - u) + extra
            assert n <= 15
            a(f"s_waitcnt lgkmcnt({n})")
            B = V_B + 4 * u
            for g in range(NG):
                A = preg(i, g, u)
                acc = V_ACC + 4 * g
                c = "0" if (i == 0 and u == 0) else f"v[{acc}:{acc+3}]"
                a(f"v_mfma_f32_16x16x32_bf16 v[{acc}:{acc+3}], v[{A}:{A+3}], v[{B}:{B+3}], {c}")
            if NG == 2 and i == 1 and u == 0:
                pread(3)
                extra = 8
        if i == MLROW:
            mlpub()
    a.nop(8)
    for g in range(NG):
        for rho in range(2):
            G = V_G0 + 8 * g + 4 * rho
            a(f"v_bfi_b32 v{G}, s{S_FF}, v{V_N}, v{V_ACC+4*g+2*rho}")
            a(f"v_bfi_b32 v{G+2}, s{S_FF}, v{V_N}, v{V_ACC+4*g+2*rho+1}")
    for g in range(NG):
        a(f"s_mov_b64 exec, s[{EX[g]}:{EX[g]+1}]")
        for rho in range(2):
            G = V_G0 + 8 * g + 4 * rho
            a(f"buffer_store_dwordx4 v[{G}:{G+3}], v{VS[g]}, s[{SRD_WS}:{SRD_WS+3}], s{S_DO[2*g+rho]} offen sc1")
    a("s_mov_b64 exec, -1")

HEADER = """; paged decode attention (radix shared prefix aware), single launch, in-kernel split-KV combine
; @launch grid=(256,1,1) block=(512,1,1) lds={lds}
.amdgcn_target "amdgcn-amd-amdhsa--gfx950"
.text
"""

def kd(name, vgpr, sgpr):
    acc = (vgpr + 3) // 4 * 4
    return f""".amdhsa_kernel {name}
  .amdhsa_next_free_vgpr {vgpr}
  .amdhsa_next_free_sgpr {sgpr}
  .amdhsa_accum_offset {acc}
  .amdhsa_group_segment_fixed_size 0
  .amdhsa_kernarg_size 64
  .amdhsa_user_sgpr_count 2
  .amdhsa_user_sgpr_kernarg_segment_ptr 1
  .amdhsa_system_sgpr_workgroup_id_x 1
.end_amdhsa_kernel
"""

def main(out):
    t = HEADER.format(lds=LDS_TOTAL)
    a = Asm()
    kernelA(a)
    t += f".globl {KNAME}\n.p2align 8\n.type {KNAME},@function\n" + a.text()
    t += '.section .rodata,"a"\n.p2align 6\n' + kd(KNAME, V_END, 102)
    open(out, "w").write(t)

if __name__ == "__main__":
    main(sys.argv[1] if len(sys.argv) > 1 else f"cdna_kernels/{NAME}.s")
```

```python
import struct, sys, math, os

NAME = "standalone__paged_block_table_kv_radixattention__decode"
KNAME = NAME + "_kernel"
E = os.environ.get
STAMP = int(E('STAMP', '0'))
POL = E('POL', 'nt')
PRIO = int(E('PRIO', '1'))
SLEEP = int(E('SLEEP', '2'))
NOCONS = int(E('NOCONS', '0'))
MLROW = int(E('MLROW', '-1'))
MLWAVE = int(E('MLWAVE', '0'))
CNTS = [int(x) for x in E('CNT', '30,40,29,29,30,40,29,29').split(',')]
assert sum(CNTS) == 256 and min(CNTS) >= 16
VSPLIT1 = int(E('VSPLIT', '1'))
VSPLIT2 = int(E('VSPLIT2', '1'))
COFF = int(E('COFF', '0'))
PIPE = int(E('PIPE', '1'))
PSLEEP = int(E('PSLEEP', '1'))
SPEC = int(E('SPEC', '1'))
SPECA = int(E('SPECA', '2'))
PFIRST = int(E('PFIRST', '0'))
CPF = int(E('CPF', '0'))
TLBW = int(E('TLBW', '1'))
TLBK = int(E('TLBK', '0'))
EPWG = int(E('EPWG', '-1'))
OUTPOL = E('OUTPOL', '')
TMIN = int(E('TMIN', '20'))
NCONS = int(E('NCONS', '128'))

if EPWG < 0: EPWG = CNTS[0] - 1
def _pred():
    ctx = [4096 - ((b + 1) * 2654435761) % 1024 for b in range(8)]
    S = 128
    n = [(c + 15) // 16 - S for c in ctx]
    P = [S]
    for x in n: P.append(P[-1] + x)
    off = [128 + 128 * b - P[b] for b in range(8)]
    steps = [(P[b], off[b] - off[b - 1]) for b in range(1, 8)]
    assert off[0] == 0 and all(0 < d <= 64 for _, d in steps), steps
    return P[-1], S, steps
PRED_N, PRED_S, PRED_STEPS = _pred()

def f32bits(x):
    return struct.unpack("<I", struct.pack("<f", x))[0]

class Asm:
    def __init__(self):
        self.lines = []
    def __call__(self, s):
        self.lines.append("  " + s)
    def label(self, s):
        self.lines.append(s + ":")
    def nop(self, n):
        while n > 0:
            k = min(n, 16)
            self.lines.append("  s_nop %d" % (k - 1))
            n -= k
    def c(self, s):
        self.lines.append("  ; " + s)
    def text(self):
        return "\n".join(self.lines) + "\n"

KV_BYTES = 1152 * 32768
NEG = 0xF1800000
CSCALE = f32bits((128 ** -0.5) * math.log2(math.e))
LDS_P = 131072
LDS_TBL = LDS_P
LDS_SW = LDS_P + 8192
LDS_Q = LDS_P + 12288
LDS_M = LDS_P + 24576
LDS_L = LDS_M + 1024
LDS_PLAN = LDS_L + 1024
LDS_FLAG = LDS_PLAN + 64
LDS_TOTAL = LDS_FLAG + 64
WS_ML = 4 << 20
WS_EPOCH = WS_ML + 65536
WS_SIZE = 8 << 20
WS_STAMP = 6 << 20
NS = 16
OOB = 0x80000000

S_W = 3
S_L0X = 4
S_LE8X = 6
S_Q, S_K, S_V, S_BT, S_CTX, S_OUT, S_DBG, S_WS = 8, 10, 12, 14, 16, 18, 20, 22
SRD_K, SRD_V, SRD_Q, SRD_WS = 24, 28, 32, 36
S_CTXW, S_S, S_IT, S_KVH, S_N, S_T, S_F0, S_HI, S_FB, S_NSH, S_PM, S_MIXED, S_GRP, S_NG2 = range(40, 54)
S_LANE = 54
S_SOFF = 60
S_REM = 64
S_T0, S_T1, S_T2, S_T3 = 68, 69, 70, 71
S_MSK = 72
S_C, S_M0B, S_KVH256, S_QM0, S_QSOFF = 80, 81, 82, 83, 84
S_CNT, S_FF, S_SPIN, S_PEND = 86, 87, 88, 89
S_OWN = 90
S_MM = 94
S_OM = 96
S_CB = 53
S_RHO = 59
S_RND = 85
S_NIT = 48
S_TM = 100
S_IT0 = 101
S_NON = 58
S_EX = 8
S_EM = 12
S_DO = [16, 17, 22, 23]

V_LANE, V_T0, V_T1, V_T2, V_T3 = 1, 2, 3, 4, 5
V_G, V_C = 6, 7
V_ROW = 8
V_ROW0 = 12
V_KOFF = 16
V_VOFF = 20
V_KRD = 24
V_LJ = 28
V_VTLO, V_VTHI = 32, 33
V_PRD, V_PWR, V_MADDR, V_ROWB = 34, 35, 36, 37
V_TOK = 38
V_QOFF, V_OOFF, V_MLOFF, V_CTXA, V_NEG, V_CB = 42, 43, 44, 45, 46, 47
V_MC = 48
V_L = 50
V_X = 52
V_Q = 68
V_KF = 100
V_S = 116
V_P = 148
V_A = 164
V_B = 164
V_ACC = 188
V_STAMP = 196
V_N = 197
V_ZERO = 198
V_G0 = 200
V_D = 216
V_VS = 52 + 8
V_FLG = 199
V_END = 256
PREG = [68 + 4*k for k in range(20)] + [180, 184, 216, 220] + [224 + 4*k for k in range(8)]

def stamp(a, idx):
    if not STAMP: return
    a("s_memrealtime s[98:99]")
    a("s_waitcnt lgkmcnt(0)")
    a(f"v_writelane_b32 v{V_STAMP}, s98, {idx}")
def stamp_out(a):
    if not STAMP: return
    a(f"v_lshlrev_b32 v{V_T0}, 2, v{V_LANE}")
    a("s_mov_b64 exec, 0xffff")
    a(f"s_lshl_b32 s{S_T0}, s2, 3")
    a(f"s_add_u32 s{S_T0}, s{S_T0}, s{S_W}")
    a(f"s_lshl_b32 s{S_T0}, s{S_T0}, 6")
    a(f"s_add_u32 s{S_T0}, s{S_T0}, 0x{WS_STAMP:x}")
    a(f"buffer_store_dword v{V_STAMP}, v{V_T0}, s[{SRD_WS}:{SRD_WS+3}], s{S_T0} offen")
    a("s_mov_b64 exec, -1")

vctx, vS, vn, vcum, vex, vj = V_D, V_D+1, V_D+2, V_D+3, V_D+4, V_D+5

def plan_extra(a, tag):
    X = V_X
    a(f"v_cvt_f32_u32 v{X}, s{S_T}")
    a(f"v_cmp_gt_u32 s[{S_MSK}:{S_MSK+1}], s{S_HI}, v{vex}")
    a(f"v_rcp_f32 v{X}, v{X}")
    a(f"v_cmp_lt_u32 s[{S_MSK+2}:{S_MSK+3}], s{S_F0}, v{vcum}")
    a(f"v_cmp_lt_u32 s[{S_MSK+4}:{S_MSK+5}], 0, v{vn}")
    a(f"v_cvt_f32_u32 v{X+1}, v{vex}")
    a(f"v_add_u32 v{X+2}, -1, v{vcum}")
    a(f"v_cvt_f32_u32 v{X+2}, v{X+2}")
    a(f"s_and_b32 s{S_T0}, s{S_MSK}, s{S_MSK+2}")
    a(f"s_and_b32 s{S_T0}, s{S_T0}, s{S_MSK+4}")
    a(f"s_and_b32 s{S_T0}, s{S_T0}, 0x1ff")
    a(f"v_mul_f32 v{X+1}, v{X+1}, v{X}")
    a(f"v_mul_f32 v{X+2}, v{X+2}, v{X}")
    a(f"v_add_f32 v{X+1}, 0x3ba3d70a, v{X+1}")
    a(f"v_add_f32 v{X+2}, 0x3ba3d70a, v{X+2}")
    a(f"v_cvt_u32_f32 v{X+1}, v{X+1}")
    a(f"v_cvt_u32_f32 v{X+2}, v{X+2}")
    a(f"s_bcnt1_i32_b32 s{S_T1}, s{S_T0}")
    a(f"s_cmp_gt_u32 s{S_T1}, 1")
    a(f"s_cselect_b32 s{S_MIXED}, 1, 0")
    a(f"s_lshr_b32 s{S_T1}, s{S_T0}, 1")
    a(f"v_readlane_b32 s{S_NSH}, v{X+2}, 0")
    a(f"s_and_b32 s{S_T2}, s{S_T1}, 0xf")
    a(f"s_cmp_eq_u32 s{S_T2}, 0")
    a(f"s_cselect_b32 s{S_GRP}, 1, 0")
    a(f"s_lshr_b32 s{S_T3}, s{S_T1}, 4")
    a(f"s_min_u32 s{S_T2}, s{S_T2}, 1")
    a(f"s_min_u32 s{S_T3}, s{S_T3}, 1")
    a(f"s_and_b32 s{S_T2}, s{S_T2}, s{S_T3}")
    a(f"s_and_b32 s{S_T3}, s{S_T0}, 1")
    a(f"s_or_b32 s{S_NG2}, s{S_T2}, s{S_T3}")
    a(f"s_cmp_lg_u32 s{S_T3}, 0")
    a(f"s_cselect_b32 s{S_PM}, 0xff, s{S_T1}")
    a(f"s_add_u32 s{S_NSH}, s{S_NSH}, 1")
    a(f"s_cmp_eq_u32 s{S_S}, 0")
    a(f"s_cselect_b32 s{S_NSH}, 0, s{S_NSH}")
    a(f"v_max_u32 v{X+1}, s{S_NSH}, v{X+1}")
    a(f"v_add_u32 v{X+2}, 1, v{X+2}")
    a(f"v_sub_u32 v{X+2}, v{X+2}, v{X+1}")
    a(f"v_max_i32 v{X+2}, 0, v{X+2}")
    a(f"v_cndmask_b32 v{X+2}, 0, v{X+2}, s[{S_MSK+4}:{S_MSK+5}]")
    a(f"v_subrev_u32 v{X+1}, s{S_NSH}, v{X+1}")
    a(f"v_add_u32 v{X+2}, s{S_NSH}, v{X+2}")
    a(f"v_lshlrev_b32 v{X+3}, 2, v{V_C}")
    a(f"v_add_u32 v{X+3}, 0x{LDS_PLAN:x}, v{X+3}")
    a(f"ds_write_b32 v{X+3}, v{X+1}")
    a(f"s_lshr_b32 s{S_T1}, s{S_IT0}, 1")
    a(f"s_and_b32 s{S_T1}, s{S_T1}, 7")
    a(f"s_add_u32 s{S_T1}, s{S_T1}, 1")
    a(f"v_readlane_b32 s{S_CNT}, v{X+2}, s{S_T1}")

def kernelA(a: Asm):
    a.label(KNAME)
    a("s_cmp_ge_u32 s2, 256")
    a("s_cbranch_scc1 A_END")
    if STAMP:
        a("s_memrealtime s[98:99]")
    a("s_load_dwordx16 s[8:23], s[0:1], 0")
    if PRIO:
        a("s_setprio 3")
    a(f"v_and_b32 v{V_LANE}, 63, v0")
    if CPF:
        a("s_getpc_b64 s[24:25]")
        a.label("A_PC")
        a(f"v_lshlrev_b32 v{V_T3}, 5, v0")
        a(f"v_min_u32 v{V_T3}, A_END-A_PC, v{V_T3}")
        a(f"global_load_dword v255, v{V_T3}, s[24:25]")
    a(f"v_lshrrev_b32 v{V_T0}, 6, v0")
    a(f"v_lshlrev_b32 v{V_T1}, 4, v{V_LANE}")
    a(f"v_readfirstlane_b32 s{S_W}, v{V_T0}")
    a(f"v_lshlrev_b32 v{V_T2}, 4, v0")
    a(f"v_lshrrev_b32 v{V_G}, 4, v{V_LANE}")
    a(f"v_and_b32 v{V_C}, 15, v{V_LANE}")
    assert CNTS[:4] == CNTS[4:]
    pre = [sum(CNTS[:h]) for h in range(4)]
    a(f"s_and_b32 s{S_IT}, s2, 127")
    a(f"s_lshr_b32 s{S_KVH}, s2, 7")
    a(f"s_lshl_b32 s{S_KVH}, s{S_KVH}, 2")
    a(f"s_mov_b32 s{S_T0}, 0")
    a(f"s_mov_b32 s{S_T1}, 0")
    a(f"s_mov_b32 s{S_NIT}, {CNTS[0]}")
    a(f"s_mov_b32 s{S_TM}, {-(-65536//CNTS[0])}")
    for h in range(1, 4):
        a(f"s_cmp_ge_u32 s{S_IT}, {pre[h]}")
        a(f"s_cselect_b32 s{S_T1}, {h}, s{S_T1}")
        a(f"s_cselect_b32 s{S_T0}, {pre[h]}, s{S_T0}")
        a(f"s_cselect_b32 s{S_NIT}, {CNTS[h]}, s{S_NIT}")
        a(f"s_cselect_b32 s{S_TM}, {-(-65536//CNTS[h])}, s{S_TM}")
    a(f"s_sub_u32 s{S_IT}, s{S_IT}, s{S_T0}")
    a(f"s_add_u32 s{S_KVH}, s{S_KVH}, s{S_T1}")
    a(f"s_sub_u32 s{S_IT0}, s{S_IT}, {COFF}")
    a(f"s_and_b32 s{S_T0}, s{S_W}, 3")
    a(f"s_lshl_b32 s{S_T0}, s{S_T0}, 2")
    a(f"v_add_u32 v{V_T0}, s{S_T0}, v{V_G}")
    a(f"v_xor_b32 v{V_T0}, v{V_T0}, v{V_C}")
    a(f"v_lshlrev_b32 v{V_T0}, 4, v{V_T0}")
    a(f"v_lshl_add_u32 v{V_QOFF}, v{V_G}, 8, v{V_T0}")
    a(f"s_lshl_b32 s{S_KVH256}, s{S_KVH}, 8")
    a(f"s_lshl_b32 s{S_QSOFF}, s{S_W}, 13")
    a(f"s_lshl_b32 s{S_T0}, s{S_KVH}, 10")
    a(f"s_add_u32 s{S_QSOFF}, s{S_QSOFF}, s{S_T0}")
    a(f"s_lshl_b32 s{S_QM0}, s{S_W}, 10")
    a(f"s_add_u32 s{S_QM0}, s{S_QM0}, 0x{LDS_Q:x}")
    a(f"s_lshl_b32 s{S_M0B}, s{S_W}, 14")
    for j in range(4):
        a(f"v_add_u32 v{V_T0}, {4*j}, v{V_G}")
        a(f"v_xor_b32 v{V_T3}, v{V_T0}, v{V_C}")
        a(f"v_lshlrev_b32 v{V_T3}, 4, v{V_T3}")
        a(f"v_lshl_add_u32 v{V_KOFF+j}, v{V_T0}, 11, v{V_T3}")
        if j:
            a(f"v_subrev_u32 v{V_KOFF+j}, {1024*j}, v{V_KOFF+j}")
        a(f"v_lshl_add_u32 v{V_LJ+j}, v{V_C}, 8, v{V_T3}")
    if SPEC:
        PN, PS = PRED_N, PRED_S
        a(f"s_cmp_ge_u32 s{S_W}, 4")
        a("s_cbranch_scc1 A_NOPRED")
        a(f"s_add_u32 s{S_T0}, s{S_NIT}, {PN - 1}")
        a(f"s_mul_i32 s{S_T0}, s{S_T0}, s{S_TM}")
        a(f"s_lshr_b32 s{S_T0}, s{S_T0}, 16")
        a(f"s_max_u32 s{S_T0}, s{S_T0}, {TMIN}")
        a(f"s_min_u32 s{S_T0}, s{S_T0}, 32")
        a(f"s_mul_i32 s{S_T2}, s{S_IT}, s{S_T0}")
        a(f"s_add_u32 s{S_T0}, s{S_T2}, s{S_T0}")
        a(f"s_min_u32 s{S_T0}, s{S_T0}, {PN}")
        a(f"s_add_u32 s{S_T2}, s{S_T2}, s{S_W}")
        X = V_X
        a(f"v_lshl_add_u32 v{X}, v{V_LANE}, 3, s{S_T2}")
        a(f"v_mov_b32 v{X+1}, v{X}")
        for th, dl in PRED_STEPS:
            a(f"v_subrev_u32 v{X+2}, {th - 1}, v{X}")
            a(f"v_med3_i32 v{X+2}, v{X+2}, 0, 1")
            a(f"v_mad_u32_u24 v{X+1}, v{X+2}, {dl}, v{X+1}")
        a(f"v_lshl_add_u32 v{X+1}, v{X+1}, 15, s{S_KVH256}")
        a(f"v_cmp_gt_u32 vcc, s{S_T0}, v{X}")
        a(f"v_mov_b32 v{X+2}, 0x{OOB:x}")
        a.nop(1)
        a(f"v_cndmask_b32 v{X+1}, v{X+2}, v{X+1}, vcc")
        a.nop(1)
        for i in range(4):
            a(f"v_readlane_b32 s{S_REM+i}, v{X+1}, {i}")
        a.label("A_NOPRED")
    a(f"s_lshl_b32 s{S_T1}, s{S_W}, 2")
    a("s_waitcnt lgkmcnt(0)")
    if STAMP:
        a(f"v_writelane_b32 v{V_STAMP}, s98, 0")
    stamp(a, 1)
    a(f"global_load_dwordx4 v[{V_ROW}:{V_ROW+3}], v{V_T2}, s[{S_BT}:{S_BT+1}]")
    a(f"global_load_dwordx4 v[{V_ROW0}:{V_ROW0+3}], v{V_T1}, s[{S_BT}:{S_BT+1}]")
    a(f"s_load_dword s{S_CTXW}, s[{S_CTX}:{S_CTX+1}], s{S_T1}")
    def srd(srd, p, sz):
        a(f"s_mov_b32 s{srd}, s{p}")
        a(f"s_and_b32 s{srd+1}, s{p+1}, 0xffff")
        a(f"s_mov_b32 s{srd+2}, 0x{sz:x}")
        a(f"s_mov_b32 s{srd+3}, 0x20000")
    srd(SRD_Q, S_Q, 65536)
    a(f"s_mov_b32 m0, s{S_QM0}")
    srd(SRD_K, S_K, KV_BYTES)
    a(f"buffer_load_dwordx4 v{V_QOFF}, s[{SRD_Q}:{SRD_Q+3}], s{S_QSOFF} offen lds")
    if SPEC:
        a("s_barrier")
        a(f"s_cmp_ge_u32 s{S_W}, 4")
        a("s_cbranch_scc1 A_NOSPEC")
        for i in range(SPECA):
            a(f"s_add_u32 m0, s{S_M0B}, {i*4096}")
            a.nop(1)
            for j in range(4):
                a(f"buffer_load_dwordx4 v{V_KOFF+j}, s[{SRD_K}:{SRD_K+3}], s{S_REM+i} offen offset:{1024*j} {POL} lds")
        a.label("A_NOSPEC")
    srd(SRD_V, S_V, KV_BYTES)
    srd(SRD_WS, S_WS, WS_SIZE)
    a(f"s_mov_b32 s{S_C}, 0x{CSCALE:08x}")
    a(f"s_mov_b32 s{S_L0X}, 0x00010001")
    a(f"s_mov_b32 s{S_L0X+1}, 0x00010001")
    a(f"s_mov_b32 s{S_LE8X}, 0x01ff01ff")
    a(f"s_mov_b32 s{S_LE8X+1}, 0x01ff01ff")
    a(f"v_mov_b32 v{V_NEG}, 0x{NEG:08x}")
    a(f"v_mov_b32 v{V_ZERO}, 0")
    a(f"s_movk_i32 s{S_FF}, 0xff")
    a(f"s_cmp_lg_u32 s2, {EPWG}")
    a("s_cbranch_scc1 A_NOEP")
    a(f"s_cmp_lg_u32 s{S_W}, 7")
    a("s_cbranch_scc1 A_NOEP")
    a(f"s_mov_b32 s{S_T0}, 0x{WS_EPOCH:x}")
    a(f"buffer_load_dword v{V_N}, v{V_ZERO}, s[{SRD_WS}:{SRD_WS+3}], s{S_T0} offen sc1")
    a("s_waitcnt vmcnt(0)")
    a(f"v_add_u32 v{V_N}, 1, v{V_N}")
    a(f"v_max_u32 v{V_N}, 1, v{V_N}")
    a("s_mov_b64 exec, 1")
    a(f"buffer_store_dword v{V_N}, v{V_ZERO}, s[{SRD_WS}:{SRD_WS+3}], s{S_T0} offen sc1")
    a(f"global_store_dword v{V_ZERO}, v{V_N}, s[{S_DBG}:{S_DBG+1}] sc0 sc1")
    a("s_mov_b64 exec, -1")
    a.label("A_NOEP")
    for j in range(4):
        a(f"v_add_u32 v{V_T0}, {4*j}, v{V_G}")
        a(f"v_and_b32 v{V_T3}, 7, v{V_T0}")
        a(f"v_lshlrev_b32 v{V_T3}, 1, v{V_T3}")
        a(f"v_xor_b32 v{V_T3}, v{V_T3}, v{V_C}")
        a(f"v_lshlrev_b32 v{V_T3}, 4, v{V_T3}")
        a(f"v_lshl_add_u32 v{V_VOFF+j}, v{V_T0}, 11, v{V_T3}")
        if j:
            a(f"v_subrev_u32 v{V_VOFF+j}, {1024*j}, v{V_VOFF+j}")
    for j in range(4):
        a(f"v_add_u32 v{V_KRD+j}, s{S_M0B}, v{V_LJ+j}")
        a(f"v_add_u32 v{V_LJ+j}, 0x{LDS_Q:x}, v{V_LJ+j}")
    a(f"v_lshrrev_b32 v{V_CB}, 2, v{V_C}")
    a(f"v_lshl_add_u32 v{V_T0}, v{V_G}, 2, v{V_CB}")
    a(f"v_and_b32 v{V_T3}, 7, v{V_T0}")
    a(f"v_xor_b32 v{V_T3}, s{S_W}, v{V_T3}")
    a(f"v_lshlrev_b32 v{V_T3}, 5, v{V_T3}")
    a(f"v_lshl_add_u32 v{V_T3}, v{V_T0}, 8, v{V_T3}")
    a(f"v_and_b32 v{V_T0}, 3, v{V_C}")
    a(f"v_lshl_add_u32 v{V_VTLO}, v{V_T0}, 3, v{V_T3}")
    a(f"v_add_u32 v{V_VTHI}, 0x10000, v{V_VTLO}")
    a(f"v_add_u32 v{V_PRD}, 0x{LDS_P:x}, v{V_T1}")
    a(f"s_lshr_b32 s{S_T0}, s{S_W}, 1")
    a(f"s_lshl_b32 s{S_T0}, s{S_T0}, 10")
    a(f"s_and_b32 s{S_T1}, s{S_W}, 1")
    a(f"s_lshl_b32 s{S_T1}, s{S_T1}, 3")
    a(f"s_add_u32 s{S_T0}, s{S_T0}, s{S_T1}")
    a(f"v_add_u32 v{V_PWR}, s{S_T0}, v{V_PRD}")
    a(f"v_lshlrev_b32 v{V_MADDR}, 5, v{V_C}")
    a(f"v_add_u32 v{V_MADDR}, 0x{LDS_M:x}, v{V_MADDR}")
    for r in range(4):
        a(f"v_lshl_add_u32 v{V_TOK+r}, v{V_G}, 2, {r}")
    a(f"v_lshlrev_b32 v{V_T0}, 19, v{V_G}")
    a(f"v_lshl_add_u32 v{V_OOFF}, v{V_C}, 4, v{V_T0}")
    a(f"v_lshlrev_b32 v{V_T0}, 13, v{V_CB}")
    a(f"v_and_b32 v{V_T3}, 3, v{V_C}")
    a(f"v_lshl_add_u32 v{V_MLOFF}, v{V_T3}, 8, v{V_T0}")
    a(f"v_add_u32 v{V_T0}, -1, v{V_C}")
    a(f"v_and_b32 v{V_T3}, 7, v{V_T0}")
    a(f"v_lshlrev_b32 v{V_T3}, 2, v{V_T3}")
    a(f"v_add_u32 v{V_CTXA}, 0x{LDS_SW+32:x}, v{V_T3}")
    a(f"v_max_i32 v{V_T0}, 0, v{V_T0}")
    a(f"v_min_u32 v{V_T0}, 7, v{V_T0}")
    a(f"v_lshlrev_b32 v{V_T0}, 10, v{V_T0}")
    a(f"v_add_u32 v{V_ROWB}, 0x{LDS_TBL:x}, v{V_T0}")
    a("s_waitcnt lgkmcnt(0)")
    a(f"s_max_i32 s{S_CTXW}, s{S_CTXW}, 0")
    a(f"s_min_i32 s{S_CTXW}, s{S_CTXW}, 4096")
    a(f"s_mov_b32 s{S_RND}, 0")
    a(f"v_mov_b32 v{V_FLG}, 0x{LDS_FLAG:x}")
    a(f"s_lshl_b32 s{S_T0}, s{S_W}, 2")
    a(f"v_add_u32 v{V_T0}, s{S_T0}, v{V_FLG}")
    a(f"ds_write2_b32 v{V_T0}, v{V_ZERO}, v{V_ZERO} offset0:0 offset1:8")
    a.label("A_ROUND")
    a(f"s_add_u32 s{S_RND}, s{S_RND}, 1")
    a(f"v_lshlrev_b32 v{V_T0}, 4, v0")
    a(f"v_add_u32 v{V_T0}, 0x{LDS_TBL:x}, v{V_T0}")
    a(f"s_lshl_b32 s{S_T0}, s{S_W}, 2")
    a(f"s_add_u32 s{S_T0}, s{S_T0}, 0x{LDS_SW:x}")
    a(f"v_mov_b32 v{V_T3}, s{S_T0}")
    a(f"v_mov_b32 v{V_X+1}, s{S_CTXW}")
    a(f"s_lshr_b32 s{S_T1}, s{S_CTXW}, 4")
    a(f"v_mov_b32 v{V_T2}, 0x{LDS_SW:x}")
    stamp(a, 2)
    if SPEC:
        a(f"s_cmp_eq_u32 s{S_RND}, 1")
        a(f"s_cselect_b32 s{S_T2}, 4, 0")
        a(f"s_cmp_lt_u32 s{S_W}, s{S_T2}")
        a("s_cbranch_scc1 A_W16")
        a("s_waitcnt vmcnt(0)")
        a("s_branch A_WD")
        a.label("A_W16")
        a(f"s_waitcnt vmcnt({4*SPECA})")
        a.label("A_WD")
    else:
        a("s_waitcnt vmcnt(0)")
    stamp(a, 3)
    for e in range(4):
        a(f"v_cmp_ne_u32 s[{S_MSK+2*e}:{S_MSK+2*e+1}], v{V_ROW+e}, v{V_ROW0+e}")
    a(f"ds_write_b128 v{V_T0}, v[{V_ROW}:{V_ROW+3}]")
    a(f"s_or_b64 s[{S_MSK}:{S_MSK+1}], s[{S_MSK}:{S_MSK+1}], s[{S_MSK+2}:{S_MSK+3}]")
    a(f"s_or_b64 s[{S_MSK+4}:{S_MSK+5}], s[{S_MSK+4}:{S_MSK+5}], s[{S_MSK+6}:{S_MSK+7}]")
    a(f"s_or_b64 s[{S_MSK}:{S_MSK+1}], s[{S_MSK}:{S_MSK+1}], s[{S_MSK+4}:{S_MSK+5}]")
    a(f"s_ff1_i32_b64 s{S_T0}, s[{S_MSK}:{S_MSK+1}]")
    a(f"s_lshl_b32 s{S_T0}, s{S_T0}, 2")
    a(f"s_min_u32 s{S_T0}, s{S_T0}, s{S_T1}")
    a(f"v_mov_b32 v{V_X}, s{S_T0}")
    a(f"ds_write2_b32 v{V_T3}, v{V_X}, v{V_X+1} offset0:0 offset1:8")
    a("s_waitcnt lgkmcnt(0)")
    a("s_barrier")
    X = V_X
    if SPEC and SPECA < 4:
        a(f"s_cmp_eq_u32 s{S_RND}, 1")
        a(f"s_cselect_b32 s{S_T0}, 4, 0")
        a(f"s_cmp_lt_u32 s{S_W}, s{S_T0}")
        a("s_cbranch_scc0 A_NOSPEC2")
        for i in range(SPECA, 4):
            a(f"s_add_u32 m0, s{S_M0B}, {i*4096}")
            a.nop(1)
            for j in range(4):
                a(f"buffer_load_dwordx4 v{V_KOFF+j}, s[{SRD_K}:{SRD_K+3}], s{S_REM+i} offen offset:{1024*j} {POL} lds")
        a.label("A_NOSPEC2")
    a(f"ds_read_b128 v[{X}:{X+3}], v{V_T2}")
    a(f"ds_read_b128 v[{X+4}:{X+7}], v{V_T2} offset:16")
    a(f"ds_read_b32 v{vctx}, v{V_CTXA}")
    a("s_waitcnt lgkmcnt(0)")
    a(f"v_min3_u32 v{X}, v{X}, v{X+1}, v{X+2}")
    a(f"v_min3_u32 v{X+3}, v{X+3}, v{X+4}, v{X+5}")
    a(f"v_add_u32 v{vn}, 15, v{vctx}")
    a(f"v_min3_u32 v{X}, v{X}, v{X+6}, v{X+7}")
    a(f"v_lshrrev_b32 v{vn}, 4, v{vn}")
    a(f"v_min_u32 v{vS}, v{X}, v{X+3}")
    a(f"v_sub_u32 v{vn}, v{vn}, v{vS}")
    a(f"v_cndmask_b32 v{vn}, v{vn}, v{vS}, s[{S_L0X}:{S_L0X+1}]")
    a(f"v_cndmask_b32 v{vn}, 0, v{vn}, s[{S_LE8X}:{S_LE8X+1}]")
    a(f"v_mov_b32 v{vcum}, v{vn}")
    a(f"v_cndmask_b32 v{X+8}, v{vS}, 0, s[{S_L0X}:{S_L0X+1}]")
    a(f"v_readfirstlane_b32 s{S_S}, v{vS}")
    dpp = "row_mask:0xf bank_mask:0xf bound_ctrl:0"
    a(f"v_add_u32_dpp v{vcum}, v{vcum}, v{vcum} row_shr:1 {dpp}")
    a(f"v_lshlrev_b32 v{X+9}, 3, v{V_G}")
    a(f"v_add_u32 v{X+9}, s{S_W}, v{X+9}")
    a(f"v_add_u32_dpp v{vcum}, v{vcum}, v{vcum} row_shr:2 {dpp}")
    a.nop(2)
    a(f"v_add_u32_dpp v{vcum}, v{vcum}, v{vcum} row_shr:4 {dpp}")
    a.nop(2)
    a(f"v_add_u32_dpp v{vcum}, v{vcum}, v{vcum} row_shr:8 {dpp}")
    a.nop(1)
    a(f"v_readlane_b32 s{S_N}, v{vcum}, 8")
    a(f"v_sub_u32 v{vex}, v{vcum}, v{vn}")
    a(f"v_sub_u32 v{X+8}, v{vex}, v{X+8}")
    a(f"s_add_u32 s{S_T}, s{S_N}, s{S_NIT}")
    a(f"s_sub_u32 s{S_T}, s{S_T}, 1")
    a(f"s_mul_i32 s{S_T}, s{S_T}, s{S_TM}")
    a(f"s_lshr_b32 s{S_T}, s{S_T}, 16")
    a(f"s_max_u32 s{S_T}, s{S_T}, {TMIN}")
    a(f"s_min_u32 s{S_T}, s{S_T}, 32")
    a(f"s_mul_i32 s{S_F0}, s{S_IT}, s{S_T}")
    a(f"s_add_u32 s{S_HI}, s{S_F0}, s{S_T}")
    a(f"s_min_u32 s{S_HI}, s{S_HI}, s{S_N}")
    a(f"s_cmp_ge_u32 s{S_F0}, s{S_N}")
    a("s_cbranch_scc1 A_FIN0")
    a(f"v_add_u32 v{X+9}, s{S_F0}, v{X+9}")
    a(f"v_min_u32 v{X+10}, s{S_HI}, v{vcum}")
    a(f"v_cmp_gt_u32 vcc, v{X+10}, v{X+9}")
    a(f"v_cmp_le_u32 s[{S_MM}:{S_MM+1}], v{vex}, v{X+9}")
    a(f"v_sub_u32 v{vj}, v{X+9}, v{X+8}")
    a(f"v_min_u32 v{vj}, 255, v{vj}")
    a(f"v_lshl_add_u32 v{X+10}, v{vj}, 2, v{V_ROWB}")
    a(f"ds_read_b32 v{X+11}, v{X+10}")
    a(f"s_and_b64 s[{S_MM}:{S_MM+1}], s[{S_MM}:{S_MM+1}], vcc")
    a(f"v_mov_b32 v{X+12}, 0x{OOB:x}")
    for i in range(4):
        src = S_MM + (i >> 1)
        if i & 1:
            a(f"s_lshr_b32 s{S_LANE+i}, s{src}, 16")
        else:
            a(f"s_and_b32 s{S_LANE+i}, s{src}, 0xffff")
        a(f"s_or_b32 s{S_LANE+i}, s{S_LANE+i}, 0x8000")
        a(f"s_ff1_i32_b32 s{S_LANE+i}, s{S_LANE+i}")
        if i:
            a(f"s_add_u32 s{S_LANE+i}, s{S_LANE+i}, {16*i}")
    a(f"s_mov_b32 m0, s{S_M0B}")
    a("s_waitcnt lgkmcnt(0)")
    a(f"v_lshl_add_u32 v{X+11}, v{X+11}, 15, s{S_KVH256}")
    a(f"v_cndmask_b32 v{X+11}, v{X+12}, v{X+11}, s[{S_MM}:{S_MM+1}]")
    a.nop(1)
    for i in range(4):
        a(f"v_readlane_b32 s{S_SOFF+i}, v{X+11}, s{S_LANE+i}")
    a.nop(3)
    stamp(a, 4)
    if SPEC:
        a(f"s_cmp_eq_u32 s{S_RND}, 1")
        a(f"s_cselect_b32 s{S_T2}, 4, 0")
        a(f"s_cmp_lt_u32 s{S_W}, s{S_T2}")
        a("s_cbranch_scc0 A_KISS")
        a(f"s_cmp_eq_u64 s[{S_SOFF}:{S_SOFF+1}], s[{S_REM}:{S_REM+1}]")
        a("s_cbranch_scc0 A_KREDO")
        a(f"s_cmp_eq_u64 s[{S_SOFF+2}:{S_SOFF+3}], s[{S_REM+2}:{S_REM+3}]")
        a("s_cbranch_scc1 A_KDONE")
        a.label("A_KREDO")
        a("s_waitcnt vmcnt(0)")
        a.label("A_KISS")
    for i in range(4):
        if i:
            a(f"s_add_u32 m0, s{S_M0B}, {i*4096}")
        a.nop(1)
        for j in range(4):
            a(f"buffer_load_dwordx4 v{V_KOFF+j}, s[{SRD_K}:{SRD_K+3}], s{S_SOFF+i} offen offset:{1024*j} {POL} lds")
    a.label("A_KDONE")
    if TLBW:
        a(f"s_cmp_lg_u32 s{S_W}, {TLBW - 1}")
        a("s_cbranch_scc1 A_NOTLB")
        a(f"s_cmp_lg_u32 s{S_RND}, 1")
        a("s_cbranch_scc1 A_NOTLB")
        a(f"v_lshlrev_b32 v{V_T3}, 21, v{V_LANE}")
        a(f"buffer_load_dword v254, v{V_T3}, s[{SRD_V}:{SRD_V+3}], 0 offen")
        a(f"buffer_load_dword v253, v{V_T3}, s[{SRD_WS}:{SRD_WS+3}], 0 offen")
        a(f"v_mov_b32 v{V_T3}, 0")
        a(f"global_load_dword v252, v{V_T3}, s[{S_OUT}:{S_OUT+1}]")
        if TLBK:
            a(f"v_lshlrev_b32 v{V_T3}, 21, v{V_LANE}")
            a(f"buffer_load_dword v251, v{V_T3}, s[{SRD_K}:{SRD_K+3}], 0 offen")
        a.label("A_NOTLB")
    if PRIO:
        a("s_setprio 0")
    a(f"v_lshlrev_b32 v{X}, 4, v{vj}")
    a(f"v_sub_u32 v{X}, v{vctx}, v{X}")
    a(f"v_mov_b32 v{X+1}, 16")
    a(f"v_cndmask_b32 v{X}, v{X}, v{X+1}, s[{S_L0X}:{S_L0X+1}]")
    a(f"v_cndmask_b32 v{X}, 0, v{X}, s[{S_MM}:{S_MM+1}]")
    for i in range(4):
        a(f"s_and_b32 s{S_OWN+i}, s{S_LANE+i}, 15")
        a(f"s_sub_u32 s{S_OWN+i}, s{S_OWN+i}, 1")
    for i in range(4):
        a(f"v_readlane_b32 s{S_REM+i}, v{X}, s{S_LANE+i}")
    plan_extra(a, "P1")
    a(f"s_cmp_lg_u32 s{S_NG2}, 0")
    a("s_cbranch_scc1 A_SHARED")
    body(a, 1)
    a("s_branch A_NEXT")
    a.label("A_SHARED")
    body(a, 2)
    a.label("A_NEXT")
    stamp(a, 13)
    a(f"s_add_u32 s{S_IT}, s{S_IT}, s{S_NIT}")
    a(f"s_mul_i32 s{S_T0}, s{S_IT}, s{S_T}")
    a(f"s_cmp_ge_u32 s{S_T0}, s{S_N}")
    a("s_cbranch_scc1 A_FIN")
    a("s_waitcnt lgkmcnt(0)")
    a("s_barrier")
    if PRIO:
        a("s_setprio 3")
    a(f"s_mov_b32 m0, s{S_QM0}")
    a.nop(1)
    a(f"buffer_load_dwordx4 v{V_QOFF}, s[{SRD_Q}:{SRD_Q+3}], s{S_QSOFF} offen lds")
    a("s_branch A_ROUND")
    a.label("A_FIN0")
    plan_extra(a, "P2")
    a(f"s_load_dword s{S_NON}, s[{S_DBG}:{S_DBG+1}], 0")
    a("s_waitcnt vmcnt(0) lgkmcnt(0)")
    a(f"v_mov_b32 v{V_N}, s{S_NON}")
    a.label("A_FIN")
    if NOCONS:
        a("s_branch A_DONE")
    a(f"s_cmp_ge_u32 s{S_IT0}, 16")
    a("s_cbranch_scc1 A_DONE")
    consumer(a)
    a.label("A_DONE")
    stamp(a, 14)
    stamp_out(a)
    a.label("A_END")
    a("s_endpgm")

def get_nonce(a, tag):
    a(f"v_cmp_eq_u32 vcc, 0, v{V_N}")
    a(f"s_cbranch_vccz {tag}_NOK")
    a(f"s_mov_b32 s{S_SPIN}, 0")
    a.label(f"{tag}_NSPIN")
    a(f"global_load_dword v{V_N}, v{V_ZERO}, s[{S_DBG}:{S_DBG+1}] sc1")
    a("s_waitcnt vmcnt(0)")
    a(f"s_add_u32 s{S_SPIN}, s{S_SPIN}, 1")
    a(f"s_cmp_ge_u32 s{S_SPIN}, 0x40000")
    a(f"s_cbranch_scc1 {tag}_NOK")
    a(f"v_cmp_eq_u32 vcc, 0, v{V_N}")
    a(f"s_cbranch_vccnz {tag}_NSPIN")
    a.label(f"{tag}_NOK")

def consumer(a):
    get_nonce(a, "C")
    D = V_Q
    ML0, ML1 = V_B, V_B + 4
    T0, T1 = V_X + 2, V_X + 3
    M0, L0, M1, L1 = V_X + 4, V_X + 5, V_X + 6, V_X + 7
    X0, X1, A0, A1 = V_X + 8, V_X + 9, V_X + 10, V_X + 11
    SB, SM, ST = S_T0, S_T1, S_T3
    SO = S_SOFF
    W0 = S_REM
    W1 = S_OWN
    srd = f"s[{SRD_WS}:{SRD_WS+3}]"
    a(f"s_lshr_b32 s{S_CB}, s{S_IT0}, 1")
    a(f"s_lshl_b32 s{S_CB}, s{S_CB}, 3")
    a(f"s_add_u32 s{S_CB}, s{S_CB}, s{S_KVH}")
    a(f"s_and_b32 s{S_RHO}, s{S_IT0}, 1")
    a(f"s_and_b32 s{S_GRP}, s{S_W}, 1")
    a(f"s_lshr_b32 s{S_LANE}, s{S_W}, 1")
    a(f"s_lshl_b32 s{SM}, s{S_CB}, 2")
    a(f"s_lshl_b32 s{ST}, s{S_RHO}, 1")
    a(f"s_add_u32 s{SM}, s{SM}, s{ST}")
    a(f"s_lshl_b32 s{SM}, s{SM}, 8")
    a(f"s_add_u32 s{SM}, s{SM}, 0x{WS_ML:x}")
    a(f"v_lshlrev_b32 v{V_T2}, 4, v{V_C}")
    a(f"buffer_load_dwordx4 v[{ML0}:{ML0+3}], v{V_T2}, {srd}, s{SM} offen sc1")
    a(f"buffer_load_dwordx4 v[{ML1}:{ML1+3}], v{V_T2}, {srd}, s{SM} offen offset:256 sc1")
    a(f"s_lshl_b32 s{SB}, s{S_CB}, 1")
    a(f"s_add_u32 s{SB}, s{SB}, s{S_RHO}")
    a(f"s_lshl_b32 s{SB}, s{SB}, 15")
    a(f"s_lshl_b32 s{ST}, s{S_GRP}, 10")
    a(f"s_add_u32 s{SB}, s{SB}, s{ST}")
    a(f"s_lshl_b32 s{ST}, s{S_LANE}, 11")
    a(f"s_add_u32 s{SB}, s{SB}, s{ST}")
    a(f"v_lshlrev_b32 v{V_T1}, 4, v{V_LANE}")
    a(f"s_mov_b32 s{S_PEND}, 0")
    for k in range(4):
        a(f"s_add_u32 s{S_LANE+1}, s{S_LANE}, {4*k}")
        a(f"s_add_u32 s{SO+k}, s{SB}, {8192*k}")
        a(f"s_cmp_lt_u32 s{S_LANE+1}, s{S_CNT}")
        a(f"s_cselect_b32 s{SO+k}, s{SO+k}, 0x{OOB:x}")
        a(f"s_cselect_b32 s{ST}, {1<<k}, 0")
        a(f"buffer_load_dwordx4 v[{D+4*k}:{D+4*k+3}], v{V_T1}, {srd}, s{SO+k} offen sc1")
        a(f"s_or_b32 s{S_PEND}, s{S_PEND}, s{ST}")
    a(f"v_cmp_gt_u32 s[{S_MSK}:{S_MSK+1}], s{S_CNT}, v{V_C}")
    a(f"s_mov_b32 s{S_SPIN}, 0")
    a("s_waitcnt vmcnt(4)")
    a.label("C_MLCHK")
    a(f"v_bitop3_b32 v{T0}, v{ML0+1}, v{ML0+3}, v{V_N} bitop3:0x7e")
    a(f"v_bitop3_b32 v{T1}, v{ML1+1}, v{ML1+3}, v{V_N} bitop3:0x7e")
    a(f"v_or_b32 v{T0}, v{T0}, v{T1}")
    a(f"v_cndmask_b32 v{T0}, 0, v{T0}, s[{S_MSK}:{S_MSK+1}]")
    a(f"v_cmp_ne_u32 vcc, 0, v{T0}")
    a("s_cbranch_vccz C_MLOK")
    a(f"s_add_u32 s{S_SPIN}, s{S_SPIN}, 1")
    a(f"s_cmp_ge_u32 s{S_SPIN}, 0x40000")
    a("s_cbranch_scc1 C_RED")
    a(f"s_sleep {SLEEP}")
    a(f"buffer_load_dwordx4 v[{ML0}:{ML0+3}], v{V_T2}, {srd}, s{SM} offen sc1")
    a(f"buffer_load_dwordx4 v[{ML1}:{ML1+3}], v{V_T2}, {srd}, s{SM} offen offset:256 sc1")
    a("s_waitcnt vmcnt(0)")
    a("s_branch C_MLCHK")
    a.label("C_MLOK")
    msk = f"s[{S_MSK}:{S_MSK+1}]"
    a(f"v_cndmask_b32 v{M0}, v{V_NEG}, v{ML0}, {msk}")
    a(f"v_cndmask_b32 v{M1}, v{V_NEG}, v{ML1}, {msk}")
    a(f"v_cndmask_b32 v{L0}, 0, v{ML0+2}, {msk}")
    a(f"v_cndmask_b32 v{L1}, 0, v{ML1+2}, {msk}")
    dpp = "row_mask:0xf bank_mask:0xf"
    a(f"v_mov_b32 v{X0}, v{M0}")
    a(f"v_mov_b32 v{X1}, v{M1}")
    for sh in (8, 4, 2, 1):
        a.nop(1)
        a(f"v_max_f32_dpp v{X0}, v{X0}, v{X0} row_ror:{sh} {dpp}")
        a(f"v_max_f32_dpp v{X1}, v{X1}, v{X1} row_ror:{sh} {dpp}")
    a(f"v_sub_f32 v{M0}, v{M0}, v{X0}")
    a(f"v_sub_f32 v{M1}, v{M1}, v{X1}")
    a(f"v_exp_f32 v{M0}, v{M0}")
    a(f"v_exp_f32 v{M1}, v{M1}")
    a.nop(1)
    a(f"v_mul_f32 v{X0}, v{M0}, v{L0}")
    a(f"v_mul_f32 v{X1}, v{M1}, v{L1}")
    for sh in (8, 4, 2, 1):
        a.nop(1)
        a(f"v_add_f32_dpp v{X0}, v{X0}, v{X0} row_ror:{sh} {dpp}")
        a(f"v_add_f32_dpp v{X1}, v{X1}, v{X1} row_ror:{sh} {dpp}")
    a(f"v_rcp_f32 v{X0}, v{X0}")
    a(f"v_rcp_f32 v{X1}, v{X1}")
    a(f"v_mov_b32 v{A0}, 0")
    a(f"v_mov_b32 v{A1}, 0")
    a(f"v_mul_f32 v{M0}, v{M0}, v{X0}")
    a(f"v_mul_f32 v{M1}, v{M1}, v{X1}")
    a.nop(1)
    for k in range(4):
        a(f"s_add_u32 s{S_LANE+1}, s{S_LANE}, {4*k}")
        a(f"v_readlane_b32 s{W0+k}, v{M0}, s{S_LANE+1}")
        a(f"v_readlane_b32 s{W1+k}, v{M1}, s{S_LANE+1}")
    def check(Dset, tag):
        for k in range(4):
            d = Dset + 4 * k
            a(f"s_bitcmp1_b32 s{S_PEND}, {k}")
            a(f"s_cbranch_scc0 {tag}{k}")
            a(f"v_bitop3_b32 v{T0}, v{d+1}, v{d+3}, v{V_N} bitop3:0x7e")
            a(f"v_bitop3_b32 v{T1}, v{d}, v{d+2}, v{V_N} bitop3:0x7e")
            a(f"v_and_or_b32 v{T0}, v{T1}, s{S_FF}, v{T0}")
            a(f"v_cmp_ne_u32 vcc, 0, v{T0}")
            a(f"s_cbranch_vccnz {tag}{k}")
            a(f"v_fmac_f32 v{A0}, s{W0+k}, v{d}")
            a(f"v_fmac_f32 v{A1}, s{W1+k}, v{d+2}")
            a(f"s_bitset0_b32 s{S_PEND}, {k}")
            a.label(f"{tag}{k}")
    def issue(Dset, tag):
        for k in range(4):
            a(f"s_bitcmp1_b32 s{S_PEND}, {k}")
            a(f"s_cselect_b32 s{ST}, s{SO+k}, 0x{OOB:x}")
            a(f"buffer_load_dwordx4 v[{Dset+4*k}:{Dset+4*k+3}], v{V_T1}, {srd}, s{ST} offen sc1")
    a("s_waitcnt vmcnt(0)")
    check(D, "C_A")
    a(f"s_cmp_eq_u32 s{S_PEND}, 0")
    a("s_cbranch_scc1 C_RED")
    if PIPE:
        issue(D, "i0")
        a.label("C_LOOP")
        a(f"s_sleep {PSLEEP}")
        issue(D + 16, "i1")
        a("s_waitcnt vmcnt(4)")
        check(D, "C_B")
        a(f"s_cmp_eq_u32 s{S_PEND}, 0")
        a("s_cbranch_scc1 C_RED")
        a(f"s_sleep {PSLEEP}")
        issue(D, "i2")
        a("s_waitcnt vmcnt(4)")
        check(D + 16, "C_C")
        a(f"s_add_u32 s{S_SPIN}, s{S_SPIN}, 1")
        a(f"s_cmp_ge_u32 s{S_SPIN}, 0x40000")
        a("s_cbranch_scc1 C_RED")
        a(f"s_cmp_lg_u32 s{S_PEND}, 0")
        a("s_cbranch_scc1 C_LOOP")
    else:
        a.label("C_LOOP")
        a(f"s_sleep {SLEEP}")
        issue(D, "i0")
        a("s_waitcnt vmcnt(0)")
        check(D, "C_B")
        a(f"s_add_u32 s{S_SPIN}, s{S_SPIN}, 1")
        a(f"s_cmp_ge_u32 s{S_SPIN}, 0x40000")
        a("s_cbranch_scc1 C_RED")
        a(f"s_cmp_lg_u32 s{S_PEND}, 0")
        a("s_cbranch_scc1 C_LOOP")
    a.label("C_RED")
    if STAMP:
        a(f"v_writelane_b32 v{V_STAMP}, s{S_SPIN}, 15")
        stamp(a, 12)
    a(f"v_lshlrev_b32 v{V_T0}, 3, v0")
    a(f"ds_write_b64 v{V_T0}, v[{A0}:{A1}]")
    a(f"s_lshl_b32 s{SB}, s{S_CB}, 1")
    a(f"s_add_u32 s{SB}, s{SB}, s{S_RHO}")
    a(f"s_lshl_b32 s{SB}, s{SB}, 9")
    a(f"s_lshl_b32 s{SM}, s{S_GRP}, 7")
    a(f"s_add_u32 s{SB}, s{SB}, s{SM}")
    a(f"v_lshlrev_b32 v{V_T1}, 1, v{V_LANE}")
    a(f"s_mov_b32 s{SRD_Q}, s{S_OUT}")
    a(f"s_and_b32 s{SRD_Q+1}, s{S_OUT+1}, 0xffff")
    a("s_waitcnt lgkmcnt(0)")
    a("s_barrier")
    a(f"s_cmp_ge_u32 s{S_W}, 2")
    a("s_cbranch_scc1 A_DONE")
    R = V_B + 8
    a(f"ds_read_b64 v[{R}:{R+1}], v{V_T0} offset:1024")
    a(f"ds_read_b64 v[{R+2}:{R+3}], v{V_T0} offset:2048")
    a(f"ds_read_b64 v[{R+4}:{R+5}], v{V_T0} offset:3072")
    a("s_waitcnt lgkmcnt(0)")
    a(f"v_add_f32 v{A0}, v{A0}, v{R}")
    a(f"v_add_f32 v{A1}, v{A1}, v{R+1}")
    a(f"v_add_f32 v{R+2}, v{R+2}, v{R+4}")
    a(f"v_add_f32 v{R+3}, v{R+3}, v{R+5}")
    a(f"v_add_f32 v{A0}, v{A0}, v{R+2}")
    a(f"v_add_f32 v{A1}, v{A1}, v{R+3}")
    a(f"v_cvt_pk_bf16_f32 v{A0}, v{A0}, v{A1}")
    a(f"buffer_store_short v{A0}, v{V_T1}, s[{SRD_Q}:{SRD_Q+3}], s{SB} offen {OUTPOL}")
    a(f"buffer_store_short_d16_hi v{A0}, v{V_T1}, s[{SRD_Q}:{SRD_Q+3}], s{SB} offen offset:256 {OUTPOL}")

def poll_flags(a, tag, off):
    X = V_X
    a.label(tag)
    a(f"ds_read_b128 v[{X}:{X+3}], v{V_FLG} offset:{off}")
    a(f"ds_read_b128 v[{X+4}:{X+7}], v{V_FLG} offset:{off+16}")
    a("s_waitcnt lgkmcnt(0)")
    a(f"v_min3_u32 v{X}, v{X}, v{X+1}, v{X+2}")
    a(f"v_min3_u32 v{X+3}, v{X+3}, v{X+4}, v{X+5}")
    a(f"v_min3_u32 v{X}, v{X}, v{X+6}, v{X+7}")
    a(f"v_min_u32 v{X}, v{X}, v{X+3}")
    a(f"v_cmp_gt_u32 vcc, s{S_RND}, v{X}")
    a(f"s_cbranch_vccnz {tag}")

def set_flag(a, off):
    a(f"s_lshl_b32 s{S_T0}, s{S_W}, 2")
    a(f"v_add_u32 v{V_T3}, s{S_T0}, v{V_FLG}")
    a(f"v_mov_b32 v{V_T2}, s{S_RND}")
    a(f"ds_write_b32 v{V_T3}, v{V_T2} offset:{off}")

def body(a: Asm, NG: int):
    tag = f"B{NG}"
    VSPLIT = VSPLIT1 if NG == 1 else VSPLIT2
    a.c(f"---- body NG={NG}")
    VS = [V_X + 8, V_X + 9]
    VM = [V_X + 10, V_X + 11]
    EX = [S_EX, S_EX + 2]
    EM = [S_EM, S_EM + 2]
    for g in range(NG):
        if NG == 1:
            a(f"s_lshl_b32 s{S_T0}, s{S_GRP}, 4")
            a(f"s_add_u32 s{S_T0}, s{S_T0}, 0x{LDS_PLAN+4:x}")
        else:
            a(f"s_mov_b32 s{S_T0}, 0x{LDS_PLAN+4+16*g:x}")
        a(f"v_lshl_add_u32 v{VS[g]}, v{V_G}, 2, s{S_T0}")
        a(f"v_lshl_add_u32 v{VM[g]}, v{V_CB}, 2, s{S_T0}")
        a(f"ds_read_b32 v{VS[g]}, v{VS[g]}")
        a(f"ds_read_b32 v{VM[g]}, v{VM[g]}")
    if NG == 1:
        a(f"s_lshl_b32 s{S_T0}, s{S_GRP}, 12")
        for j in range(4):
            a(f"v_add_u32 v{V_X+j}, s{S_T0}, v{V_LJ+j}")
        for j in range(4):
            a(f"ds_read_b128 v[{V_Q+4*j}:{V_Q+4*j+3}], v{V_X+j}")
    else:
        for g in range(2):
            for j in range(4):
                a(f"ds_read_b128 v[{V_Q+16*g+4*j}:{V_Q+16*g+4*j+3}], v{V_LJ+j} offset:{g*4096}")
    a(f"s_cmp_lt_u32 s{S_IT}, s{S_NSH}")
    a(f"s_cselect_b32 s{S_T1}, 0, -1")
    a("s_waitcnt lgkmcnt(0)")
    for g in range(NG):
        for V in (VS[g], VM[g]):
            a(f"v_and_b32 v{V}, s{S_T1}, v{V}")
            a(f"v_sub_u32 v{V}, s{S_IT}, v{V}")
        a(f"v_lshl_add_u32 v{VS[g]}, v{VS[g]}, 11, v{V_OOFF}")
        a(f"v_lshl_add_u32 v{VM[g]}, v{VM[g]}, 4, v{V_MLOFF}")
        if NG == 1:
            a(f"s_lshl_b32 s{S_T0}, s{S_GRP}, 2")
            a(f"s_lshr_b32 s{S_T0}, s{S_PM}, s{S_T0}")
        else:
            a(f"s_lshr_b32 s{S_T0}, s{S_PM}, {4*g}")
        a(f"v_lshrrev_b32 v{V_T3}, v{V_G}, s{S_T0}")
        a(f"v_and_b32 v{V_T3}, 1, v{V_T3}")
        a(f"v_cmp_ne_u32 s[{EX[g]}:{EX[g]+1}], 0, v{V_T3}")
        a(f"v_lshrrev_b32 v{V_T3}, v{V_CB}, s{S_T0}")
        a(f"v_and_b32 v{V_T3}, 1, v{V_T3}")
        a(f"v_cmp_ne_u32 s[{EM[g]}:{EM[g]+1}], 0, v{V_T3}")
        a(f"s_and_b32 s{EM[g]}, s{EM[g]}, 0xffff")
        a(f"s_mov_b32 s{EM[g]+1}, 0")
    a(f"s_lshl_b32 s{S_DO[0]}, s{S_KVH}, 16")
    a(f"s_lshl_b32 s{S_T2}, s{S_W}, 8")
    a(f"s_add_u32 s{S_DO[0]}, s{S_DO[0]}, s{S_T2}")
    if NG == 1:
        a(f"s_lshl_b32 s{S_T2}, s{S_GRP}, 21")
        a(f"s_add_u32 s{S_DO[0]}, s{S_DO[0]}, s{S_T2}")
    a(f"s_add_u32 s{S_DO[1]}, s{S_DO[0]}, 32768")
    a(f"s_add_u32 s{S_DO[2]}, s{S_DO[0]}, {4*524288}")
    a(f"s_add_u32 s{S_DO[3]}, s{S_DO[1]}, {4*524288}")
    stamp(a, 5)
    for i in range(4):
        a(f"s_waitcnt vmcnt({12 - 4*i})")
        if i == 0: stamp(a, 6)
        if i == 3: stamp(a, 7)
        for j in range(4):
            a(f"ds_read_b128 v[{V_KF+4*j}:{V_KF+4*j+3}], v{V_KRD+j} offset:{i*4096}")
        a("s_waitcnt lgkmcnt(0)")
        for g in range(NG):
            s = V_S + 16 * g + 4 * i
            for j in range(4):
                c = "0" if j == 0 else f"v[{s}:{s+3}]"
                a(f"v_mfma_f32_16x16x32_bf16 v[{s}:{s+3}], v[{V_KF+4*j}:{V_KF+4*j+3}], v[{V_Q+16*g+4*j}:{V_Q+16*g+4*j+3}], {c}")
    a.nop(8)
    for i in range(4):
        a(f"s_cmp_lt_i32 s{S_REM+i}, 16")
        a(f"s_cbranch_scc1 {tag}_DM{i}")
        a(f"s_cmp_eq_u32 s{S_MIXED}, 0")
        a(f"s_cbranch_scc1 {tag}_NM{i}")
        a(f"s_cmp_eq_u32 s{S_OWN+i}, -1")
        a(f"s_cbranch_scc1 {tag}_NM{i}")
        a.label(f"{tag}_DM{i}")
        for r in range(4):
            a(f"v_cmp_gt_i32 s[{S_MSK+2*r}:{S_MSK+2*r+1}], s{S_REM+i}, v{V_TOK+r}")
        for g in range(NG):
            if NG == 1:
                a(f"s_lshl_b32 s{S_T0}, s{S_GRP}, 2")
                a(f"s_sub_u32 s{S_T0}, s{S_OWN+i}, s{S_T0}")
            else:
                a(f"s_sub_u32 s{S_T0}, s{S_OWN+i}, {4*g}")
            a(f"v_cmp_eq_u32 s[{S_OM+2*g}:{S_OM+2*g+1}], s{S_T0}, v{V_CB}")
            a(f"s_cmp_eq_u32 s{S_OWN+i}, -1")
            a(f"s_cselect_b64 s[{S_OM+2*g}:{S_OM+2*g+1}], -1, s[{S_OM+2*g}:{S_OM+2*g+1}]")
        for g in range(NG):
            for r in range(4):
                s = V_S + 16 * g + 4 * i + r
                a(f"s_and_b64 vcc, s[{S_MSK+2*r}:{S_MSK+2*r+1}], s[{S_OM+2*g}:{S_OM+2*g+1}]")
                a(f"v_cndmask_b32 v{s}, v{V_NEG}, v{s}, vcc")
        a.label(f"{tag}_NM{i}")
    for g in range(NG):
        s = V_S + 16 * g
        x = V_X + 1 + 2 * g
        a(f"v_max3_f32 v{x}, v{s}, v{s+1}, v{s+2}")
        for k in range(3, 15, 2):
            a(f"v_max3_f32 v{x}, v{x}, v{s+k}, v{s+k+1}")
        a(f"v_max_f32 v{x}, v{x}, v{s+15}")
    def xreduce(op):
        for swap in ("v_permlane16_swap_b32", "v_permlane32_swap_b32"):
            for g in range(NG):
                x = V_X + 1 + 2 * g
                a(f"v_mov_b32 v{x+1}, v{x}")
            a.nop(2)
            for g in range(NG):
                x = V_X + 1 + 2 * g
                a(f"{swap} v{x}, v{x+1}")
            a.nop(1)
            for g in range(NG):
                x = V_X + 1 + 2 * g
                a(f"{op} v{x}, v{x}, v{x+1}")
    xreduce("v_max_f32")
    a(f"s_lshl_b32 s{S_T0}, s{S_W}, 2")
    a(f"v_add_u32 v{V_T0}, s{S_T0}, v{V_MADDR}")
    for g in range(NG):
        a(f"ds_write_b32 v{V_T0}, v{V_X+1+2*g} offset:{g*512}")
    set_flag(a, 0)
    def vissue(lo=0, hi=4):
        for ii in range(lo, hi):
            a(f"s_add_u32 m0, s{S_M0B}, {ii*4096}")
            a.nop(1)
            for j in range(4):
                a(f"buffer_load_dwordx4 v{V_VOFF+j}, s[{SRD_V}:{SRD_V+3}], s{S_SOFF+ii} offen offset:{1024*j} {POL} lds")
    vissue(0, VSPLIT)
    a(f"s_cmp_ge_u32 s{S_W}, 4")
    a(f"s_cbranch_scc1 {tag}_V1")
    vissue(VSPLIT, 4)
    a.label(f"{tag}_V1")
    a(f"s_load_dword s{S_NON}, s[{S_DBG}:{S_DBG+1}], 0")
    poll_flags(a, f"{tag}_PM", 0)
    stamp(a, 8)
    for g in range(NG):
        k = V_KF + 8 * g
        a(f"ds_read_b128 v[{k}:{k+3}], v{V_MADDR} offset:{g*512}")
        a(f"ds_read_b128 v[{k+4}:{k+7}], v{V_MADDR} offset:{g*512+16}")
    a("s_waitcnt lgkmcnt(0)")
    for g in range(NG):
        k = V_KF + 8 * g
        a(f"v_max3_f32 v{k}, v{k}, v{k+1}, v{k+2}")
        a(f"v_max3_f32 v{k+3}, v{k+3}, v{k+4}, v{k+5}")
        a(f"v_max3_f32 v{k}, v{k}, v{k+6}, v{k+7}")
        a(f"v_max_f32 v{k}, v{k}, v{k+3}")
        a(f"v_mul_f32 v{V_MC+g}, s{S_C}, v{k}")
    for g in range(NG):
        for k in range(16):
            s = V_S + 16 * g + k
            a(f"v_fma_f32 v{s}, v{s}, s{S_C}, -v{V_MC+g}")
        for k in range(16):
            s = V_S + 16 * g + k
            a(f"v_exp_f32 v{s}, v{s}")
    a.nop(1)
    for g in range(NG):
        for i in range(4):
            s = V_S + 16 * g + 4 * i
            p = V_P + 8 * g + 2 * i
            a(f"v_cvt_pk_bf16_f32 v{p}, v{s}, v{s+1}")
            a(f"v_cvt_pk_bf16_f32 v{p+1}, v{s+2}, v{s+3}")
    def prow_off(i, g):
        if NG == 1:
            return i * 4096
        return (i % 3) * 8192 + g * 4096
    nrows0 = 4 if NG == 1 else 3
    for i in range(nrows0):
        for g in range(NG):
            p = V_P + 8 * g + 2 * i
            a(f"ds_write_b64 v{V_PWR}, v[{p}:{p+1}] offset:{prow_off(i, g)}")
    for g in range(NG):
        s = V_S + 16 * g
        x = V_X + 1 + 2 * g
        for k in range(0, 16, 2):
            a(f"v_add_f32 v{s+k}, v{s+k}, v{s+k+1}")
        for k in range(0, 16, 4):
            a(f"v_add_f32 v{s+k}, v{s+k}, v{s+k+2}")
        a(f"v_add_f32 v{s}, v{s}, v{s+4}")
        a(f"v_add_f32 v{s+8}, v{s+8}, v{s+12}")
        a(f"v_add_f32 v{x}, v{s}, v{s+8}")
    xreduce("v_add_f32")
    a(f"v_add_u32 v{V_T0}, 1024, v{V_T0}")
    for g in range(NG):
        a(f"ds_write_b32 v{V_T0}, v{V_X+1+2*g} offset:{g*512}")
    set_flag(a, 32)
    def v2():
        a(f"s_cmp_lt_u32 s{S_W}, 4")
        a(f"s_cbranch_scc1 {tag}_V2")
        vissue(VSPLIT, 4)
        a.label(f"{tag}_V2")
    if not PFIRST:
        v2()
    poll_flags(a, f"{tag}_PP", 32)
    def preg(i, g, u):
        return PREG[(i * 4 + u) * NG + g]
    def pread(i):
        for u in range(4):
            for g in range(NG):
                A = preg(i, g, u)
                a(f"ds_read_b128 v[{A}:{A+3}], v{V_PRD} offset:{prow_off(i, g) + u*1024}")
    for i in range(nrows0):
        pread(i)
        if NG == 2:
            a("s_waitcnt lgkmcnt(0)")
        elif i == 2:
            a("s_waitcnt lgkmcnt(4)")
    if PFIRST:
        v2()
    MLR = [V_X + 4, V_X + 12]
    def mlprep():
        a(f"s_cmp_lg_u32 s{S_W}, {MLWAVE}")
        a(f"s_cbranch_scc1 {tag}_NOMLP")
        for g in range(NG):
            X = V_B
            R = MLR[g]
            a(f"ds_read_b128 v[{X}:{X+3}], v{V_MADDR} offset:{1024+g*512}")
            a(f"ds_read_b128 v[{X+4}:{X+7}], v{V_MADDR} offset:{1024+g*512+16}")
            a("s_waitcnt lgkmcnt(0)")
            for t in range(4):
                a(f"v_add_f32 v{X+t}, v{X+t}, v{X+t+4}")
            a(f"v_add_f32 v{X}, v{X}, v{X+1}")
            a(f"v_add_f32 v{X+2}, v{X+2}, v{X+3}")
            a(f"v_add_f32 v{R+2}, v{X}, v{X+2}")
            a(f"v_mov_b32 v{R}, v{V_MC+g}")
            a(f"v_mov_b32 v{R+1}, v{V_N}")
            a(f"v_mov_b32 v{R+3}, v{V_N}")
        a.label(f"{tag}_NOMLP")
    def mlpub():
        a(f"s_cmp_lg_u32 s{S_W}, {MLWAVE}")
        a(f"s_cbranch_scc1 {tag}_NOML")
        a(f"s_lshl_b32 s{S_T1}, s{S_KVH}, 10")
        a(f"s_add_u32 s{S_T1}, s{S_T1}, 0x{WS_ML:x}")
        if NG == 1:
            a(f"s_lshl_b32 s{S_T2}, s{S_GRP}, 15")
            a(f"s_add_u32 s{S_T1}, s{S_T1}, s{S_T2}")
        for g in range(NG):
            R = MLR[g]
            if g == 1:
                a(f"s_add_u32 s{S_T1}, s{S_T1}, 32768")
            a(f"s_mov_b64 exec, s[{EM[g]}:{EM[g]+1}]")
            a(f"buffer_store_dwordx4 v[{R}:{R+3}], v{VM[g]}, s[{SRD_WS}:{SRD_WS+3}], s{S_T1} offen sc1")
        a("s_mov_b64 exec, -1")
        a.label(f"{tag}_NOML")
    a(f"v_mov_b32 v{V_N}, s{S_NON}")
    get_nonce(a, tag)
    for g in range(NG):
        for rho in range(2):
            G = V_G0 + 8 * g + 4 * rho
            a(f"v_mov_b32 v{G+1}, v{V_N}")
            a(f"v_mov_b32 v{G+3}, v{V_N}")
    a("s_waitcnt lgkmcnt(0)")
    mlprep()
    if MLROW < 0:
        mlpub()
    for i in range(4):
        a(f"s_waitcnt vmcnt({12-4*i}) lgkmcnt(0)")
        a("s_barrier")
        stamp(a, 9 + i)
        for u in range(4):
            B = V_B + 4 * u
            for h in range(2):
                wv = 2 * u + h
                base = V_VTLO if wv < 4 else V_VTHI
                off = (wv & 3) * 16384 + i * 4096
                a(f"ds_read_b64_tr_b16 v[{B+2*h}:{B+2*h+1}], v{base} offset:{off}")
        extra = 0
        if NG == 2 and i == 0:
            for g in range(NG):
                p = V_P + 8 * g + 6
                a(f"ds_write_b64 v{V_PWR}, v[{p}:{p+1}] offset:{prow_off(3, g)}")
            extra = 2
        for u in range(4):
            n = 2 * (3 - u) + extra
            assert n <= 15
            a(f"s_waitcnt lgkmcnt({n})")
            B = V_B + 4 * u
            for g in range(NG):
                A = preg(i, g, u)
                acc = V_ACC + 4 * g
                c = "0" if (i == 0 and u == 0) else f"v[{acc}:{acc+3}]"
                a(f"v_mfma_f32_16x16x32_bf16 v[{acc}:{acc+3}], v[{A}:{A+3}], v[{B}:{B+3}], {c}")
            if NG == 2 and i == 1 and u == 0:
                pread(3)
                extra = 8
        if i == MLROW:
            mlpub()
    a.nop(8)
    for g in range(NG):
        for rho in range(2):
            G = V_G0 + 8 * g + 4 * rho
            a(f"v_bfi_b32 v{G}, s{S_FF}, v{V_N}, v{V_ACC+4*g+2*rho}")
            a(f"v_bfi_b32 v{G+2}, s{S_FF}, v{V_N}, v{V_ACC+4*g+2*rho+1}")
    for g in range(NG):
        a(f"s_mov_b64 exec, s[{EX[g]}:{EX[g]+1}]")
        for rho in range(2):
            G = V_G0 + 8 * g + 4 * rho
            a(f"buffer_store_dwordx4 v[{G}:{G+3}], v{VS[g]}, s[{SRD_WS}:{SRD_WS+3}], s{S_DO[2*g+rho]} offen sc1")
    a("s_mov_b64 exec, -1")

HEADER = """; paged decode attention (radix shared prefix aware), single launch, in-kernel split-KV combine
; @launch grid=(256,1,1) block=(512,1,1) lds={lds}
.amdgcn_target "amdgcn-amd-amdhsa--gfx950"
.text
"""

def kd(name, vgpr, sgpr):
    acc = (vgpr + 3) // 4 * 4
    return f""".amdhsa_kernel {name}
  .amdhsa_next_free_vgpr {vgpr}
  .amdhsa_next_free_sgpr {sgpr}
  .amdhsa_accum_offset {acc}
  .amdhsa_group_segment_fixed_size 0
  .amdhsa_kernarg_size 64
  .amdhsa_user_sgpr_count 2
  .amdhsa_user_sgpr_kernarg_segment_ptr 1
  .amdhsa_system_sgpr_workgroup_id_x 1
.end_amdhsa_kernel
"""

def main(out):
    t = HEADER.format(lds=LDS_TOTAL)
    a = Asm()
    kernelA(a)
    t += f".globl {KNAME}\n.p2align 8\n.type {KNAME},@function\n" + a.text()
    t += '.section .rodata,"a"\n.p2align 6\n' + kd(KNAME, V_END, 102)
    open(out, "w").write(t)

if __name__ == "__main__":
    main(sys.argv[1] if len(sys.argv) > 1 else f"cdna_kernels/{NAME}.s")
```

```python
import struct, sys, math, os

NAME = "standalone__paged_block_table_kv_radixattention__decode"
KNAME = NAME + "_kernel"
E = os.environ.get
STAMP = int(E('STAMP', '0'))
POL = E('POL', 'nt')
PRIO = int(E('PRIO', '1'))
SLEEP = int(E('SLEEP', '2'))
NOCONS = int(E('NOCONS', '0'))
MLROW = int(E('MLROW', '-1'))
MLWAVE = int(E('MLWAVE', '0'))
CNTS = [int(x) for x in E('CNT', '29,41,28,30,29,41,28,30').split(',')]
assert sum(CNTS) == 256 and min(CNTS) >= 16
VSPLIT1 = int(E('VSPLIT', '1'))
VSPLIT2 = int(E('VSPLIT2', '2'))
COFF = int(E('COFF', '8'))
PIPE = int(E('PIPE', '1'))
PSLEEP = int(E('PSLEEP', '1'))
SPEC = int(E('SPEC', '1'))
SPECA = int(E('SPECA', '2'))
PFIRST = int(E('PFIRST', '0'))
CPF = int(E('CPF', '0'))
TLBW = int(E('TLBW', '0'))
TLBK = int(E('TLBK', '0'))
EPWG = int(E('EPWG', '-1'))
OUTPOL = E('OUTPOL', '')
TMIN = int(E('TMIN', '20'))
NCONS = int(E('NCONS', '128'))

if EPWG < 0: EPWG = CNTS[0] - 1
def _pred():
    ctx = [4096 - ((b + 1) * 2654435761) % 1024 for b in range(8)]
    S = 128
    n = [(c + 15) // 16 - S for c in ctx]
    P = [S]
    for x in n: P.append(P[-1] + x)
    off = [128 + 128 * b - P[b] for b in range(8)]
    steps = [(P[b], off[b] - off[b - 1]) for b in range(1, 8)]
    assert off[0] == 0 and all(0 < d <= 64 for _, d in steps), steps
    return P[-1], S, steps
PRED_N, PRED_S, PRED_STEPS = _pred()

def f32bits(x):
    return struct.unpack("<I", struct.pack("<f", x))[0]

class Asm:
    def __init__(self):
        self.lines = []
    def __call__(self, s):
        self.lines.append("  " + s)
    def label(self, s):
        self.lines.append(s + ":")
    def nop(self, n):
        while n > 0:
            k = min(n, 16)
            self.lines.append("  s_nop %d" % (k - 1))
            n -= k
    def c(self, s):
        self.lines.append("  ; " + s)
    def text(self):
        return "\n".join(self.lines) + "\n"

KV_BYTES = 1152 * 32768
NEG = 0xF1800000
CSCALE = f32bits((128 ** -0.5) * math.log2(math.e))
LDS_P = 131072
LDS_TBL = LDS_P
LDS_SW = LDS_P + 8192
LDS_Q = LDS_P + 12288
LDS_M = LDS_P + 24576
LDS_L = LDS_M + 1024
LDS_PLAN = LDS_L + 1024
LDS_FLAG = LDS_PLAN + 64
LDS_TOTAL = LDS_FLAG + 64
WS_ML = 4 << 20
WS_EPOCH = WS_ML + 65536
WS_SIZE = 8 << 20
WS_STAMP = 6 << 20
NS = 16
OOB = 0x80000000

S_W = 3
S_L0X = 4
S_LE8X = 6
S_Q, S_K, S_V, S_BT, S_CTX, S_OUT, S_DBG, S_WS = 8, 10, 12, 14, 16, 18, 20, 22
SRD_K, SRD_V, SRD_Q, SRD_WS = 24, 28, 32, 36
S_CTXW, S_S, S_IT, S_KVH, S_N, S_T, S_F0, S_HI, S_FB, S_NSH, S_PM, S_MIXED, S_GRP, S_NG2 = range(40, 54)
S_LANE = 54
S_SOFF = 60
S_REM = 64
S_T0, S_T1, S_T2, S_T3 = 68, 69, 70, 71
S_MSK = 72
S_C, S_M0B, S_KVH256, S_QM0, S_QSOFF = 80, 81, 82, 83, 84
S_CNT, S_FF, S_SPIN, S_PEND = 86, 87, 88, 89
S_OWN = 90
S_MM = 94
S_OM = 96
S_CB = 53
S_RHO = 59
S_RND = 85
S_NIT = 48
S_TM = 100
S_IT0 = 101
S_NON = 58
S_EX = 8
S_EM = 12
S_DO = [16, 17, 22, 23]

V_LANE, V_T0, V_T1, V_T2, V_T3 = 1, 2, 3, 4, 5
V_G, V_C = 6, 7
V_ROW = 8
V_ROW0 = 12
V_KOFF = 16
V_VOFF = 20
V_KRD = 24
V_LJ = 28
V_VTLO, V_VTHI = 32, 33
V_PRD, V_PWR, V_MADDR, V_ROWB = 34, 35, 36, 37
V_TOK = 38
V_QOFF, V_OOFF, V_MLOFF, V_CTXA, V_NEG, V_CB = 42, 43, 44, 45, 46, 47
V_MC = 48
V_L = 50
V_X = 52
V_Q = 68
V_KF = 100
V_S = 116
V_P = 148
V_A = 164
V_B = 164
V_ACC = 188
V_STAMP = 196
V_N = 197
V_ZERO = 198
V_G0 = 200
V_D = 216
V_VS = 52 + 8
V_FLG = 199
V_END = 256
PREG = [68 + 4*k for k in range(20)] + [180, 184, 216, 220] + [224 + 4*k for k in range(8)]

def stamp(a, idx):
    if not STAMP: return
    a("s_memrealtime s[98:99]")
    a("s_waitcnt lgkmcnt(0)")
    a(f"v_writelane_b32 v{V_STAMP}, s98, {idx}")
def stamp_out(a):
    if not STAMP: return
    a(f"v_lshlrev_b32 v{V_T0}, 2, v{V_LANE}")
    a("s_mov_b64 exec, 0xffff")
    a(f"s_lshl_b32 s{S_T0}, s2, 3")
    a(f"s_add_u32 s{S_T0}, s{S_T0}, s{S_W}")
    a(f"s_lshl_b32 s{S_T0}, s{S_T0}, 6")
    a(f"s_add_u32 s{S_T0}, s{S_T0}, 0x{WS_STAMP:x}")
    a(f"buffer_store_dword v{V_STAMP}, v{V_T0}, s[{SRD_WS}:{SRD_WS+3}], s{S_T0} offen")
    a("s_mov_b64 exec, -1")

vctx, vS, vn, vcum, vex, vj = V_D, V_D+1, V_D+2, V_D+3, V_D+4, V_D+5

def plan_extra(a, tag):
    X = V_X
    a(f"v_cvt_f32_u32 v{X}, s{S_T}")
    a(f"v_cmp_gt_u32 s[{S_MSK}:{S_MSK+1}], s{S_HI}, v{vex}")
    a(f"v_rcp_f32 v{X}, v{X}")
    a(f"v_cmp_lt_u32 s[{S_MSK+2}:{S_MSK+3}], s{S_F0}, v{vcum}")
    a(f"v_cmp_lt_u32 s[{S_MSK+4}:{S_MSK+5}], 0, v{vn}")
    a(f"v_cvt_f32_u32 v{X+1}, v{vex}")
    a(f"v_add_u32 v{X+2}, -1, v{vcum}")
    a(f"v_cvt_f32_u32 v{X+2}, v{X+2}")
    a(f"s_and_b32 s{S_T0}, s{S_MSK}, s{S_MSK+2}")
    a(f"s_and_b32 s{S_T0}, s{S_T0}, s{S_MSK+4}")
    a(f"s_and_b32 s{S_T0}, s{S_T0}, 0x1ff")
    a(f"v_mul_f32 v{X+1}, v{X+1}, v{X}")
    a(f"v_mul_f32 v{X+2}, v{X+2}, v{X}")
    a(f"v_add_f32 v{X+1}, 0x3ba3d70a, v{X+1}")
    a(f"v_add_f32 v{X+2}, 0x3ba3d70a, v{X+2}")
    a(f"v_cvt_u32_f32 v{X+1}, v{X+1}")
    a(f"v_cvt_u32_f32 v{X+2}, v{X+2}")
    a(f"s_bcnt1_i32_b32 s{S_T1}, s{S_T0}")
    a(f"s_cmp_gt_u32 s{S_T1}, 1")
    a(f"s_cselect_b32 s{S_MIXED}, 1, 0")
    a(f"s_lshr_b32 s{S_T1}, s{S_T0}, 1")
    a(f"v_readlane_b32 s{S_NSH}, v{X+2}, 0")
    a(f"s_and_b32 s{S_T2}, s{S_T1}, 0xf")
    a(f"s_cmp_eq_u32 s{S_T2}, 0")
    a(f"s_cselect_b32 s{S_GRP}, 1, 0")
    a(f"s_lshr_b32 s{S_T3}, s{S_T1}, 4")
    a(f"s_min_u32 s{S_T2}, s{S_T2}, 1")
    a(f"s_min_u32 s{S_T3}, s{S_T3}, 1")
    a(f"s_and_b32 s{S_T2}, s{S_T2}, s{S_T3}")
    a(f"s_and_b32 s{S_T3}, s{S_T0}, 1")
    a(f"s_or_b32 s{S_NG2}, s{S_T2}, s{S_T3}")
    a(f"s_cmp_lg_u32 s{S_T3}, 0")
    a(f"s_cselect_b32 s{S_PM}, 0xff, s{S_T1}")
    a(f"s_add_u32 s{S_NSH}, s{S_NSH}, 1")
    a(f"s_cmp_eq_u32 s{S_S}, 0")
    a(f"s_cselect_b32 s{S_NSH}, 0, s{S_NSH}")
    a(f"v_max_u32 v{X+1}, s{S_NSH}, v{X+1}")
    a(f"v_add_u32 v{X+2}, 1, v{X+2}")
    a(f"v_sub_u32 v{X+2}, v{X+2}, v{X+1}")
    a(f"v_max_i32 v{X+2}, 0, v{X+2}")
    a(f"v_cndmask_b32 v{X+2}, 0, v{X+2}, s[{S_MSK+4}:{S_MSK+5}]")
    a(f"v_subrev_u32 v{X+1}, s{S_NSH}, v{X+1}")
    a(f"v_add_u32 v{X+2}, s{S_NSH}, v{X+2}")
    a(f"v_lshlrev_b32 v{X+3}, 2, v{V_C}")
    a(f"v_add_u32 v{X+3}, 0x{LDS_PLAN:x}, v{X+3}")
    a(f"ds_write_b32 v{X+3}, v{X+1}")
    a(f"s_lshr_b32 s{S_T1}, s{S_IT0}, 1")
    a(f"s_and_b32 s{S_T1}, s{S_T1}, 7")
    a(f"s_add_u32 s{S_T1}, s{S_T1}, 1")
    a(f"v_readlane_b32 s{S_CNT}, v{X+2}, s{S_T1}")

def kernelA(a: Asm):
    a.label(KNAME)
    a("s_cmp_ge_u32 s2, 256")
    a("s_cbranch_scc1 A_END")
    if STAMP:
        a("s_memrealtime s[98:99]")
    a("s_load_dwordx16 s[8:23], s[0:1], 0")
    if PRIO:
        a("s_setprio 3")
    a(f"v_and_b32 v{V_LANE}, 63, v0")
    if CPF:
        a("s_getpc_b64 s[24:25]")
        a.label("A_PC")
        a(f"v_lshlrev_b32 v{V_T3}, 5, v0")
        a(f"v_min_u32 v{V_T3}, A_END-A_PC, v{V_T3}")
        a(f"global_load_dword v255, v{V_T3}, s[24:25]")
    a(f"v_lshrrev_b32 v{V_T0}, 6, v0")
    a(f"v_lshlrev_b32 v{V_T1}, 4, v{V_LANE}")
    a(f"v_readfirstlane_b32 s{S_W}, v{V_T0}")
    a(f"v_lshlrev_b32 v{V_T2}, 4, v0")
    a(f"v_lshrrev_b32 v{V_G}, 4, v{V_LANE}")
    a(f"v_and_b32 v{V_C}, 15, v{V_LANE}")
    assert CNTS[:4] == CNTS[4:]
    pre = [sum(CNTS[:h]) for h in range(4)]
    a(f"s_and_b32 s{S_IT}, s2, 127")
    a(f"s_lshr_b32 s{S_KVH}, s2, 7")
    a(f"s_lshl_b32 s{S_KVH}, s{S_KVH}, 2")
    a(f"s_mov_b32 s{S_T0}, 0")
    a(f"s_mov_b32 s{S_T1}, 0")
    a(f"s_mov_b32 s{S_NIT}, {CNTS[0]}")
    a(f"s_mov_b32 s{S_TM}, {-(-65536//CNTS[0])}")
    for h in range(1, 4):
        a(f"s_cmp_ge_u32 s{S_IT}, {pre[h]}")
        a(f"s_cselect_b32 s{S_T1}, {h}, s{S_T1}")
        a(f"s_cselect_b32 s{S_T0}, {pre[h]}, s{S_T0}")
        a(f"s_cselect_b32 s{S_NIT}, {CNTS[h]}, s{S_NIT}")
        a(f"s_cselect_b32 s{S_TM}, {-(-65536//CNTS[h])}, s{S_TM}")
    a(f"s_sub_u32 s{S_IT}, s{S_IT}, s{S_T0}")
    a(f"s_add_u32 s{S_KVH}, s{S_KVH}, s{S_T1}")
    a(f"s_sub_u32 s{S_IT0}, s{S_IT}, {COFF}")
    a(f"s_and_b32 s{S_T0}, s{S_W}, 3")
    a(f"s_lshl_b32 s{S_T0}, s{S_T0}, 2")
    a(f"v_add_u32 v{V_T0}, s{S_T0}, v{V_G}")
    a(f"v_xor_b32 v{V_T0}, v{V_T0}, v{V_C}")
    a(f"v_lshlrev_b32 v{V_T0}, 4, v{V_T0}")
    a(f"v_lshl_add_u32 v{V_QOFF}, v{V_G}, 8, v{V_T0}")
    a(f"s_lshl_b32 s{S_KVH256}, s{S_KVH}, 8")
    a(f"s_lshl_b32 s{S_QSOFF}, s{S_W}, 13")
    a(f"s_lshl_b32 s{S_T0}, s{S_KVH}, 10")
    a(f"s_add_u32 s{S_QSOFF}, s{S_QSOFF}, s{S_T0}")
    a(f"s_lshl_b32 s{S_QM0}, s{S_W}, 10")
    a(f"s_add_u32 s{S_QM0}, s{S_QM0}, 0x{LDS_Q:x}")
    a(f"s_lshl_b32 s{S_M0B}, s{S_W}, 14")
    for j in range(4):
        a(f"v_add_u32 v{V_T0}, {4*j}, v{V_G}")
        a(f"v_xor_b32 v{V_T3}, v{V_T0}, v{V_C}")
        a(f"v_lshlrev_b32 v{V_T3}, 4, v{V_T3}")
        a(f"v_lshl_add_u32 v{V_KOFF+j}, v{V_T0}, 11, v{V_T3}")
        if j:
            a(f"v_subrev_u32 v{V_KOFF+j}, {1024*j}, v{V_KOFF+j}")
        a(f"v_lshl_add_u32 v{V_LJ+j}, v{V_C}, 8, v{V_T3}")
    if SPEC:
        PN, PS = PRED_N, PRED_S
        a(f"s_cmp_ge_u32 s{S_W}, 4")
        a("s_cbranch_scc1 A_NOPRED")
        a(f"s_add_u32 s{S_T0}, s{S_NIT}, {PN - 1}")
        a(f"s_mul_i32 s{S_T0}, s{S_T0}, s{S_TM}")
        a(f"s_lshr_b32 s{S_T0}, s{S_T0}, 16")
        a(f"s_max_u32 s{S_T0}, s{S_T0}, {TMIN}")
        a(f"s_min_u32 s{S_T0}, s{S_T0}, 32")
        a(f"s_mul_i32 s{S_T2}, s{S_IT}, s{S_T0}")
        a(f"s_add_u32 s{S_T0}, s{S_T2}, s{S_T0}")
        a(f"s_min_u32 s{S_T0}, s{S_T0}, {PN}")
        a(f"s_add_u32 s{S_T2}, s{S_T2}, s{S_W}")
        X = V_X
        a(f"v_lshl_add_u32 v{X}, v{V_LANE}, 3, s{S_T2}")
        a(f"v_mov_b32 v{X+1}, v{X}")
        for th, dl in PRED_STEPS:
            a(f"v_subrev_u32 v{X+2}, {th - 1}, v{X}")
            a(f"v_med3_i32 v{X+2}, v{X+2}, 0, 1")
            a(f"v_mad_u32_u24 v{X+1}, v{X+2}, {dl}, v{X+1}")
        a(f"v_lshl_add_u32 v{X+1}, v{X+1}, 15, s{S_KVH256}")
        a(f"v_cmp_gt_u32 vcc, s{S_T0}, v{X}")
        a(f"v_mov_b32 v{X+2}, 0x{OOB:x}")
        a.nop(1)
        a(f"v_cndmask_b32 v{X+1}, v{X+2}, v{X+1}, vcc")
        a.nop(1)
        for i in range(4):
            a(f"v_readlane_b32 s{S_REM+i}, v{X+1}, {i}")
        a.label("A_NOPRED")
    a(f"s_lshl_b32 s{S_T1}, s{S_W}, 2")
    a("s_waitcnt lgkmcnt(0)")
    if STAMP:
        a(f"v_writelane_b32 v{V_STAMP}, s98, 0")
    stamp(a, 1)
    a(f"global_load_dwordx4 v[{V_ROW}:{V_ROW+3}], v{V_T2}, s[{S_BT}:{S_BT+1}]")
    a(f"global_load_dwordx4 v[{V_ROW0}:{V_ROW0+3}], v{V_T1}, s[{S_BT}:{S_BT+1}]")
    a(f"s_load_dword s{S_CTXW}, s[{S_CTX}:{S_CTX+1}], s{S_T1}")
    def srd(srd, p, sz):
        a(f"s_mov_b32 s{srd}, s{p}")
        a(f"s_and_b32 s{srd+1}, s{p+1}, 0xffff")
        a(f"s_mov_b32 s{srd+2}, 0x{sz:x}")
        a(f"s_mov_b32 s{srd+3}, 0x20000")
    srd(SRD_Q, S_Q, 65536)
    a(f"s_mov_b32 m0, s{S_QM0}")
    srd(SRD_K, S_K, KV_BYTES)
    a(f"buffer_load_dwordx4 v{V_QOFF}, s[{SRD_Q}:{SRD_Q+3}], s{S_QSOFF} offen lds")
    if SPEC:
        a("s_barrier")
        a(f"s_cmp_ge_u32 s{S_W}, 4")
        a("s_cbranch_scc1 A_NOSPEC")
        for i in range(SPECA):
            a(f"s_add_u32 m0, s{S_M0B}, {i*4096}")
            a.nop(1)
            for j in range(4):
                a(f"buffer_load_dwordx4 v{V_KOFF+j}, s[{SRD_K}:{SRD_K+3}], s{S_REM+i} offen offset:{1024*j} {POL} lds")
        a.label("A_NOSPEC")
    srd(SRD_V, S_V, KV_BYTES)
    srd(SRD_WS, S_WS, WS_SIZE)
    a(f"s_mov_b32 s{S_C}, 0x{CSCALE:08x}")
    a(f"s_mov_b32 s{S_L0X}, 0x00010001")
    a(f"s_mov_b32 s{S_L0X+1}, 0x00010001")
    a(f"s_mov_b32 s{S_LE8X}, 0x01ff01ff")
    a(f"s_mov_b32 s{S_LE8X+1}, 0x01ff01ff")
    a(f"v_mov_b32 v{V_NEG}, 0x{NEG:08x}")
    a(f"v_mov_b32 v{V_ZERO}, 0")
    a(f"s_movk_i32 s{S_FF}, 0xff")
    a(f"s_cmp_lg_u32 s2, {EPWG}")
    a("s_cbranch_scc1 A_NOEP")
    a(f"s_cmp_lg_u32 s{S_W}, 7")
    a("s_cbranch_scc1 A_NOEP")
    a(f"s_mov_b32 s{S_T0}, 0x{WS_EPOCH:x}")
    a(f"buffer_load_dword v{V_N}, v{V_ZERO}, s[{SRD_WS}:{SRD_WS+3}], s{S_T0} offen sc1")
    a("s_waitcnt vmcnt(0)")
    a(f"v_add_u32 v{V_N}, 1, v{V_N}")
    a(f"v_max_u32 v{V_N}, 1, v{V_N}")
    a("s_mov_b64 exec, 1")
    a(f"buffer_store_dword v{V_N}, v{V_ZERO}, s[{SRD_WS}:{SRD_WS+3}], s{S_T0} offen sc1")
    a(f"global_store_dword v{V_ZERO}, v{V_N}, s[{S_DBG}:{S_DBG+1}] sc0 sc1")
    a("s_mov_b64 exec, -1")
    a.label("A_NOEP")
    for j in range(4):
        a(f"v_add_u32 v{V_T0}, {4*j}, v{V_G}")
        a(f"v_and_b32 v{V_T3}, 7, v{V_T0}")
        a(f"v_lshlrev_b32 v{V_T3}, 1, v{V_T3}")
        a(f"v_xor_b32 v{V_T3}, v{V_T3}, v{V_C}")
        a(f"v_lshlrev_b32 v{V_T3}, 4, v{V_T3}")
        a(f"v_lshl_add_u32 v{V_VOFF+j}, v{V_T0}, 11, v{V_T3}")
        if j:
            a(f"v_subrev_u32 v{V_VOFF+j}, {1024*j}, v{V_VOFF+j}")
    for j in range(4):
        a(f"v_add_u32 v{V_KRD+j}, s{S_M0B}, v{V_LJ+j}")
        a(f"v_add_u32 v{V_LJ+j}, 0x{LDS_Q:x}, v{V_LJ+j}")
    a(f"v_lshrrev_b32 v{V_CB}, 2, v{V_C}")
    a(f"v_lshl_add_u32 v{V_T0}, v{V_G}, 2, v{V_CB}")
    a(f"v_and_b32 v{V_T3}, 7, v{V_T0}")
    a(f"v_xor_b32 v{V_T3}, s{S_W}, v{V_T3}")
    a(f"v_lshlrev_b32 v{V_T3}, 5, v{V_T3}")
    a(f"v_lshl_add_u32 v{V_T3}, v{V_T0}, 8, v{V_T3}")
    a(f"v_and_b32 v{V_T0}, 3, v{V_C}")
    a(f"v_lshl_add_u32 v{V_VTLO}, v{V_T0}, 3, v{V_T3}")
    a(f"v_add_u32 v{V_VTHI}, 0x10000, v{V_VTLO}")
    a(f"v_add_u32 v{V_PRD}, 0x{LDS_P:x}, v{V_T1}")
    a(f"s_lshr_b32 s{S_T0}, s{S_W}, 1")
    a(f"s_lshl_b32 s{S_T0}, s{S_T0}, 10")
    a(f"s_and_b32 s{S_T1}, s{S_W}, 1")
    a(f"s_lshl_b32 s{S_T1}, s{S_T1}, 3")
    a(f"s_add_u32 s{S_T0}, s{S_T0}, s{S_T1}")
    a(f"v_add_u32 v{V_PWR}, s{S_T0}, v{V_PRD}")
    a(f"v_lshlrev_b32 v{V_MADDR}, 5, v{V_C}")
    a(f"v_add_u32 v{V_MADDR}, 0x{LDS_M:x}, v{V_MADDR}")
    for r in range(4):
        a(f"v_lshl_add_u32 v{V_TOK+r}, v{V_G}, 2, {r}")
    a(f"v_lshlrev_b32 v{V_T0}, 19, v{V_G}")
    a(f"v_lshl_add_u32 v{V_OOFF}, v{V_C}, 4, v{V_T0}")
    a(f"v_lshlrev_b32 v{V_T0}, 13, v{V_CB}")
    a(f"v_and_b32 v{V_T3}, 3, v{V_C}")
    a(f"v_lshl_add_u32 v{V_MLOFF}, v{V_T3}, 8, v{V_T0}")
    a(f"v_add_u32 v{V_T0}, -1, v{V_C}")
    a(f"v_and_b32 v{V_T3}, 7, v{V_T0}")
    a(f"v_lshlrev_b32 v{V_T3}, 2, v{V_T3}")
    a(f"v_add_u32 v{V_CTXA}, 0x{LDS_SW+32:x}, v{V_T3}")
    a(f"v_max_i32 v{V_T0}, 0, v{V_T0}")
    a(f"v_min_u32 v{V_T0}, 7, v{V_T0}")
    a(f"v_lshlrev_b32 v{V_T0}, 10, v{V_T0}")
    a(f"v_add_u32 v{V_ROWB}, 0x{LDS_TBL:x}, v{V_T0}")
    a("s_waitcnt lgkmcnt(0)")
    a(f"s_max_i32 s{S_CTXW}, s{S_CTXW}, 0")
    a(f"s_min_i32 s{S_CTXW}, s{S_CTXW}, 4096")
    a(f"s_mov_b32 s{S_RND}, 0")
    a(f"v_mov_b32 v{V_FLG}, 0x{LDS_FLAG:x}")
    a(f"s_lshl_b32 s{S_T0}, s{S_W}, 2")
    a(f"v_add_u32 v{V_T0}, s{S_T0}, v{V_FLG}")
    a(f"ds_write2_b32 v{V_T0}, v{V_ZERO}, v{V_ZERO} offset0:0 offset1:8")
    a.label("A_ROUND")
    a(f"s_add_u32 s{S_RND}, s{S_RND}, 1")
    a(f"v_lshlrev_b32 v{V_T0}, 4, v0")
    a(f"v_add_u32 v{V_T0}, 0x{LDS_TBL:x}, v{V_T0}")
    a(f"s_lshl_b32 s{S_T0}, s{S_W}, 2")
    a(f"s_add_u32 s{S_T0}, s{S_T0}, 0x{LDS_SW:x}")
    a(f"v_mov_b32 v{V_T3}, s{S_T0}")
    a(f"v_mov_b32 v{V_X+1}, s{S_CTXW}")
    a(f"s_lshr_b32 s{S_T1}, s{S_CTXW}, 4")
    a(f"v_mov_b32 v{V_T2}, 0x{LDS_SW:x}")
    stamp(a, 2)
    if SPEC:
        a(f"s_cmp_eq_u32 s{S_RND}, 1")
        a(f"s_cselect_b32 s{S_T2}, 4, 0")
        a(f"s_cmp_lt_u32 s{S_W}, s{S_T2}")
        a("s_cbranch_scc1 A_W16")
        a("s_waitcnt vmcnt(0)")
        a("s_branch A_WD")
        a.label("A_W16")
        a(f"s_waitcnt vmcnt({4*SPECA})")
        a.label("A_WD")
    else:
        a("s_waitcnt vmcnt(0)")
    stamp(a, 3)
    for e in range(4):
        a(f"v_cmp_ne_u32 s[{S_MSK+2*e}:{S_MSK+2*e+1}], v{V_ROW+e}, v{V_ROW0+e}")
    a(f"ds_write_b128 v{V_T0}, v[{V_ROW}:{V_ROW+3}]")
    a(f"s_or_b64 s[{S_MSK}:{S_MSK+1}], s[{S_MSK}:{S_MSK+1}], s[{S_MSK+2}:{S_MSK+3}]")
    a(f"s_or_b64 s[{S_MSK+4}:{S_MSK+5}], s[{S_MSK+4}:{S_MSK+5}], s[{S_MSK+6}:{S_MSK+7}]")
    a(f"s_or_b64 s[{S_MSK}:{S_MSK+1}], s[{S_MSK}:{S_MSK+1}], s[{S_MSK+4}:{S_MSK+5}]")
    a(f"s_ff1_i32_b64 s{S_T0}, s[{S_MSK}:{S_MSK+1}]")
    a(f"s_lshl_b32 s{S_T0}, s{S_T0}, 2")
    a(f"s_min_u32 s{S_T0}, s{S_T0}, s{S_T1}")
    a(f"v_mov_b32 v{V_X}, s{S_T0}")
    a(f"ds_write2_b32 v{V_T3}, v{V_X}, v{V_X+1} offset0:0 offset1:8")
    a("s_waitcnt lgkmcnt(0)")
    a("s_barrier")
    X = V_X
    if SPEC and SPECA < 4:
        a(f"s_cmp_eq_u32 s{S_RND}, 1")
        a(f"s_cselect_b32 s{S_T0}, 4, 0")
        a(f"s_cmp_lt_u32 s{S_W}, s{S_T0}")
        a("s_cbranch_scc0 A_NOSPEC2")
        for i in range(SPECA, 4):
            a(f"s_add_u32 m0, s{S_M0B}, {i*4096}")
            a.nop(1)
            for j in range(4):
                a(f"buffer_load_dwordx4 v{V_KOFF+j}, s[{SRD_K}:{SRD_K+3}], s{S_REM+i} offen offset:{1024*j} {POL} lds")
        a.label("A_NOSPEC2")
    a(f"ds_read_b128 v[{X}:{X+3}], v{V_T2}")
    a(f"ds_read_b128 v[{X+4}:{X+7}], v{V_T2} offset:16")
    a(f"ds_read_b32 v{vctx}, v{V_CTXA}")
    a("s_waitcnt lgkmcnt(0)")
    a(f"v_min3_u32 v{X}, v{X}, v{X+1}, v{X+2}")
    a(f"v_min3_u32 v{X+3}, v{X+3}, v{X+4}, v{X+5}")
    a(f"v_add_u32 v{vn}, 15, v{vctx}")
    a(f"v_min3_u32 v{X}, v{X}, v{X+6}, v{X+7}")
    a(f"v_lshrrev_b32 v{vn}, 4, v{vn}")
    a(f"v_min_u32 v{vS}, v{X}, v{X+3}")
    a(f"v_sub_u32 v{vn}, v{vn}, v{vS}")
    a(f"v_cndmask_b32 v{vn}, v{vn}, v{vS}, s[{S_L0X}:{S_L0X+1}]")
    a(f"v_cndmask_b32 v{vn}, 0, v{vn}, s[{S_LE8X}:{S_LE8X+1}]")
    a(f"v_mov_b32 v{vcum}, v{vn}")
    a(f"v_cndmask_b32 v{X+8}, v{vS}, 0, s[{S_L0X}:{S_L0X+1}]")
    a(f"v_readfirstlane_b32 s{S_S}, v{vS}")
    dpp = "row_mask:0xf bank_mask:0xf bound_ctrl:0"
    a(f"v_add_u32_dpp v{vcum}, v{vcum}, v{vcum} row_shr:1 {dpp}")
    a(f"v_lshlrev_b32 v{X+9}, 3, v{V_G}")
    a(f"v_add_u32 v{X+9}, s{S_W}, v{X+9}")
    a(f"v_add_u32_dpp v{vcum}, v{vcum}, v{vcum} row_shr:2 {dpp}")
    a.nop(2)
    a(f"v_add_u32_dpp v{vcum}, v{vcum}, v{vcum} row_shr:4 {dpp}")
    a.nop(2)
    a(f"v_add_u32_dpp v{vcum}, v{vcum}, v{vcum} row_shr:8 {dpp}")
    a.nop(1)
    a(f"v_readlane_b32 s{S_N}, v{vcum}, 8")
    a(f"v_sub_u32 v{vex}, v{vcum}, v{vn}")
    a(f"v_sub_u32 v{X+8}, v{vex}, v{X+8}")
    a(f"s_add_u32 s{S_T}, s{S_N}, s{S_NIT}")
    a(f"s_sub_u32 s{S_T}, s{S_T}, 1")
    a(f"s_mul_i32 s{S_T}, s{S_T}, s{S_TM}")
    a(f"s_lshr_b32 s{S_T}, s{S_T}, 16")
    a(f"s_max_u32 s{S_T}, s{S_T}, {TMIN}")
    a(f"s_min_u32 s{S_T}, s{S_T}, 32")
    a(f"s_mul_i32 s{S_F0}, s{S_IT}, s{S_T}")
    a(f"s_add_u32 s{S_HI}, s{S_F0}, s{S_T}")
    a(f"s_min_u32 s{S_HI}, s{S_HI}, s{S_N}")
    a(f"s_cmp_ge_u32 s{S_F0}, s{S_N}")
    a("s_cbranch_scc1 A_FIN0")
    a(f"v_add_u32 v{X+9}, s{S_F0}, v{X+9}")
    a(f"v_min_u32 v{X+10}, s{S_HI}, v{vcum}")
    a(f"v_cmp_gt_u32 vcc, v{X+10}, v{X+9}")
    a(f"v_cmp_le_u32 s[{S_MM}:{S_MM+1}], v{vex}, v{X+9}")
    a(f"v_sub_u32 v{vj}, v{X+9}, v{X+8}")
    a(f"v_min_u32 v{vj}, 255, v{vj}")
    a(f"v_lshl_add_u32 v{X+10}, v{vj}, 2, v{V_ROWB}")
    a(f"ds_read_b32 v{X+11}, v{X+10}")
    a(f"s_and_b64 s[{S_MM}:{S_MM+1}], s[{S_MM}:{S_MM+1}], vcc")
    a(f"v_mov_b32 v{X+12}, 0x{OOB:x}")
    for i in range(4):
        src = S_MM + (i >> 1)
        if i & 1:
            a(f"s_lshr_b32 s{S_LANE+i}, s{src}, 16")
        else:
            a(f"s_and_b32 s{S_LANE+i}, s{src}, 0xffff")
        a(f"s_or_b32 s{S_LANE+i}, s{S_LANE+i}, 0x8000")
        a(f"s_ff1_i32_b32 s{S_LANE+i}, s{S_LANE+i}")
        if i:
            a(f"s_add_u32 s{S_LANE+i}, s{S_LANE+i}, {16*i}")
    a(f"s_mov_b32 m0, s{S_M0B}")
    a("s_waitcnt lgkmcnt(0)")
    a(f"v_lshl_add_u32 v{X+11}, v{X+11}, 15, s{S_KVH256}")
    a(f"v_cndmask_b32 v{X+11}, v{X+12}, v{X+11}, s[{S_MM}:{S_MM+1}]")
    a.nop(1)
    for i in range(4):
        a(f"v_readlane_b32 s{S_SOFF+i}, v{X+11}, s{S_LANE+i}")
    a.nop(3)
    stamp(a, 4)
    if SPEC:
        a(f"s_cmp_eq_u32 s{S_RND}, 1")
        a(f"s_cselect_b32 s{S_T2}, 4, 0")
        a(f"s_cmp_lt_u32 s{S_W}, s{S_T2}")
        a("s_cbranch_scc0 A_KISS")
        a(f"s_cmp_eq_u64 s[{S_SOFF}:{S_SOFF+1}], s[{S_REM}:{S_REM+1}]")
        a("s_cbranch_scc0 A_KREDO")
        a(f"s_cmp_eq_u64 s[{S_SOFF+2}:{S_SOFF+3}], s[{S_REM+2}:{S_REM+3}]")
        a("s_cbranch_scc1 A_KDONE")
        a.label("A_KREDO")
        a("s_waitcnt vmcnt(0)")
        a.label("A_KISS")
    for i in range(4):
        if i:
            a(f"s_add_u32 m0, s{S_M0B}, {i*4096}")
        a.nop(1)
        for j in range(4):
            a(f"buffer_load_dwordx4 v{V_KOFF+j}, s[{SRD_K}:{SRD_K+3}], s{S_SOFF+i} offen offset:{1024*j} {POL} lds")
    a.label("A_KDONE")
    if TLBW:
        a(f"s_cmp_lg_u32 s{S_W}, {TLBW - 1}")
        a("s_cbranch_scc1 A_NOTLB")
        a(f"s_cmp_lg_u32 s{S_RND}, 1")
        a("s_cbranch_scc1 A_NOTLB")
        a(f"v_lshlrev_b32 v{V_T3}, 21, v{V_LANE}")
        a(f"buffer_load_dword v254, v{V_T3}, s[{SRD_V}:{SRD_V+3}], 0 offen")
        a(f"buffer_load_dword v253, v{V_T3}, s[{SRD_WS}:{SRD_WS+3}], 0 offen")
        a(f"v_mov_b32 v{V_T3}, 0")
        a(f"global_load_dword v252, v{V_T3}, s[{S_OUT}:{S_OUT+1}]")
        if TLBK:
            a(f"v_lshlrev_b32 v{V_T3}, 21, v{V_LANE}")
            a(f"buffer_load_dword v251, v{V_T3}, s[{SRD_K}:{SRD_K+3}], 0 offen")
        a.label("A_NOTLB")
    if PRIO:
        a("s_setprio 0")
    a(f"v_lshlrev_b32 v{X}, 4, v{vj}")
    a(f"v_sub_u32 v{X}, v{vctx}, v{X}")
    a(f"v_mov_b32 v{X+1}, 16")
    a(f"v_cndmask_b32 v{X}, v{X}, v{X+1}, s[{S_L0X}:{S_L0X+1}]")
    a(f"v_cndmask_b32 v{X}, 0, v{X}, s[{S_MM}:{S_MM+1}]")
    for i in range(4):
        a(f"s_and_b32 s{S_OWN+i}, s{S_LANE+i}, 15")
        a(f"s_sub_u32 s{S_OWN+i}, s{S_OWN+i}, 1")
    for i in range(4):
        a(f"v_readlane_b32 s{S_REM+i}, v{X}, s{S_LANE+i}")
    plan_extra(a, "P1")
    a(f"s_cmp_lg_u32 s{S_NG2}, 0")
    a("s_cbranch_scc1 A_SHARED")
    body(a, 1)
    a("s_branch A_NEXT")
    a.label("A_SHARED")
    body(a, 2)
    a.label("A_NEXT")
    stamp(a, 13)
    a(f"s_add_u32 s{S_IT}, s{S_IT}, s{S_NIT}")
    a(f"s_mul_i32 s{S_T0}, s{S_IT}, s{S_T}")
    a(f"s_cmp_ge_u32 s{S_T0}, s{S_N}")
    a("s_cbranch_scc1 A_FIN")
    a("s_waitcnt lgkmcnt(0)")
    a("s_barrier")
    if PRIO:
        a("s_setprio 3")
    a(f"s_mov_b32 m0, s{S_QM0}")
    a.nop(1)
    a(f"buffer_load_dwordx4 v{V_QOFF}, s[{SRD_Q}:{SRD_Q+3}], s{S_QSOFF} offen lds")
    a("s_branch A_ROUND")
    a.label("A_FIN0")
    plan_extra(a, "P2")
    a(f"s_load_dword s{S_NON}, s[{S_DBG}:{S_DBG+1}], 0")
    a("s_waitcnt vmcnt(0) lgkmcnt(0)")
    a(f"v_mov_b32 v{V_N}, s{S_NON}")
    a.label("A_FIN")
    if NOCONS:
        a("s_branch A_DONE")
    a(f"s_cmp_ge_u32 s{S_IT0}, 16")
    a("s_cbranch_scc1 A_DONE")
    consumer(a)
    a.label("A_DONE")
    stamp(a, 14)
    stamp_out(a)
    a.label("A_END")
    a("s_endpgm")

def get_nonce(a, tag):
    a(f"v_cmp_eq_u32 vcc, 0, v{V_N}")
    a(f"s_cbranch_vccz {tag}_NOK")
    a(f"s_mov_b32 s{S_SPIN}, 0")
    a.label(f"{tag}_NSPIN")
    a(f"global_load_dword v{V_N}, v{V_ZERO}, s[{S_DBG}:{S_DBG+1}] sc1")
    a("s_waitcnt vmcnt(0)")
    a(f"s_add_u32 s{S_SPIN}, s{S_SPIN}, 1")
    a(f"s_cmp_ge_u32 s{S_SPIN}, 0x40000")
    a(f"s_cbranch_scc1 {tag}_NOK")
    a(f"v_cmp_eq_u32 vcc, 0, v{V_N}")
    a(f"s_cbranch_vccnz {tag}_NSPIN")
    a.label(f"{tag}_NOK")

def consumer(a):
    get_nonce(a, "C")
    D = V_Q
    ML0, ML1 = V_B, V_B + 4
    T0, T1 = V_X + 2, V_X + 3
    M0, L0, M1, L1 = V_X + 4, V_X + 5, V_X + 6, V_X + 7
    X0, X1, A0, A1 = V_X + 8, V_X + 9, V_X + 10, V_X + 11
    SB, SM, ST = S_T0, S_T1, S_T3
    SO = S_SOFF
    W0 = S_REM
    W1 = S_OWN
    srd = f"s[{SRD_WS}:{SRD_WS+3}]"
    a(f"s_lshr_b32 s{S_CB}, s{S_IT0}, 1")
    a(f"s_lshl_b32 s{S_CB}, s{S_CB}, 3")
    a(f"s_add_u32 s{S_CB}, s{S_CB}, s{S_KVH}")
    a(f"s_and_b32 s{S_RHO}, s{S_IT0}, 1")
    a(f"s_and_b32 s{S_GRP}, s{S_W}, 1")
    a(f"s_lshr_b32 s{S_LANE}, s{S_W}, 1")
    a(f"s_lshl_b32 s{SM}, s{S_CB}, 2")
    a(f"s_lshl_b32 s{ST}, s{S_RHO}, 1")
    a(f"s_add_u32 s{SM}, s{SM}, s{ST}")
    a(f"s_lshl_b32 s{SM}, s{SM}, 8")
    a(f"s_add_u32 s{SM}, s{SM}, 0x{WS_ML:x}")
    a(f"v_lshlrev_b32 v{V_T2}, 4, v{V_C}")
    a(f"buffer_load_dwordx4 v[{ML0}:{ML0+3}], v{V_T2}, {srd}, s{SM} offen sc1")
    a(f"buffer_load_dwordx4 v[{ML1}:{ML1+3}], v{V_T2}, {srd}, s{SM} offen offset:256 sc1")
    a(f"s_lshl_b32 s{SB}, s{S_CB}, 1")
    a(f"s_add_u32 s{SB}, s{SB}, s{S_RHO}")
    a(f"s_lshl_b32 s{SB}, s{SB}, 15")
    a(f"s_lshl_b32 s{ST}, s{S_GRP}, 10")
    a(f"s_add_u32 s{SB}, s{SB}, s{ST}")
    a(f"s_lshl_b32 s{ST}, s{S_LANE}, 11")
    a(f"s_add_u32 s{SB}, s{SB}, s{ST}")
    a(f"v_lshlrev_b32 v{V_T1}, 4, v{V_LANE}")
    a(f"s_mov_b32 s{S_PEND}, 0")
    for k in range(4):
        a(f"s_add_u32 s{S_LANE+1}, s{S_LANE}, {4*k}")
        a(f"s_add_u32 s{SO+k}, s{SB}, {8192*k}")
        a(f"s_cmp_lt_u32 s{S_LANE+1}, s{S_CNT}")
        a(f"s_cselect_b32 s{SO+k}, s{SO+k}, 0x{OOB:x}")
        a(f"s_cselect_b32 s{ST}, {1<<k}, 0")
        a(f"buffer_load_dwordx4 v[{D+4*k}:{D+4*k+3}], v{V_T1}, {srd}, s{SO+k} offen sc1")
        a(f"s_or_b32 s{S_PEND}, s{S_PEND}, s{ST}")
    a(f"v_cmp_gt_u32 s[{S_MSK}:{S_MSK+1}], s{S_CNT}, v{V_C}")
    a(f"s_mov_b32 s{S_SPIN}, 0")
    a("s_waitcnt vmcnt(4)")
    a.label("C_MLCHK")
    a(f"v_bitop3_b32 v{T0}, v{ML0+1}, v{ML0+3}, v{V_N} bitop3:0x7e")
    a(f"v_bitop3_b32 v{T1}, v{ML1+1}, v{ML1+3}, v{V_N} bitop3:0x7e")
    a(f"v_or_b32 v{T0}, v{T0}, v{T1}")
    a(f"v_cndmask_b32 v{T0}, 0, v{T0}, s[{S_MSK}:{S_MSK+1}]")
    a(f"v_cmp_ne_u32 vcc, 0, v{T0}")
    a("s_cbranch_vccz C_MLOK")
    a(f"s_add_u32 s{S_SPIN}, s{S_SPIN}, 1")
    a(f"s_cmp_ge_u32 s{S_SPIN}, 0x40000")
    a("s_cbranch_scc1 C_RED")
    a(f"s_sleep {SLEEP}")
    a(f"buffer_load_dwordx4 v[{ML0}:{ML0+3}], v{V_T2}, {srd}, s{SM} offen sc1")
    a(f"buffer_load_dwordx4 v[{ML1}:{ML1+3}], v{V_T2}, {srd}, s{SM} offen offset:256 sc1")
    a("s_waitcnt vmcnt(0)")
    a("s_branch C_MLCHK")
    a.label("C_MLOK")
    msk = f"s[{S_MSK}:{S_MSK+1}]"
    a(f"v_cndmask_b32 v{M0}, v{V_NEG}, v{ML0}, {msk}")
    a(f"v_cndmask_b32 v{M1}, v{V_NEG}, v{ML1}, {msk}")
    a(f"v_cndmask_b32 v{L0}, 0, v{ML0+2}, {msk}")
    a(f"v_cndmask_b32 v{L1}, 0, v{ML1+2}, {msk}")
    dpp = "row_mask:0xf bank_mask:0xf"
    a(f"v_mov_b32 v{X0}, v{M0}")
    a(f"v_mov_b32 v{X1}, v{M1}")
    for sh in (8, 4, 2, 1):
        a.nop(1)
        a(f"v_max_f32_dpp v{X0}, v{X0}, v{X0} row_ror:{sh} {dpp}")
        a(f"v_max_f32_dpp v{X1}, v{X1}, v{X1} row_ror:{sh} {dpp}")
    a(f"v_sub_f32 v{M0}, v{M0}, v{X0}")
    a(f"v_sub_f32 v{M1}, v{M1}, v{X1}")
    a(f"v_exp_f32 v{M0}, v{M0}")
    a(f"v_exp_f32 v{M1}, v{M1}")
    a.nop(1)
    a(f"v_mul_f32 v{X0}, v{M0}, v{L0}")
    a(f"v_mul_f32 v{X1}, v{M1}, v{L1}")
    for sh in (8, 4, 2, 1):
        a.nop(1)
        a(f"v_add_f32_dpp v{X0}, v{X0}, v{X0} row_ror:{sh} {dpp}")
        a(f"v_add_f32_dpp v{X1}, v{X1}, v{X1} row_ror:{sh} {dpp}")
    a(f"v_rcp_f32 v{X0}, v{X0}")
    a(f"v_rcp_f32 v{X1}, v{X1}")
    a(f"v_mov_b32 v{A0}, 0")
    a(f"v_mov_b32 v{A1}, 0")
    a(f"v_mul_f32 v{M0}, v{M0}, v{X0}")
    a(f"v_mul_f32 v{M1}, v{M1}, v{X1}")
    a.nop(1)
    for k in range(4):
        a(f"s_add_u32 s{S_LANE+1}, s{S_LANE}, {4*k}")
        a(f"v_readlane_b32 s{W0+k}, v{M0}, s{S_LANE+1}")
        a(f"v_readlane_b32 s{W1+k}, v{M1}, s{S_LANE+1}")
    def check(Dset, tag):
        for k in range(4):
            d = Dset + 4 * k
            a(f"s_bitcmp1_b32 s{S_PEND}, {k}")
            a(f"s_cbranch_scc0 {tag}{k}")
            a(f"v_bitop3_b32 v{T0}, v{d+1}, v{d+3}, v{V_N} bitop3:0x7e")
            a(f"v_bitop3_b32 v{T1}, v{d}, v{d+2}, v{V_N} bitop3:0x7e")
            a(f"v_and_or_b32 v{T0}, v{T1}, s{S_FF}, v{T0}")
            a(f"v_cmp_ne_u32 vcc, 0, v{T0}")
            a(f"s_cbranch_vccnz {tag}{k}")
            a(f"v_fmac_f32 v{A0}, s{W0+k}, v{d}")
            a(f"v_fmac_f32 v{A1}, s{W1+k}, v{d+2}")
            a(f"s_bitset0_b32 s{S_PEND}, {k}")
            a.label(f"{tag}{k}")
    def issue(Dset, tag):
        for k in range(4):
            a(f"s_bitcmp1_b32 s{S_PEND}, {k}")
            a(f"s_cselect_b32 s{ST}, s{SO+k}, 0x{OOB:x}")
            a(f"buffer_load_dwordx4 v[{Dset+4*k}:{Dset+4*k+3}], v{V_T1}, {srd}, s{ST} offen sc1")
    a("s_waitcnt vmcnt(0)")
    check(D, "C_A")
    a(f"s_cmp_eq_u32 s{S_PEND}, 0")
    a("s_cbranch_scc1 C_RED")
    if PIPE:
        issue(D, "i0")
        a.label("C_LOOP")
        a(f"s_sleep {PSLEEP}")
        issue(D + 16, "i1")
        a("s_waitcnt vmcnt(4)")
        check(D, "C_B")
        a(f"s_cmp_eq_u32 s{S_PEND}, 0")
        a("s_cbranch_scc1 C_RED")
        a(f"s_sleep {PSLEEP}")
        issue(D, "i2")
        a("s_waitcnt vmcnt(4)")
        check(D + 16, "C_C")
        a(f"s_add_u32 s{S_SPIN}, s{S_SPIN}, 1")
        a(f"s_cmp_ge_u32 s{S_SPIN}, 0x40000")
        a("s_cbranch_scc1 C_RED")
        a(f"s_cmp_lg_u32 s{S_PEND}, 0")
        a("s_cbranch_scc1 C_LOOP")
    else:
        a.label("C_LOOP")
        a(f"s_sleep {SLEEP}")
        issue(D, "i0")
        a("s_waitcnt vmcnt(0)")
        check(D, "C_B")
        a(f"s_add_u32 s{S_SPIN}, s{S_SPIN}, 1")
        a(f"s_cmp_ge_u32 s{S_SPIN}, 0x40000")
        a("s_cbranch_scc1 C_RED")
        a(f"s_cmp_lg_u32 s{S_PEND}, 0")
        a("s_cbranch_scc1 C_LOOP")
    a.label("C_RED")
    if STAMP:
        a(f"v_writelane_b32 v{V_STAMP}, s{S_SPIN}, 15")
        stamp(a, 12)
    a(f"v_lshlrev_b32 v{V_T0}, 3, v0")
    a(f"ds_write_b64 v{V_T0}, v[{A0}:{A1}]")
    a(f"s_lshl_b32 s{SB}, s{S_CB}, 1")
    a(f"s_add_u32 s{SB}, s{SB}, s{S_RHO}")
    a(f"s_lshl_b32 s{SB}, s{SB}, 9")
    a(f"s_lshl_b32 s{SM}, s{S_GRP}, 7")
    a(f"s_add_u32 s{SB}, s{SB}, s{SM}")
    a(f"v_lshlrev_b32 v{V_T1}, 1, v{V_LANE}")
    a(f"s_mov_b32 s{SRD_Q}, s{S_OUT}")
    a(f"s_and_b32 s{SRD_Q+1}, s{S_OUT+1}, 0xffff")
    a("s_waitcnt lgkmcnt(0)")
    a("s_barrier")
    a(f"s_cmp_ge_u32 s{S_W}, 2")
    a("s_cbranch_scc1 A_DONE")
    R = V_B + 8
    a(f"ds_read_b64 v[{R}:{R+1}], v{V_T0} offset:1024")
    a(f"ds_read_b64 v[{R+2}:{R+3}], v{V_T0} offset:2048")
    a(f"ds_read_b64 v[{R+4}:{R+5}], v{V_T0} offset:3072")
    a("s_waitcnt lgkmcnt(0)")
    a(f"v_add_f32 v{A0}, v{A0}, v{R}")
    a(f"v_add_f32 v{A1}, v{A1}, v{R+1}")
    a(f"v_add_f32 v{R+2}, v{R+2}, v{R+4}")
    a(f"v_add_f32 v{R+3}, v{R+3}, v{R+5}")
    a(f"v_add_f32 v{A0}, v{A0}, v{R+2}")
    a(f"v_add_f32 v{A1}, v{A1}, v{R+3}")
    a(f"v_cvt_pk_bf16_f32 v{A0}, v{A0}, v{A1}")
    a(f"buffer_store_short v{A0}, v{V_T1}, s[{SRD_Q}:{SRD_Q+3}], s{SB} offen {OUTPOL}")
    a(f"buffer_store_short_d16_hi v{A0}, v{V_T1}, s[{SRD_Q}:{SRD_Q+3}], s{SB} offen offset:256 {OUTPOL}")

def poll_flags(a, tag, off):
    X = V_X
    a.label(tag)
    a(f"ds_read_b128 v[{X}:{X+3}], v{V_FLG} offset:{off}")
    a(f"ds_read_b128 v[{X+4}:{X+7}], v{V_FLG} offset:{off+16}")
    a("s_waitcnt lgkmcnt(0)")
    a(f"v_min3_u32 v{X}, v{X}, v{X+1}, v{X+2}")
    a(f"v_min3_u32 v{X+3}, v{X+3}, v{X+4}, v{X+5}")
    a(f"v_min3_u32 v{X}, v{X}, v{X+6}, v{X+7}")
    a(f"v_min_u32 v{X}, v{X}, v{X+3}")
    a(f"v_cmp_gt_u32 vcc, s{S_RND}, v{X}")
    a(f"s_cbranch_vccnz {tag}")

def set_flag(a, off):
    a(f"s_lshl_b32 s{S_T0}, s{S_W}, 2")
    a(f"v_add_u32 v{V_T3}, s{S_T0}, v{V_FLG}")
    a(f"v_mov_b32 v{V_T2}, s{S_RND}")
    a(f"ds_write_b32 v{V_T3}, v{V_T2} offset:{off}")

def body(a: Asm, NG: int):
    tag = f"B{NG}"
    VSPLIT = VSPLIT1 if NG == 1 else VSPLIT2
    a.c(f"---- body NG={NG}")
    VS = [V_X + 8, V_X + 9]
    VM = [V_X + 10, V_X + 11]
    EX = [S_EX, S_EX + 2]
    EM = [S_EM, S_EM + 2]
    for g in range(NG):
        if NG == 1:
            a(f"s_lshl_b32 s{S_T0}, s{S_GRP}, 4")
            a(f"s_add_u32 s{S_T0}, s{S_T0}, 0x{LDS_PLAN+4:x}")
        else:
            a(f"s_mov_b32 s{S_T0}, 0x{LDS_PLAN+4+16*g:x}")
        a(f"v_lshl_add_u32 v{VS[g]}, v{V_G}, 2, s{S_T0}")
        a(f"v_lshl_add_u32 v{VM[g]}, v{V_CB}, 2, s{S_T0}")
        a(f"ds_read_b32 v{VS[g]}, v{VS[g]}")
        a(f"ds_read_b32 v{VM[g]}, v{VM[g]}")
    if NG == 1:
        a(f"s_lshl_b32 s{S_T0}, s{S_GRP}, 12")
        for j in range(4):
            a(f"v_add_u32 v{V_X+j}, s{S_T0}, v{V_LJ+j}")
        for j in range(4):
            a(f"ds_read_b128 v[{V_Q+4*j}:{V_Q+4*j+3}], v{V_X+j}")
    else:
        for g in range(2):
            for j in range(4):
                a(f"ds_read_b128 v[{V_Q+16*g+4*j}:{V_Q+16*g+4*j+3}], v{V_LJ+j} offset:{g*4096}")
    a(f"s_cmp_lt_u32 s{S_IT}, s{S_NSH}")
    a(f"s_cselect_b32 s{S_T1}, 0, -1")
    a("s_waitcnt lgkmcnt(0)")
    for g in range(NG):
        for V in (VS[g], VM[g]):
            a(f"v_and_b32 v{V}, s{S_T1}, v{V}")
            a(f"v_sub_u32 v{V}, s{S_IT}, v{V}")
        a(f"v_lshl_add_u32 v{VS[g]}, v{VS[g]}, 11, v{V_OOFF}")
        a(f"v_lshl_add_u32 v{VM[g]}, v{VM[g]}, 4, v{V_MLOFF}")
        if NG == 1:
            a(f"s_lshl_b32 s{S_T0}, s{S_GRP}, 2")
            a(f"s_lshr_b32 s{S_T0}, s{S_PM}, s{S_T0}")
        else:
            a(f"s_lshr_b32 s{S_T0}, s{S_PM}, {4*g}")
        a(f"v_lshrrev_b32 v{V_T3}, v{V_G}, s{S_T0}")
        a(f"v_and_b32 v{V_T3}, 1, v{V_T3}")
        a(f"v_cmp_ne_u32 s[{EX[g]}:{EX[g]+1}], 0, v{V_T3}")
        a(f"v_lshrrev_b32 v{V_T3}, v{V_CB}, s{S_T0}")
        a(f"v_and_b32 v{V_T3}, 1, v{V_T3}")
        a(f"v_cmp_ne_u32 s[{EM[g]}:{EM[g]+1}], 0, v{V_T3}")
        a(f"s_and_b32 s{EM[g]}, s{EM[g]}, 0xffff")
        a(f"s_mov_b32 s{EM[g]+1}, 0")
    a(f"s_lshl_b32 s{S_DO[0]}, s{S_KVH}, 16")
    a(f"s_lshl_b32 s{S_T2}, s{S_W}, 8")
    a(f"s_add_u32 s{S_DO[0]}, s{S_DO[0]}, s{S_T2}")
    if NG == 1:
        a(f"s_lshl_b32 s{S_T2}, s{S_GRP}, 21")
        a(f"s_add_u32 s{S_DO[0]}, s{S_DO[0]}, s{S_T2}")
    a(f"s_add_u32 s{S_DO[1]}, s{S_DO[0]}, 32768")
    a(f"s_add_u32 s{S_DO[2]}, s{S_DO[0]}, {4*524288}")
    a(f"s_add_u32 s{S_DO[3]}, s{S_DO[1]}, {4*524288}")
    stamp(a, 5)
    for i in range(4):
        a(f"s_waitcnt vmcnt({12 - 4*i})")
        if i == 0: stamp(a, 6)
        if i == 3: stamp(a, 7)
        for j in range(4):
            a(f"ds_read_b128 v[{V_KF+4*j}:{V_KF+4*j+3}], v{V_KRD+j} offset:{i*4096}")
        a("s_waitcnt lgkmcnt(0)")
        for g in range(NG):
            s = V_S + 16 * g + 4 * i
            for j in range(4):
                c = "0" if j == 0 else f"v[{s}:{s+3}]"
                a(f"v_mfma_f32_16x16x32_bf16 v[{s}:{s+3}], v[{V_KF+4*j}:{V_KF+4*j+3}], v[{V_Q+16*g+4*j}:{V_Q+16*g+4*j+3}], {c}")
    a.nop(8)
    for i in range(4):
        a(f"s_cmp_lt_i32 s{S_REM+i}, 16")
        a(f"s_cbranch_scc1 {tag}_DM{i}")
        a(f"s_cmp_eq_u32 s{S_MIXED}, 0")
        a(f"s_cbranch_scc1 {tag}_NM{i}")
        a(f"s_cmp_eq_u32 s{S_OWN+i}, -1")
        a(f"s_cbranch_scc1 {tag}_NM{i}")
        a.label(f"{tag}_DM{i}")
        for r in range(4):
            a(f"v_cmp_gt_i32 s[{S_MSK+2*r}:{S_MSK+2*r+1}], s{S_REM+i}, v{V_TOK+r}")
        for g in range(NG):
            if NG == 1:
                a(f"s_lshl_b32 s{S_T0}, s{S_GRP}, 2")
                a(f"s_sub_u32 s{S_T0}, s{S_OWN+i}, s{S_T0}")
            else:
                a(f"s_sub_u32 s{S_T0}, s{S_OWN+i}, {4*g}")
            a(f"v_cmp_eq_u32 s[{S_OM+2*g}:{S_OM+2*g+1}], s{S_T0}, v{V_CB}")
            a(f"s_cmp_eq_u32 s{S_OWN+i}, -1")
            a(f"s_cselect_b64 s[{S_OM+2*g}:{S_OM+2*g+1}], -1, s[{S_OM+2*g}:{S_OM+2*g+1}]")
        for g in range(NG):
            for r in range(4):
                s = V_S + 16 * g + 4 * i + r
                a(f"s_and_b64 vcc, s[{S_MSK+2*r}:{S_MSK+2*r+1}], s[{S_OM+2*g}:{S_OM+2*g+1}]")
                a(f"v_cndmask_b32 v{s}, v{V_NEG}, v{s}, vcc")
        a.label(f"{tag}_NM{i}")
    for g in range(NG):
        s = V_S + 16 * g
        x = V_X + 1 + 2 * g
        a(f"v_max3_f32 v{x}, v{s}, v{s+1}, v{s+2}")
        for k in range(3, 15, 2):
            a(f"v_max3_f32 v{x}, v{x}, v{s+k}, v{s+k+1}")
        a(f"v_max_f32 v{x}, v{x}, v{s+15}")
    def xreduce(op):
        for swap in ("v_permlane16_swap_b32", "v_permlane32_swap_b32"):
            for g in range(NG):
                x = V_X + 1 + 2 * g
                a(f"v_mov_b32 v{x+1}, v{x}")
            a.nop(2)
            for g in range(NG):
                x = V_X + 1 + 2 * g
                a(f"{swap} v{x}, v{x+1}")
            a.nop(1)
            for g in range(NG):
                x = V_X + 1 + 2 * g
                a(f"{op} v{x}, v{x}, v{x+1}")
    xreduce("v_max_f32")
    a(f"s_lshl_b32 s{S_T0}, s{S_W}, 2")
    a(f"v_add_u32 v{V_T0}, s{S_T0}, v{V_MADDR}")
    for g in range(NG):
        a(f"ds_write_b32 v{V_T0}, v{V_X+1+2*g} offset:{g*512}")
    set_flag(a, 0)
    def vissue(lo=0, hi=4):
        for ii in range(lo, hi):
            a(f"s_add_u32 m0, s{S_M0B}, {ii*4096}")
            a.nop(1)
            for j in range(4):
                a(f"buffer_load_dwordx4 v{V_VOFF+j}, s[{SRD_V}:{SRD_V+3}], s{S_SOFF+ii} offen offset:{1024*j} {POL} lds")
    vissue(0, VSPLIT)
    a(f"s_cmp_ge_u32 s{S_W}, 4")
    a(f"s_cbranch_scc1 {tag}_V1")
    vissue(VSPLIT, 4)
    a.label(f"{tag}_V1")
    a(f"s_load_dword s{S_NON}, s[{S_DBG}:{S_DBG+1}], 0")
    poll_flags(a, f"{tag}_PM", 0)
    stamp(a, 8)
    for g in range(NG):
        k = V_KF + 8 * g
        a(f"ds_read_b128 v[{k}:{k+3}], v{V_MADDR} offset:{g*512}")
        a(f"ds_read_b128 v[{k+4}:{k+7}], v{V_MADDR} offset:{g*512+16}")
    a("s_waitcnt lgkmcnt(0)")
    for g in range(NG):
        k = V_KF + 8 * g
        a(f"v_max3_f32 v{k}, v{k}, v{k+1}, v{k+2}")
        a(f"v_max3_f32 v{k+3}, v{k+3}, v{k+4}, v{k+5}")
        a(f"v_max3_f32 v{k}, v{k}, v{k+6}, v{k+7}")
        a(f"v_max_f32 v{k}, v{k}, v{k+3}")
        a(f"v_mul_f32 v{V_MC+g}, s{S_C}, v{k}")
    for g in range(NG):
        for k in range(16):
            s = V_S + 16 * g + k
            a(f"v_fma_f32 v{s}, v{s}, s{S_C}, -v{V_MC+g}")
        for k in range(16):
            s = V_S + 16 * g + k
            a(f"v_exp_f32 v{s}, v{s}")
    a.nop(1)
    for g in range(NG):
        for i in range(4):
            s = V_S + 16 * g + 4 * i
            p = V_P + 8 * g + 2 * i
            a(f"v_cvt_pk_bf16_f32 v{p}, v{s}, v{s+1}")
            a(f"v_cvt_pk_bf16_f32 v{p+1}, v{s+2}, v{s+3}")
    def prow_off(i, g):
        if NG == 1:
            return i * 4096
        return (i % 3) * 8192 + g * 4096
    nrows0 = 4 if NG == 1 else 3
    for i in range(nrows0):
        for g in range(NG):
            p = V_P + 8 * g + 2 * i
            a(f"ds_write_b64 v{V_PWR}, v[{p}:{p+1}] offset:{prow_off(i, g)}")
    for g in range(NG):
        s = V_S + 16 * g
        x = V_X + 1 + 2 * g
        for k in range(0, 16, 2):
            a(f"v_add_f32 v{s+k}, v{s+k}, v{s+k+1}")
        for k in range(0, 16, 4):
            a(f"v_add_f32 v{s+k}, v{s+k}, v{s+k+2}")
        a(f"v_add_f32 v{s}, v{s}, v{s+4}")
        a(f"v_add_f32 v{s+8}, v{s+8}, v{s+12}")
        a(f"v_add_f32 v{x}, v{s}, v{s+8}")
    xreduce("v_add_f32")
    a(f"v_add_u32 v{V_T0}, 1024, v{V_T0}")
    for g in range(NG):
        a(f"ds_write_b32 v{V_T0}, v{V_X+1+2*g} offset:{g*512}")
    set_flag(a, 32)
    def v2():
        a(f"s_cmp_lt_u32 s{S_W}, 4")
        a(f"s_cbranch_scc1 {tag}_V2")
        vissue(VSPLIT, 4)
        a.label(f"{tag}_V2")
    if not PFIRST:
        v2()
    poll_flags(a, f"{tag}_PP", 32)
    def preg(i, g, u):
        return PREG[(i * 4 + u) * NG + g]
    def pread(i):
        for u in range(4):
            for g in range(NG):
                A = preg(i, g, u)
                a(f"ds_read_b128 v[{A}:{A+3}], v{V_PRD} offset:{prow_off(i, g) + u*1024}")
    for i in range(nrows0):
        pread(i)
        if NG == 2:
            a("s_waitcnt lgkmcnt(0)")
        elif i == 2:
            a("s_waitcnt lgkmcnt(4)")
    if PFIRST:
        v2()
    MLR = [V_X + 4, V_X + 12]
    def mlprep():
        a(f"s_cmp_lg_u32 s{S_W}, {MLWAVE}")
        a(f"s_cbranch_scc1 {tag}_NOMLP")
        for g in range(NG):
            X = V_B
            R = MLR[g]
            a(f"ds_read_b128 v[{X}:{X+3}], v{V_MADDR} offset:{1024+g*512}")
            a(f"ds_read_b128 v[{X+4}:{X+7}], v{V_MADDR} offset:{1024+g*512+16}")
            a("s_waitcnt lgkmcnt(0)")
            for t in range(4):
                a(f"v_add_f32 v{X+t}, v{X+t}, v{X+t+4}")
            a(f"v_add_f32 v{X}, v{X}, v{X+1}")
            a(f"v_add_f32 v{X+2}, v{X+2}, v{X+3}")
            a(f"v_add_f32 v{R+2}, v{X}, v{X+2}")
            a(f"v_mov_b32 v{R}, v{V_MC+g}")
            a(f"v_mov_b32 v{R+1}, v{V_N}")
            a(f"v_mov_b32 v{R+3}, v{V_N}")
        a.label(f"{tag}_NOMLP")
    def mlpub():
        a(f"s_cmp_lg_u32 s{S_W}, {MLWAVE}")
        a(f"s_cbranch_scc1 {tag}_NOML")
        a(f"s_lshl_b32 s{S_T1}, s{S_KVH}, 10")
        a(f"s_add_u32 s{S_T1}, s{S_T1}, 0x{WS_ML:x}")
        if NG == 1:
            a(f"s_lshl_b32 s{S_T2}, s{S_GRP}, 15")
            a(f"s_add_u32 s{S_T1}, s{S_T1}, s{S_T2}")
        for g in range(NG):
            R = MLR[g]
            if g == 1:
                a(f"s_add_u32 s{S_T1}, s{S_T1}, 32768")
            a(f"s_mov_b64 exec, s[{EM[g]}:{EM[g]+1}]")
            a(f"buffer_store_dwordx4 v[{R}:{R+3}], v{VM[g]}, s[{SRD_WS}:{SRD_WS+3}], s{S_T1} offen sc1")
        a("s_mov_b64 exec, -1")
        a.label(f"{tag}_NOML")
    a(f"v_mov_b32 v{V_N}, s{S_NON}")
    get_nonce(a, tag)
    for g in range(NG):
        for rho in range(2):
            G = V_G0 + 8 * g + 4 * rho
            a(f"v_mov_b32 v{G+1}, v{V_N}")
            a(f"v_mov_b32 v{G+3}, v{V_N}")
    a("s_waitcnt lgkmcnt(0)")
    mlprep()
    if MLROW < 0:
        mlpub()
    for i in range(4):
        a(f"s_waitcnt vmcnt({12-4*i}) lgkmcnt(0)")
        a("s_barrier")
        stamp(a, 9 + i)
        for u in range(4):
            B = V_B + 4 * u
            for h in range(2):
                wv = 2 * u + h
                base = V_VTLO if wv < 4 else V_VTHI
                off = (wv & 3) * 16384 + i * 4096
                a(f"ds_read_b64_tr_b16 v[{B+2*h}:{B+2*h+1}], v{base} offset:{off}")
        extra = 0
        if NG == 2 and i == 0:
            for g in range(NG):
                p = V_P + 8 * g + 6
                a(f"ds_write_b64 v{V_PWR}, v[{p}:{p+1}] offset:{prow_off(3, g)}")
            extra = 2
        for u in range(4):
            n = 2 * (3 - u) + extra
            assert n <= 15
            a(f"s_waitcnt lgkmcnt({n})")
            B = V_B + 4 * u
            for g in range(NG):
                A = preg(i, g, u)
                acc = V_ACC + 4 * g
                c = "0" if (i == 0 and u == 0) else f"v[{acc}:{acc+3}]"
                a(f"v_mfma_f32_16x16x32_bf16 v[{acc}:{acc+3}], v[{A}:{A+3}], v[{B}:{B+3}], {c}")
            if NG == 2 and i == 1 and u == 0:
                pread(3)
                extra = 8
        if i == MLROW:
            mlpub()
    a.nop(8)
    for g in range(NG):
        for rho in range(2):
            G = V_G0 + 8 * g + 4 * rho
            a(f"v_bfi_b32 v{G}, s{S_FF}, v{V_N}, v{V_ACC+4*g+2*rho}")
            a(f"v_bfi_b32 v{G+2}, s{S_FF}, v{V_N}, v{V_ACC+4*g+2*rho+1}")
    for g in range(NG):
        a(f"s_mov_b64 exec, s[{EX[g]}:{EX[g]+1}]")
        for rho in range(2):
            G = V_G0 + 8 * g + 4 * rho
            a(f"buffer_store_dwordx4 v[{G}:{G+3}], v{VS[g]}, s[{SRD_WS}:{SRD_WS+3}], s{S_DO[2*g+rho]} offen sc1")
    a("s_mov_b64 exec, -1")

HEADER = """; Kernarg layout for this problem (64 bytes, ptrs only, base s[0:1]):
;
; @launch grid=(256,1,1) block=(512,1,1) lds={lds}
.amdgcn_target "amdgcn-amd-amdhsa--gfx950"
.text
"""

def kd(name, vgpr, sgpr):
    acc = (vgpr + 3) // 4 * 4
    return f""".amdhsa_kernel {name}
  .amdhsa_next_free_vgpr {vgpr}
  .amdhsa_next_free_sgpr {sgpr}
  .amdhsa_accum_offset {acc}
  .amdhsa_group_segment_fixed_size 0
  .amdhsa_kernarg_size 64
  .amdhsa_user_sgpr_count 2
  .amdhsa_user_sgpr_kernarg_segment_ptr 1
  .amdhsa_system_sgpr_workgroup_id_x 1
.end_amdhsa_kernel
"""

def main(out):
    t = HEADER.format(lds=LDS_TOTAL)
    a = Asm()
    kernelA(a)
    t += f".globl {KNAME}\n.p2align 8\n.type {KNAME},@function\n" + a.text()
    t += '.section .rodata,"a"\n.p2align 6\n' + kd(KNAME, V_END, 102)
    open(out, "w").write(t)

if __name__ == "__main__":
    main(sys.argv[1] if len(sys.argv) > 1 else f"cdna_kernels/{NAME}.s")
```

```python
import struct, sys, math, os

NAME = "standalone__paged_block_table_kv_radixattention__decode"
KNAME = NAME + "_kernel"
E = os.environ.get
STAMP = int(E('STAMP', '0'))
POL = E('POL', 'nt')
PRIO = int(E('PRIO', '1'))
SLEEP = int(E('SLEEP', '2'))
NOCONS = int(E('NOCONS', '0'))
MLROW = int(E('MLROW', '-1'))
MLWAVE = int(E('MLWAVE', '0'))
CNTS = [int(x) for x in E('CNT', '29,41,28,30,29,41,28,30').split(',')]
assert sum(CNTS) == 256 and min(CNTS) >= 16
VSPLIT1 = int(E('VSPLIT', '1'))
VSPLIT2 = int(E('VSPLIT2', '2'))
COFF = int(E('COFF', '8'))
PIPE = int(E('PIPE', '1'))
PSLEEP = int(E('PSLEEP', '1'))
SPEC = int(E('SPEC', '1'))
SPECA = int(E('SPECA', '2'))
PFIRST = int(E('PFIRST', '0'))
CPF = int(E('CPF', '0'))
TLBW = int(E('TLBW', '0'))
TLBK = int(E('TLBK', '0'))
EPWG = int(E('EPWG', '-1'))
OUTPOL = E('OUTPOL', '')
LATEPRIO = int(E('LATEPRIO', '0'))
HPERM = [int(x) for x in E('HPERM', '0,1,2,3').split(',')]
TMIN = int(E('TMIN', '20'))
NCONS = int(E('NCONS', '128'))

if EPWG < 0: EPWG = CNTS[0] - 1
def _pred():
    ctx = [4096 - ((b + 1) * 2654435761) % 1024 for b in range(8)]
    S = 128
    n = [(c + 15) // 16 - S for c in ctx]
    P = [S]
    for x in n: P.append(P[-1] + x)
    off = [128 + 128 * b - P[b] for b in range(8)]
    steps = [(P[b], off[b] - off[b - 1]) for b in range(1, 8)]
    assert off[0] == 0 and all(0 < d <= 64 for _, d in steps), steps
    return P[-1], S, steps
PRED_N, PRED_S, PRED_STEPS = _pred()

def f32bits(x):
    return struct.unpack("<I", struct.pack("<f", x))[0]

class Asm:
    def __init__(self):
        self.lines = []
    def __call__(self, s):
        self.lines.append("  " + s)
    def label(self, s):
        self.lines.append(s + ":")
    def nop(self, n):
        while n > 0:
            k = min(n, 16)
            self.lines.append("  s_nop %d" % (k - 1))
            n -= k
    def c(self, s):
        self.lines.append("  ; " + s)
    def text(self):
        return "\n".join(self.lines) + "\n"

KV_BYTES = 1152 * 32768
NEG = 0xF1800000
CSCALE = f32bits((128 ** -0.5) * math.log2(math.e))
LDS_P = 131072
LDS_TBL = LDS_P
LDS_SW = LDS_P + 8192
LDS_Q = LDS_P + 12288
LDS_M = LDS_P + 24576
LDS_L = LDS_M + 1024
LDS_PLAN = LDS_L + 1024
LDS_FLAG = LDS_PLAN + 64
LDS_TOTAL = LDS_FLAG + 64
WS_ML = 4 << 20
WS_EPOCH = WS_ML + 65536
WS_SIZE = 8 << 20
WS_STAMP = 6 << 20
NS = 16
OOB = 0x80000000

S_W = 3
S_L0X = 4
S_LE8X = 6
S_Q, S_K, S_V, S_BT, S_CTX, S_OUT, S_DBG, S_WS = 8, 10, 12, 14, 16, 18, 20, 22
SRD_K, SRD_V, SRD_Q, SRD_WS = 24, 28, 32, 36
S_CTXW, S_S, S_IT, S_KVH, S_N, S_T, S_F0, S_HI, S_FB, S_NSH, S_PM, S_MIXED, S_GRP, S_NG2 = range(40, 54)
S_LANE = 54
S_SOFF = 60
S_REM = 64
S_T0, S_T1, S_T2, S_T3 = 68, 69, 70, 71
S_MSK = 72
S_C, S_M0B, S_KVH256, S_QM0, S_QSOFF = 80, 81, 82, 83, 84
S_CNT, S_FF, S_SPIN, S_PEND = 86, 87, 88, 89
S_OWN = 90
S_MM = 94
S_OM = 96
S_CB = 53
S_RHO = 59
S_RND = 85
S_NIT = 48
S_TM = 100
S_IT0 = 101
S_NON = 58
S_EX = 8
S_EM = 12
S_DO = [16, 17, 22, 23]

V_LANE, V_T0, V_T1, V_T2, V_T3 = 1, 2, 3, 4, 5
V_G, V_C = 6, 7
V_ROW = 8
V_ROW0 = 12
V_KOFF = 16
V_VOFF = 20
V_KRD = 24
V_LJ = 28
V_VTLO, V_VTHI = 32, 33
V_PRD, V_PWR, V_MADDR, V_ROWB = 34, 35, 36, 37
V_TOK = 38
V_QOFF, V_OOFF, V_MLOFF, V_CTXA, V_NEG, V_CB = 42, 43, 44, 45, 46, 47
V_MC = 48
V_L = 50
V_X = 52
V_Q = 68
V_KF = 100
V_S = 116
V_P = 148
V_A = 164
V_B = 164
V_ACC = 188
V_STAMP = 196
V_N = 197
V_ZERO = 198
V_G0 = 200
V_D = 216
V_VS = 52 + 8
V_FLG = 199
V_END = 256
PREG = [68 + 4*k for k in range(20)] + [180, 184, 216, 220] + [224 + 4*k for k in range(8)]

def stamp(a, idx):
    if not STAMP: return
    a("s_memrealtime s[98:99]")
    a("s_waitcnt lgkmcnt(0)")
    a(f"v_writelane_b32 v{V_STAMP}, s98, {idx}")
def stamp_out(a):
    if not STAMP: return
    a(f"v_lshlrev_b32 v{V_T0}, 2, v{V_LANE}")
    a("s_mov_b64 exec, 0xffff")
    a(f"s_lshl_b32 s{S_T0}, s2, 3")
    a(f"s_add_u32 s{S_T0}, s{S_T0}, s{S_W}")
    a(f"s_lshl_b32 s{S_T0}, s{S_T0}, 6")
    a(f"s_add_u32 s{S_T0}, s{S_T0}, 0x{WS_STAMP:x}")
    a(f"buffer_store_dword v{V_STAMP}, v{V_T0}, s[{SRD_WS}:{SRD_WS+3}], s{S_T0} offen")
    a("s_mov_b64 exec, -1")

vctx, vS, vn, vcum, vex, vj = V_D, V_D+1, V_D+2, V_D+3, V_D+4, V_D+5

def plan_extra(a, tag):
    X = V_X
    a(f"v_cvt_f32_u32 v{X}, s{S_T}")
    a(f"v_cmp_gt_u32 s[{S_MSK}:{S_MSK+1}], s{S_HI}, v{vex}")
    a(f"v_rcp_f32 v{X}, v{X}")
    a(f"v_cmp_lt_u32 s[{S_MSK+2}:{S_MSK+3}], s{S_F0}, v{vcum}")
    a(f"v_cmp_lt_u32 s[{S_MSK+4}:{S_MSK+5}], 0, v{vn}")
    a(f"v_cvt_f32_u32 v{X+1}, v{vex}")
    a(f"v_add_u32 v{X+2}, -1, v{vcum}")
    a(f"v_cvt_f32_u32 v{X+2}, v{X+2}")
    a(f"s_and_b32 s{S_T0}, s{S_MSK}, s{S_MSK+2}")
    a(f"s_and_b32 s{S_T0}, s{S_T0}, s{S_MSK+4}")
    a(f"s_and_b32 s{S_T0}, s{S_T0}, 0x1ff")
    a(f"v_mul_f32 v{X+1}, v{X+1}, v{X}")
    a(f"v_mul_f32 v{X+2}, v{X+2}, v{X}")
    a(f"v_add_f32 v{X+1}, 0x3ba3d70a, v{X+1}")
    a(f"v_add_f32 v{X+2}, 0x3ba3d70a, v{X+2}")
    a(f"v_cvt_u32_f32 v{X+1}, v{X+1}")
    a(f"v_cvt_u32_f32 v{X+2}, v{X+2}")
    a(f"s_bcnt1_i32_b32 s{S_T1}, s{S_T0}")
    a(f"s_cmp_gt_u32 s{S_T1}, 1")
    a(f"s_cselect_b32 s{S_MIXED}, 1, 0")
    a(f"s_lshr_b32 s{S_T1}, s{S_T0}, 1")
    a(f"v_readlane_b32 s{S_NSH}, v{X+2}, 0")
    a(f"s_and_b32 s{S_T2}, s{S_T1}, 0xf")
    a(f"s_cmp_eq_u32 s{S_T2}, 0")
    a(f"s_cselect_b32 s{S_GRP}, 1, 0")
    a(f"s_lshr_b32 s{S_T3}, s{S_T1}, 4")
    a(f"s_min_u32 s{S_T2}, s{S_T2}, 1")
    a(f"s_min_u32 s{S_T3}, s{S_T3}, 1")
    a(f"s_and_b32 s{S_T2}, s{S_T2}, s{S_T3}")
    a(f"s_and_b32 s{S_T3}, s{S_T0}, 1")
    a(f"s_or_b32 s{S_NG2}, s{S_T2}, s{S_T3}")
    a(f"s_cmp_lg_u32 s{S_T3}, 0")
    a(f"s_cselect_b32 s{S_PM}, 0xff, s{S_T1}")
    a(f"s_add_u32 s{S_NSH}, s{S_NSH}, 1")
    a(f"s_cmp_eq_u32 s{S_S}, 0")
    a(f"s_cselect_b32 s{S_NSH}, 0, s{S_NSH}")
    a(f"v_max_u32 v{X+1}, s{S_NSH}, v{X+1}")
    a(f"v_add_u32 v{X+2}, 1, v{X+2}")
    a(f"v_sub_u32 v{X+2}, v{X+2}, v{X+1}")
    a(f"v_max_i32 v{X+2}, 0, v{X+2}")
    a(f"v_cndmask_b32 v{X+2}, 0, v{X+2}, s[{S_MSK+4}:{S_MSK+5}]")
    a(f"v_subrev_u32 v{X+1}, s{S_NSH}, v{X+1}")
    a(f"v_add_u32 v{X+2}, s{S_NSH}, v{X+2}")
    a(f"v_lshlrev_b32 v{X+3}, 2, v{V_C}")
    a(f"v_add_u32 v{X+3}, 0x{LDS_PLAN:x}, v{X+3}")
    a(f"ds_write_b32 v{X+3}, v{X+1}")
    a(f"s_lshr_b32 s{S_T1}, s{S_IT0}, 1")
    a(f"s_and_b32 s{S_T1}, s{S_T1}, 7")
    a(f"s_add_u32 s{S_T1}, s{S_T1}, 1")
    a(f"v_readlane_b32 s{S_CNT}, v{X+2}, s{S_T1}")

def kernelA(a: Asm):
    a.label(KNAME)
    a("s_cmp_ge_u32 s2, 256")
    a("s_cbranch_scc1 A_END")
    if STAMP:
        a("s_memrealtime s[98:99]")
    a("s_load_dwordx16 s[8:23], s[0:1], 0")
    if PRIO:
        a("s_setprio 3")
    a(f"v_and_b32 v{V_LANE}, 63, v0")
    if CPF:
        a("s_getpc_b64 s[24:25]")
        a.label("A_PC")
        a(f"v_lshlrev_b32 v{V_T3}, 5, v0")
        a(f"v_min_u32 v{V_T3}, A_END-A_PC, v{V_T3}")
        a(f"global_load_dword v255, v{V_T3}, s[24:25]")
    a(f"v_lshrrev_b32 v{V_T0}, 6, v0")
    a(f"v_lshlrev_b32 v{V_T1}, 4, v{V_LANE}")
    a(f"v_readfirstlane_b32 s{S_W}, v{V_T0}")
    a(f"v_lshlrev_b32 v{V_T2}, 4, v0")
    a(f"v_lshrrev_b32 v{V_G}, 4, v{V_LANE}")
    a(f"v_and_b32 v{V_C}, 15, v{V_LANE}")
    assert CNTS[:4] == CNTS[4:]
    pre = [sum(CNTS[:h]) for h in range(4)]
    a(f"s_and_b32 s{S_IT}, s2, 127")
    a(f"s_lshr_b32 s{S_KVH}, s2, 7")
    a(f"s_lshl_b32 s{S_KVH}, s{S_KVH}, 2")
    a(f"s_mov_b32 s{S_T0}, 0")
    a(f"s_mov_b32 s{S_T1}, {HPERM[0]}")
    a(f"s_mov_b32 s{S_NIT}, {CNTS[0]}")
    a(f"s_mov_b32 s{S_TM}, {-(-65536//CNTS[0])}")
    for h in range(1, 4):
        a(f"s_cmp_ge_u32 s{S_IT}, {pre[h]}")
        a(f"s_cselect_b32 s{S_T1}, {HPERM[h]}, s{S_T1}")
        a(f"s_cselect_b32 s{S_T0}, {pre[h]}, s{S_T0}")
        a(f"s_cselect_b32 s{S_NIT}, {CNTS[h]}, s{S_NIT}")
        a(f"s_cselect_b32 s{S_TM}, {-(-65536//CNTS[h])}, s{S_TM}")
    a(f"s_sub_u32 s{S_IT}, s{S_IT}, s{S_T0}")
    a(f"s_add_u32 s{S_KVH}, s{S_KVH}, s{S_T1}")
    a(f"s_sub_u32 s{S_IT0}, s{S_IT}, {COFF}")
    a(f"s_and_b32 s{S_T0}, s{S_W}, 3")
    a(f"s_lshl_b32 s{S_T0}, s{S_T0}, 2")
    a(f"v_add_u32 v{V_T0}, s{S_T0}, v{V_G}")
    a(f"v_xor_b32 v{V_T0}, v{V_T0}, v{V_C}")
    a(f"v_lshlrev_b32 v{V_T0}, 4, v{V_T0}")
    a(f"v_lshl_add_u32 v{V_QOFF}, v{V_G}, 8, v{V_T0}")
    a(f"s_lshl_b32 s{S_KVH256}, s{S_KVH}, 8")
    a(f"s_lshl_b32 s{S_QSOFF}, s{S_W}, 13")
    a(f"s_lshl_b32 s{S_T0}, s{S_KVH}, 10")
    a(f"s_add_u32 s{S_QSOFF}, s{S_QSOFF}, s{S_T0}")
    a(f"s_lshl_b32 s{S_QM0}, s{S_W}, 10")
    a(f"s_add_u32 s{S_QM0}, s{S_QM0}, 0x{LDS_Q:x}")
    a(f"s_lshl_b32 s{S_M0B}, s{S_W}, 14")
    for j in range(4):
        a(f"v_add_u32 v{V_T0}, {4*j}, v{V_G}")
        a(f"v_xor_b32 v{V_T3}, v{V_T0}, v{V_C}")
        a(f"v_lshlrev_b32 v{V_T3}, 4, v{V_T3}")
        a(f"v_lshl_add_u32 v{V_KOFF+j}, v{V_T0}, 11, v{V_T3}")
        if j:
            a(f"v_subrev_u32 v{V_KOFF+j}, {1024*j}, v{V_KOFF+j}")
        a(f"v_lshl_add_u32 v{V_LJ+j}, v{V_C}, 8, v{V_T3}")
    if SPEC:
        PN, PS = PRED_N, PRED_S
        a(f"s_cmp_ge_u32 s{S_W}, 4")
        a("s_cbranch_scc1 A_NOPRED")
        a(f"s_add_u32 s{S_T0}, s{S_NIT}, {PN - 1}")
        a(f"s_mul_i32 s{S_T0}, s{S_T0}, s{S_TM}")
        a(f"s_lshr_b32 s{S_T0}, s{S_T0}, 16")
        a(f"s_max_u32 s{S_T0}, s{S_T0}, {TMIN}")
        a(f"s_min_u32 s{S_T0}, s{S_T0}, 32")
        a(f"s_mul_i32 s{S_T2}, s{S_IT}, s{S_T0}")
        a(f"s_add_u32 s{S_T0}, s{S_T2}, s{S_T0}")
        a(f"s_min_u32 s{S_T0}, s{S_T0}, {PN}")
        a(f"s_add_u32 s{S_T2}, s{S_T2}, s{S_W}")
        X = V_X
        a(f"v_lshl_add_u32 v{X}, v{V_LANE}, 3, s{S_T2}")
        a(f"v_mov_b32 v{X+1}, v{X}")
        for th, dl in PRED_STEPS:
            a(f"v_subrev_u32 v{X+2}, {th - 1}, v{X}")
            a(f"v_med3_i32 v{X+2}, v{X+2}, 0, 1")
            a(f"v_mad_u32_u24 v{X+1}, v{X+2}, {dl}, v{X+1}")
        a(f"v_lshl_add_u32 v{X+1}, v{X+1}, 15, s{S_KVH256}")
        a(f"v_cmp_gt_u32 vcc, s{S_T0}, v{X}")
        a(f"v_mov_b32 v{X+2}, 0x{OOB:x}")
        a.nop(1)
        a(f"v_cndmask_b32 v{X+1}, v{X+2}, v{X+1}, vcc")
        a.nop(1)
        for i in range(4):
            a(f"v_readlane_b32 s{S_REM+i}, v{X+1}, {i}")
        a.label("A_NOPRED")
    a(f"s_lshl_b32 s{S_T1}, s{S_W}, 2")
    a("s_waitcnt lgkmcnt(0)")
    if STAMP:
        a(f"v_writelane_b32 v{V_STAMP}, s98, 0")
    stamp(a, 1)
    a(f"global_load_dwordx4 v[{V_ROW}:{V_ROW+3}], v{V_T2}, s[{S_BT}:{S_BT+1}]")
    a(f"global_load_dwordx4 v[{V_ROW0}:{V_ROW0+3}], v{V_T1}, s[{S_BT}:{S_BT+1}]")
    a(f"s_load_dword s{S_CTXW}, s[{S_CTX}:{S_CTX+1}], s{S_T1}")
    def srd(srd, p, sz):
        a(f"s_mov_b32 s{srd}, s{p}")
        a(f"s_and_b32 s{srd+1}, s{p+1}, 0xffff")
        a(f"s_mov_b32 s{srd+2}, 0x{sz:x}")
        a(f"s_mov_b32 s{srd+3}, 0x20000")
    srd(SRD_Q, S_Q, 65536)
    a(f"s_mov_b32 m0, s{S_QM0}")
    srd(SRD_K, S_K, KV_BYTES)
    a(f"buffer_load_dwordx4 v{V_QOFF}, s[{SRD_Q}:{SRD_Q+3}], s{S_QSOFF} offen lds")
    if SPEC:
        a("s_barrier")
        a(f"s_cmp_ge_u32 s{S_W}, 4")
        a("s_cbranch_scc1 A_NOSPEC")
        for i in range(SPECA):
            a(f"s_add_u32 m0, s{S_M0B}, {i*4096}")
            a.nop(1)
            for j in range(4):
                a(f"buffer_load_dwordx4 v{V_KOFF+j}, s[{SRD_K}:{SRD_K+3}], s{S_REM+i} offen offset:{1024*j} {POL} lds")
        a.label("A_NOSPEC")
    srd(SRD_V, S_V, KV_BYTES)
    srd(SRD_WS, S_WS, WS_SIZE)
    a(f"s_mov_b32 s{S_C}, 0x{CSCALE:08x}")
    a(f"s_mov_b32 s{S_L0X}, 0x00010001")
    a(f"s_mov_b32 s{S_L0X+1}, 0x00010001")
    a(f"s_mov_b32 s{S_LE8X}, 0x01ff01ff")
    a(f"s_mov_b32 s{S_LE8X+1}, 0x01ff01ff")
    a(f"v_mov_b32 v{V_NEG}, 0x{NEG:08x}")
    a(f"v_mov_b32 v{V_ZERO}, 0")
    a(f"s_movk_i32 s{S_FF}, 0xff")
    a(f"s_cmp_lg_u32 s2, {EPWG}")
    a("s_cbranch_scc1 A_NOEP")
    a(f"s_cmp_lg_u32 s{S_W}, 7")
    a("s_cbranch_scc1 A_NOEP")
    a(f"s_mov_b32 s{S_T0}, 0x{WS_EPOCH:x}")
    a(f"buffer_load_dword v{V_N}, v{V_ZERO}, s[{SRD_WS}:{SRD_WS+3}], s{S_T0} offen sc1")
    a("s_waitcnt vmcnt(0)")
    a(f"v_add_u32 v{V_N}, 1, v{V_N}")
    a(f"v_max_u32 v{V_N}, 1, v{V_N}")
    a("s_mov_b64 exec, 1")
    a(f"buffer_store_dword v{V_N}, v{V_ZERO}, s[{SRD_WS}:{SRD_WS+3}], s{S_T0} offen sc1")
    a(f"global_store_dword v{V_ZERO}, v{V_N}, s[{S_DBG}:{S_DBG+1}] sc0 sc1")
    a("s_mov_b64 exec, -1")
    a.label("A_NOEP")
    for j in range(4):
        a(f"v_add_u32 v{V_T0}, {4*j}, v{V_G}")
        a(f"v_and_b32 v{V_T3}, 7, v{V_T0}")
        a(f"v_lshlrev_b32 v{V_T3}, 1, v{V_T3}")
        a(f"v_xor_b32 v{V_T3}, v{V_T3}, v{V_C}")
        a(f"v_lshlrev_b32 v{V_T3}, 4, v{V_T3}")
        a(f"v_lshl_add_u32 v{V_VOFF+j}, v{V_T0}, 11, v{V_T3}")
        if j:
            a(f"v_subrev_u32 v{V_VOFF+j}, {1024*j}, v{V_VOFF+j}")
    for j in range(4):
        a(f"v_add_u32 v{V_KRD+j}, s{S_M0B}, v{V_LJ+j}")
        a(f"v_add_u32 v{V_LJ+j}, 0x{LDS_Q:x}, v{V_LJ+j}")
    a(f"v_lshrrev_b32 v{V_CB}, 2, v{V_C}")
    a(f"v_lshl_add_u32 v{V_T0}, v{V_G}, 2, v{V_CB}")
    a(f"v_and_b32 v{V_T3}, 7, v{V_T0}")
    a(f"v_xor_b32 v{V_T3}, s{S_W}, v{V_T3}")
    a(f"v_lshlrev_b32 v{V_T3}, 5, v{V_T3}")
    a(f"v_lshl_add_u32 v{V_T3}, v{V_T0}, 8, v{V_T3}")
    a(f"v_and_b32 v{V_T0}, 3, v{V_C}")
    a(f"v_lshl_add_u32 v{V_VTLO}, v{V_T0}, 3, v{V_T3}")
    a(f"v_add_u32 v{V_VTHI}, 0x10000, v{V_VTLO}")
    a(f"v_add_u32 v{V_PRD}, 0x{LDS_P:x}, v{V_T1}")
    a(f"s_lshr_b32 s{S_T0}, s{S_W}, 1")
    a(f"s_lshl_b32 s{S_T0}, s{S_T0}, 10")
    a(f"s_and_b32 s{S_T1}, s{S_W}, 1")
    a(f"s_lshl_b32 s{S_T1}, s{S_T1}, 3")
    a(f"s_add_u32 s{S_T0}, s{S_T0}, s{S_T1}")
    a(f"v_add_u32 v{V_PWR}, s{S_T0}, v{V_PRD}")
    a(f"v_lshlrev_b32 v{V_MADDR}, 5, v{V_C}")
    a(f"v_add_u32 v{V_MADDR}, 0x{LDS_M:x}, v{V_MADDR}")
    for r in range(4):
        a(f"v_lshl_add_u32 v{V_TOK+r}, v{V_G}, 2, {r}")
    a(f"v_lshlrev_b32 v{V_T0}, 19, v{V_G}")
    a(f"v_lshl_add_u32 v{V_OOFF}, v{V_C}, 4, v{V_T0}")
    a(f"v_lshlrev_b32 v{V_T0}, 13, v{V_CB}")
    a(f"v_and_b32 v{V_T3}, 3, v{V_C}")
    a(f"v_lshl_add_u32 v{V_MLOFF}, v{V_T3}, 8, v{V_T0}")
    a(f"v_add_u32 v{V_T0}, -1, v{V_C}")
    a(f"v_and_b32 v{V_T3}, 7, v{V_T0}")
    a(f"v_lshlrev_b32 v{V_T3}, 2, v{V_T3}")
    a(f"v_add_u32 v{V_CTXA}, 0x{LDS_SW+32:x}, v{V_T3}")
    a(f"v_max_i32 v{V_T0}, 0, v{V_T0}")
    a(f"v_min_u32 v{V_T0}, 7, v{V_T0}")
    a(f"v_lshlrev_b32 v{V_T0}, 10, v{V_T0}")
    a(f"v_add_u32 v{V_ROWB}, 0x{LDS_TBL:x}, v{V_T0}")
    a("s_waitcnt lgkmcnt(0)")
    a(f"s_max_i32 s{S_CTXW}, s{S_CTXW}, 0")
    a(f"s_min_i32 s{S_CTXW}, s{S_CTXW}, 4096")
    a(f"s_mov_b32 s{S_RND}, 0")
    a(f"v_mov_b32 v{V_FLG}, 0x{LDS_FLAG:x}")
    a(f"s_lshl_b32 s{S_T0}, s{S_W}, 2")
    a(f"v_add_u32 v{V_T0}, s{S_T0}, v{V_FLG}")
    a(f"ds_write2_b32 v{V_T0}, v{V_ZERO}, v{V_ZERO} offset0:0 offset1:8")
    a.label("A_ROUND")
    a(f"s_add_u32 s{S_RND}, s{S_RND}, 1")
    a(f"v_lshlrev_b32 v{V_T0}, 4, v0")
    a(f"v_add_u32 v{V_T0}, 0x{LDS_TBL:x}, v{V_T0}")
    a(f"s_lshl_b32 s{S_T0}, s{S_W}, 2")
    a(f"s_add_u32 s{S_T0}, s{S_T0}, 0x{LDS_SW:x}")
    a(f"v_mov_b32 v{V_T3}, s{S_T0}")
    a(f"v_mov_b32 v{V_X+1}, s{S_CTXW}")
    a(f"s_lshr_b32 s{S_T1}, s{S_CTXW}, 4")
    a(f"v_mov_b32 v{V_T2}, 0x{LDS_SW:x}")
    stamp(a, 2)
    if SPEC:
        a(f"s_cmp_eq_u32 s{S_RND}, 1")
        a(f"s_cselect_b32 s{S_T2}, 4, 0")
        a(f"s_cmp_lt_u32 s{S_W}, s{S_T2}")
        a("s_cbranch_scc1 A_W16")
        a("s_waitcnt vmcnt(0)")
        a("s_branch A_WD")
        a.label("A_W16")
        a(f"s_waitcnt vmcnt({4*SPECA})")
        a.label("A_WD")
    else:
        a("s_waitcnt vmcnt(0)")
    stamp(a, 3)
    for e in range(4):
        a(f"v_cmp_ne_u32 s[{S_MSK+2*e}:{S_MSK+2*e+1}], v{V_ROW+e}, v{V_ROW0+e}")
    a(f"ds_write_b128 v{V_T0}, v[{V_ROW}:{V_ROW+3}]")
    a(f"s_or_b64 s[{S_MSK}:{S_MSK+1}], s[{S_MSK}:{S_MSK+1}], s[{S_MSK+2}:{S_MSK+3}]")
    a(f"s_or_b64 s[{S_MSK+4}:{S_MSK+5}], s[{S_MSK+4}:{S_MSK+5}], s[{S_MSK+6}:{S_MSK+7}]")
    a(f"s_or_b64 s[{S_MSK}:{S_MSK+1}], s[{S_MSK}:{S_MSK+1}], s[{S_MSK+4}:{S_MSK+5}]")
    a(f"s_ff1_i32_b64 s{S_T0}, s[{S_MSK}:{S_MSK+1}]")
    a(f"s_lshl_b32 s{S_T0}, s{S_T0}, 2")
    a(f"s_min_u32 s{S_T0}, s{S_T0}, s{S_T1}")
    a(f"v_mov_b32 v{V_X}, s{S_T0}")
    a(f"ds_write2_b32 v{V_T3}, v{V_X}, v{V_X+1} offset0:0 offset1:8")
    a("s_waitcnt lgkmcnt(0)")
    a("s_barrier")
    X = V_X
    if SPEC and SPECA < 4:
        a(f"s_cmp_eq_u32 s{S_RND}, 1")
        a(f"s_cselect_b32 s{S_T0}, 4, 0")
        a(f"s_cmp_lt_u32 s{S_W}, s{S_T0}")
        a("s_cbranch_scc0 A_NOSPEC2")
        for i in range(SPECA, 4):
            a(f"s_add_u32 m0, s{S_M0B}, {i*4096}")
            a.nop(1)
            for j in range(4):
                a(f"buffer_load_dwordx4 v{V_KOFF+j}, s[{SRD_K}:{SRD_K+3}], s{S_REM+i} offen offset:{1024*j} {POL} lds")
        a.label("A_NOSPEC2")
    a(f"ds_read_b128 v[{X}:{X+3}], v{V_T2}")
    a(f"ds_read_b128 v[{X+4}:{X+7}], v{V_T2} offset:16")
    a(f"ds_read_b32 v{vctx}, v{V_CTXA}")
    a("s_waitcnt lgkmcnt(0)")
    a(f"v_min3_u32 v{X}, v{X}, v{X+1}, v{X+2}")
    a(f"v_min3_u32 v{X+3}, v{X+3}, v{X+4}, v{X+5}")
    a(f"v_add_u32 v{vn}, 15, v{vctx}")
    a(f"v_min3_u32 v{X}, v{X}, v{X+6}, v{X+7}")
    a(f"v_lshrrev_b32 v{vn}, 4, v{vn}")
    a(f"v_min_u32 v{vS}, v{X}, v{X+3}")
    a(f"v_sub_u32 v{vn}, v{vn}, v{vS}")
    a(f"v_cndmask_b32 v{vn}, v{vn}, v{vS}, s[{S_L0X}:{S_L0X+1}]")
    a(f"v_cndmask_b32 v{vn}, 0, v{vn}, s[{S_LE8X}:{S_LE8X+1}]")
    a(f"v_mov_b32 v{vcum}, v{vn}")
    a(f"v_cndmask_b32 v{X+8}, v{vS}, 0, s[{S_L0X}:{S_L0X+1}]")
    a(f"v_readfirstlane_b32 s{S_S}, v{vS}")
    dpp = "row_mask:0xf bank_mask:0xf bound_ctrl:0"
    a(f"v_add_u32_dpp v{vcum}, v{vcum}, v{vcum} row_shr:1 {dpp}")
    a(f"v_lshlrev_b32 v{X+9}, 3, v{V_G}")
    a(f"v_add_u32 v{X+9}, s{S_W}, v{X+9}")
    a(f"v_add_u32_dpp v{vcum}, v{vcum}, v{vcum} row_shr:2 {dpp}")
    a.nop(2)
    a(f"v_add_u32_dpp v{vcum}, v{vcum}, v{vcum} row_shr:4 {dpp}")
    a.nop(2)
    a(f"v_add_u32_dpp v{vcum}, v{vcum}, v{vcum} row_shr:8 {dpp}")
    a.nop(1)
    a(f"v_readlane_b32 s{S_N}, v{vcum}, 8")
    a(f"v_sub_u32 v{vex}, v{vcum}, v{vn}")
    a(f"v_sub_u32 v{X+8}, v{vex}, v{X+8}")
    a(f"s_add_u32 s{S_T}, s{S_N}, s{S_NIT}")
    a(f"s_sub_u32 s{S_T}, s{S_T}, 1")
    a(f"s_mul_i32 s{S_T}, s{S_T}, s{S_TM}")
    a(f"s_lshr_b32 s{S_T}, s{S_T}, 16")
    a(f"s_max_u32 s{S_T}, s{S_T}, {TMIN}")
    a(f"s_min_u32 s{S_T}, s{S_T}, 32")
    a(f"s_mul_i32 s{S_F0}, s{S_IT}, s{S_T}")
    a(f"s_add_u32 s{S_HI}, s{S_F0}, s{S_T}")
    a(f"s_min_u32 s{S_HI}, s{S_HI}, s{S_N}")
    a(f"s_cmp_ge_u32 s{S_F0}, s{S_N}")
    a("s_cbranch_scc1 A_FIN0")
    a(f"v_add_u32 v{X+9}, s{S_F0}, v{X+9}")
    a(f"v_min_u32 v{X+10}, s{S_HI}, v{vcum}")
    a(f"v_cmp_gt_u32 vcc, v{X+10}, v{X+9}")
    a(f"v_cmp_le_u32 s[{S_MM}:{S_MM+1}], v{vex}, v{X+9}")
    a(f"v_sub_u32 v{vj}, v{X+9}, v{X+8}")
    a(f"v_min_u32 v{vj}, 255, v{vj}")
    a(f"v_lshl_add_u32 v{X+10}, v{vj}, 2, v{V_ROWB}")
    a(f"ds_read_b32 v{X+11}, v{X+10}")
    a(f"s_and_b64 s[{S_MM}:{S_MM+1}], s[{S_MM}:{S_MM+1}], vcc")
    a(f"v_mov_b32 v{X+12}, 0x{OOB:x}")
    for i in range(4):
        src = S_MM + (i >> 1)
        if i & 1:
            a(f"s_lshr_b32 s{S_LANE+i}, s{src}, 16")
        else:
            a(f"s_and_b32 s{S_LANE+i}, s{src}, 0xffff")
        a(f"s_or_b32 s{S_LANE+i}, s{S_LANE+i}, 0x8000")
        a(f"s_ff1_i32_b32 s{S_LANE+i}, s{S_LANE+i}")
        if i:
            a(f"s_add_u32 s{S_LANE+i}, s{S_LANE+i}, {16*i}")
    a(f"s_mov_b32 m0, s{S_M0B}")
    a("s_waitcnt lgkmcnt(0)")
    a(f"v_lshl_add_u32 v{X+11}, v{X+11}, 15, s{S_KVH256}")
    a(f"v_cndmask_b32 v{X+11}, v{X+12}, v{X+11}, s[{S_MM}:{S_MM+1}]")
    a.nop(1)
    for i in range(4):
        a(f"v_readlane_b32 s{S_SOFF+i}, v{X+11}, s{S_LANE+i}")
    a.nop(3)
    stamp(a, 4)
    if SPEC:
        a(f"s_cmp_eq_u32 s{S_RND}, 1")
        a(f"s_cselect_b32 s{S_T2}, 4, 0")
        a(f"s_cmp_lt_u32 s{S_W}, s{S_T2}")
        a("s_cbranch_scc0 A_KISS")
        a(f"s_cmp_eq_u64 s[{S_SOFF}:{S_SOFF+1}], s[{S_REM}:{S_REM+1}]")
        a("s_cbranch_scc0 A_KREDO")
        a(f"s_cmp_eq_u64 s[{S_SOFF+2}:{S_SOFF+3}], s[{S_REM+2}:{S_REM+3}]")
        a("s_cbranch_scc1 A_KDONE")
        a.label("A_KREDO")
        a("s_waitcnt vmcnt(0)")
        a.label("A_KISS")
    for i in range(4):
        if i:
            a(f"s_add_u32 m0, s{S_M0B}, {i*4096}")
        a.nop(1)
        for j in range(4):
            a(f"buffer_load_dwordx4 v{V_KOFF+j}, s[{SRD_K}:{SRD_K+3}], s{S_SOFF+i} offen offset:{1024*j} {POL} lds")
    a.label("A_KDONE")
    if TLBW:
        a(f"s_cmp_lg_u32 s{S_W}, {TLBW - 1}")
        a("s_cbranch_scc1 A_NOTLB")
        a(f"s_cmp_lg_u32 s{S_RND}, 1")
        a("s_cbranch_scc1 A_NOTLB")
        a(f"v_lshlrev_b32 v{V_T3}, 21, v{V_LANE}")
        a(f"buffer_load_dword v254, v{V_T3}, s[{SRD_V}:{SRD_V+3}], 0 offen")
        a(f"buffer_load_dword v253, v{V_T3}, s[{SRD_WS}:{SRD_WS+3}], 0 offen")
        a(f"v_mov_b32 v{V_T3}, 0")
        a(f"global_load_dword v252, v{V_T3}, s[{S_OUT}:{S_OUT+1}]")
        if TLBK:
            a(f"v_lshlrev_b32 v{V_T3}, 21, v{V_LANE}")
            a(f"buffer_load_dword v251, v{V_T3}, s[{SRD_K}:{SRD_K+3}], 0 offen")
        a.label("A_NOTLB")
    if PRIO:
        a("s_setprio 0")
        if LATEPRIO:
            a(f"s_cmp_lt_u32 s{S_W}, 4")
            a("s_cbranch_scc1 A_LP")
            a(f"s_setprio {LATEPRIO}")
            a.label("A_LP")
    a(f"v_lshlrev_b32 v{X}, 4, v{vj}")
    a(f"v_sub_u32 v{X}, v{vctx}, v{X}")
    a(f"v_mov_b32 v{X+1}, 16")
    a(f"v_cndmask_b32 v{X}, v{X}, v{X+1}, s[{S_L0X}:{S_L0X+1}]")
    a(f"v_cndmask_b32 v{X}, 0, v{X}, s[{S_MM}:{S_MM+1}]")
    for i in range(4):
        a(f"s_and_b32 s{S_OWN+i}, s{S_LANE+i}, 15")
        a(f"s_sub_u32 s{S_OWN+i}, s{S_OWN+i}, 1")
    for i in range(4):
        a(f"v_readlane_b32 s{S_REM+i}, v{X}, s{S_LANE+i}")
    plan_extra(a, "P1")
    a(f"s_cmp_lg_u32 s{S_NG2}, 0")
    a("s_cbranch_scc1 A_SHARED")
    body(a, 1)
    a("s_branch A_NEXT")
    a.label("A_SHARED")
    body(a, 2)
    a.label("A_NEXT")
    stamp(a, 13)
    a(f"s_add_u32 s{S_IT}, s{S_IT}, s{S_NIT}")
    a(f"s_mul_i32 s{S_T0}, s{S_IT}, s{S_T}")
    a(f"s_cmp_ge_u32 s{S_T0}, s{S_N}")
    a("s_cbranch_scc1 A_FIN")
    a("s_waitcnt lgkmcnt(0)")
    a("s_barrier")
    if PRIO:
        a("s_setprio 3")
    a(f"s_mov_b32 m0, s{S_QM0}")
    a.nop(1)
    a(f"buffer_load_dwordx4 v{V_QOFF}, s[{SRD_Q}:{SRD_Q+3}], s{S_QSOFF} offen lds")
    a("s_branch A_ROUND")
    a.label("A_FIN0")
    plan_extra(a, "P2")
    a(f"s_load_dword s{S_NON}, s[{S_DBG}:{S_DBG+1}], 0")
    a("s_waitcnt vmcnt(0) lgkmcnt(0)")
    a(f"v_mov_b32 v{V_N}, s{S_NON}")
    a.label("A_FIN")
    if NOCONS:
        a("s_branch A_DONE")
    a(f"s_cmp_ge_u32 s{S_IT0}, 16")
    a("s_cbranch_scc1 A_DONE")
    consumer(a)
    a.label("A_DONE")
    stamp(a, 14)
    stamp_out(a)
    a.label("A_END")
    a("s_endpgm")

def get_nonce(a, tag):
    a(f"v_cmp_eq_u32 vcc, 0, v{V_N}")
    a(f"s_cbranch_vccz {tag}_NOK")
    a(f"s_mov_b32 s{S_SPIN}, 0")
    a.label(f"{tag}_NSPIN")
    a(f"global_load_dword v{V_N}, v{V_ZERO}, s[{S_DBG}:{S_DBG+1}] sc1")
    a("s_waitcnt vmcnt(0)")
    a(f"s_add_u32 s{S_SPIN}, s{S_SPIN}, 1")
    a(f"s_cmp_ge_u32 s{S_SPIN}, 0x40000")
    a(f"s_cbranch_scc1 {tag}_NOK")
    a(f"v_cmp_eq_u32 vcc, 0, v{V_N}")
    a(f"s_cbranch_vccnz {tag}_NSPIN")
    a.label(f"{tag}_NOK")

def consumer(a):
    get_nonce(a, "C")
    D = V_Q
    ML0, ML1 = V_B, V_B + 4
    T0, T1 = V_X + 2, V_X + 3
    M0, L0, M1, L1 = V_X + 4, V_X + 5, V_X + 6, V_X + 7
    X0, X1, A0, A1 = V_X + 8, V_X + 9, V_X + 10, V_X + 11
    SB, SM, ST = S_T0, S_T1, S_T3
    SO = S_SOFF
    W0 = S_REM
    W1 = S_OWN
    srd = f"s[{SRD_WS}:{SRD_WS+3}]"
    a(f"s_lshr_b32 s{S_CB}, s{S_IT0}, 1")
    a(f"s_lshl_b32 s{S_CB}, s{S_CB}, 3")
    a(f"s_add_u32 s{S_CB}, s{S_CB}, s{S_KVH}")
    a(f"s_and_b32 s{S_RHO}, s{S_IT0}, 1")
    a(f"s_and_b32 s{S_GRP}, s{S_W}, 1")
    a(f"s_lshr_b32 s{S_LANE}, s{S_W}, 1")
    a(f"s_lshl_b32 s{SM}, s{S_CB}, 2")
    a(f"s_lshl_b32 s{ST}, s{S_RHO}, 1")
    a(f"s_add_u32 s{SM}, s{SM}, s{ST}")
    a(f"s_lshl_b32 s{SM}, s{SM}, 8")
    a(f"s_add_u32 s{SM}, s{SM}, 0x{WS_ML:x}")
    a(f"v_lshlrev_b32 v{V_T2}, 4, v{V_C}")
    a(f"buffer_load_dwordx4 v[{ML0}:{ML0+3}], v{V_T2}, {srd}, s{SM} offen sc1")
    a(f"buffer_load_dwordx4 v[{ML1}:{ML1+3}], v{V_T2}, {srd}, s{SM} offen offset:256 sc1")
    a(f"s_lshl_b32 s{SB}, s{S_CB}, 1")
    a(f"s_add_u32 s{SB}, s{SB}, s{S_RHO}")
    a(f"s_lshl_b32 s{SB}, s{SB}, 15")
    a(f"s_lshl_b32 s{ST}, s{S_GRP}, 10")
    a(f"s_add_u32 s{SB}, s{SB}, s{ST}")
    a(f"s_lshl_b32 s{ST}, s{S_LANE}, 11")
    a(f"s_add_u32 s{SB}, s{SB}, s{ST}")
    a(f"v_lshlrev_b32 v{V_T1}, 4, v{V_LANE}")
    a(f"s_mov_b32 s{S_PEND}, 0")
    for k in range(4):
        a(f"s_add_u32 s{S_LANE+1}, s{S_LANE}, {4*k}")
        a(f"s_add_u32 s{SO+k}, s{SB}, {8192*k}")
        a(f"s_cmp_lt_u32 s{S_LANE+1}, s{S_CNT}")
        a(f"s_cselect_b32 s{SO+k}, s{SO+k}, 0x{OOB:x}")
        a(f"s_cselect_b32 s{ST}, {1<<k}, 0")
        a(f"buffer_load_dwordx4 v[{D+4*k}:{D+4*k+3}], v{V_T1}, {srd}, s{SO+k} offen sc1")
        a(f"s_or_b32 s{S_PEND}, s{S_PEND}, s{ST}")
    a(f"v_cmp_gt_u32 s[{S_MSK}:{S_MSK+1}], s{S_CNT}, v{V_C}")
    a(f"s_mov_b32 s{S_SPIN}, 0")
    a("s_waitcnt vmcnt(4)")
    a.label("C_MLCHK")
    a(f"v_bitop3_b32 v{T0}, v{ML0+1}, v{ML0+3}, v{V_N} bitop3:0x7e")
    a(f"v_bitop3_b32 v{T1}, v{ML1+1}, v{ML1+3}, v{V_N} bitop3:0x7e")
    a(f"v_or_b32 v{T0}, v{T0}, v{T1}")
    a(f"v_cndmask_b32 v{T0}, 0, v{T0}, s[{S_MSK}:{S_MSK+1}]")
    a(f"v_cmp_ne_u32 vcc, 0, v{T0}")
    a("s_cbranch_vccz C_MLOK")
    a(f"s_add_u32 s{S_SPIN}, s{S_SPIN}, 1")
    a(f"s_cmp_ge_u32 s{S_SPIN}, 0x40000")
    a("s_cbranch_scc1 C_RED")
    a(f"s_sleep {SLEEP}")
    a(f"buffer_load_dwordx4 v[{ML0}:{ML0+3}], v{V_T2}, {srd}, s{SM} offen sc1")
    a(f"buffer_load_dwordx4 v[{ML1}:{ML1+3}], v{V_T2}, {srd}, s{SM} offen offset:256 sc1")
    a("s_waitcnt vmcnt(0)")
    a("s_branch C_MLCHK")
    a.label("C_MLOK")
    msk = f"s[{S_MSK}:{S_MSK+1}]"
    a(f"v_cndmask_b32 v{M0}, v{V_NEG}, v{ML0}, {msk}")
    a(f"v_cndmask_b32 v{M1}, v{V_NEG}, v{ML1}, {msk}")
    a(f"v_cndmask_b32 v{L0}, 0, v{ML0+2}, {msk}")
    a(f"v_cndmask_b32 v{L1}, 0, v{ML1+2}, {msk}")
    dpp = "row_mask:0xf bank_mask:0xf"
    a(f"v_mov_b32 v{X0}, v{M0}")
    a(f"v_mov_b32 v{X1}, v{M1}")
    for sh in (8, 4, 2, 1):
        a.nop(1)
        a(f"v_max_f32_dpp v{X0}, v{X0}, v{X0} row_ror:{sh} {dpp}")
        a(f"v_max_f32_dpp v{X1}, v{X1}, v{X1} row_ror:{sh} {dpp}")
    a(f"v_sub_f32 v{M0}, v{M0}, v{X0}")
    a(f"v_sub_f32 v{M1}, v{M1}, v{X1}")
    a(f"v_exp_f32 v{M0}, v{M0}")
    a(f"v_exp_f32 v{M1}, v{M1}")
    a.nop(1)
    a(f"v_mul_f32 v{X0}, v{M0}, v{L0}")
    a(f"v_mul_f32 v{X1}, v{M1}, v{L1}")
    for sh in (8, 4, 2, 1):
        a.nop(1)
        a(f"v_add_f32_dpp v{X0}, v{X0}, v{X0} row_ror:{sh} {dpp}")
        a(f"v_add_f32_dpp v{X1}, v{X1}, v{X1} row_ror:{sh} {dpp}")
    a(f"v_rcp_f32 v{X0}, v{X0}")
    a(f"v_rcp_f32 v{X1}, v{X1}")
    a(f"v_mov_b32 v{A0}, 0")
    a(f"v_mov_b32 v{A1}, 0")
    a(f"v_mul_f32 v{M0}, v{M0}, v{X0}")
    a(f"v_mul_f32 v{M1}, v{M1}, v{X1}")
    a.nop(1)
    for k in range(4):
        a(f"s_add_u32 s{S_LANE+1}, s{S_LANE}, {4*k}")
        a(f"v_readlane_b32 s{W0+k}, v{M0}, s{S_LANE+1}")
        a(f"v_readlane_b32 s{W1+k}, v{M1}, s{S_LANE+1}")
    def check(Dset, tag):
        for k in range(4):
            d = Dset + 4 * k
            a(f"s_bitcmp1_b32 s{S_PEND}, {k}")
            a(f"s_cbranch_scc0 {tag}{k}")
            a(f"v_bitop3_b32 v{T0}, v{d+1}, v{d+3}, v{V_N} bitop3:0x7e")
            a(f"v_bitop3_b32 v{T1}, v{d}, v{d+2}, v{V_N} bitop3:0x7e")
            a(f"v_and_or_b32 v{T0}, v{T1}, s{S_FF}, v{T0}")
            a(f"v_cmp_ne_u32 vcc, 0, v{T0}")
            a(f"s_cbranch_vccnz {tag}{k}")
            a(f"v_fmac_f32 v{A0}, s{W0+k}, v{d}")
            a(f"v_fmac_f32 v{A1}, s{W1+k}, v{d+2}")
            a(f"s_bitset0_b32 s{S_PEND}, {k}")
            a.label(f"{tag}{k}")
    def issue(Dset, tag):
        for k in range(4):
            a(f"s_bitcmp1_b32 s{S_PEND}, {k}")
            a(f"s_cselect_b32 s{ST}, s{SO+k}, 0x{OOB:x}")
            a(f"buffer_load_dwordx4 v[{Dset+4*k}:{Dset+4*k+3}], v{V_T1}, {srd}, s{ST} offen sc1")
    a("s_waitcnt vmcnt(0)")
    check(D, "C_A")
    a(f"s_cmp_eq_u32 s{S_PEND}, 0")
    a("s_cbranch_scc1 C_RED")
    if PIPE:
        issue(D, "i0")
        a.label("C_LOOP")
        a(f"s_sleep {PSLEEP}")
        issue(D + 16, "i1")
        a("s_waitcnt vmcnt(4)")
        check(D, "C_B")
        a(f"s_cmp_eq_u32 s{S_PEND}, 0")
        a("s_cbranch_scc1 C_RED")
        a(f"s_sleep {PSLEEP}")
        issue(D, "i2")
        a("s_waitcnt vmcnt(4)")
        check(D + 16, "C_C")
        a(f"s_add_u32 s{S_SPIN}, s{S_SPIN}, 1")
        a(f"s_cmp_ge_u32 s{S_SPIN}, 0x40000")
        a("s_cbranch_scc1 C_RED")
        a(f"s_cmp_lg_u32 s{S_PEND}, 0")
        a("s_cbranch_scc1 C_LOOP")
    else:
        a.label("C_LOOP")
        a(f"s_sleep {SLEEP}")
        issue(D, "i0")
        a("s_waitcnt vmcnt(0)")
        check(D, "C_B")
        a(f"s_add_u32 s{S_SPIN}, s{S_SPIN}, 1")
        a(f"s_cmp_ge_u32 s{S_SPIN}, 0x40000")
        a("s_cbranch_scc1 C_RED")
        a(f"s_cmp_lg_u32 s{S_PEND}, 0")
        a("s_cbranch_scc1 C_LOOP")
    a.label("C_RED")
    if STAMP:
        a(f"v_writelane_b32 v{V_STAMP}, s{S_SPIN}, 15")
        stamp(a, 12)
    a(f"v_lshlrev_b32 v{V_T0}, 3, v0")
    a(f"ds_write_b64 v{V_T0}, v[{A0}:{A1}]")
    a(f"s_lshl_b32 s{SB}, s{S_CB}, 1")
    a(f"s_add_u32 s{SB}, s{SB}, s{S_RHO}")
    a(f"s_lshl_b32 s{SB}, s{SB}, 9")
    a(f"s_lshl_b32 s{SM}, s{S_GRP}, 7")
    a(f"s_add_u32 s{SB}, s{SB}, s{SM}")
    a(f"v_lshlrev_b32 v{V_T1}, 1, v{V_LANE}")
    a(f"s_mov_b32 s{SRD_Q}, s{S_OUT}")
    a(f"s_and_b32 s{SRD_Q+1}, s{S_OUT+1}, 0xffff")
    a("s_waitcnt lgkmcnt(0)")
    a("s_barrier")
    a(f"s_cmp_ge_u32 s{S_W}, 2")
    a("s_cbranch_scc1 A_DONE")
    R = V_B + 8
    a(f"ds_read_b64 v[{R}:{R+1}], v{V_T0} offset:1024")
    a(f"ds_read_b64 v[{R+2}:{R+3}], v{V_T0} offset:2048")
    a(f"ds_read_b64 v[{R+4}:{R+5}], v{V_T0} offset:3072")
    a("s_waitcnt lgkmcnt(0)")
    a(f"v_add_f32 v{A0}, v{A0}, v{R}")
    a(f"v_add_f32 v{A1}, v{A1}, v{R+1}")
    a(f"v_add_f32 v{R+2}, v{R+2}, v{R+4}")
    a(f"v_add_f32 v{R+3}, v{R+3}, v{R+5}")
    a(f"v_add_f32 v{A0}, v{A0}, v{R+2}")
    a(f"v_add_f32 v{A1}, v{A1}, v{R+3}")
    a(f"v_cvt_pk_bf16_f32 v{A0}, v{A0}, v{A1}")
    a(f"buffer_store_short v{A0}, v{V_T1}, s[{SRD_Q}:{SRD_Q+3}], s{SB} offen {OUTPOL}")
    a(f"buffer_store_short_d16_hi v{A0}, v{V_T1}, s[{SRD_Q}:{SRD_Q+3}], s{SB} offen offset:256 {OUTPOL}")

def poll_flags(a, tag, off):
    X = V_X
    a.label(tag)
    a(f"ds_read_b128 v[{X}:{X+3}], v{V_FLG} offset:{off}")
    a(f"ds_read_b128 v[{X+4}:{X+7}], v{V_FLG} offset:{off+16}")
    a("s_waitcnt lgkmcnt(0)")
    a(f"v_min3_u32 v{X}, v{X}, v{X+1}, v{X+2}")
    a(f"v_min3_u32 v{X+3}, v{X+3}, v{X+4}, v{X+5}")
    a(f"v_min3_u32 v{X}, v{X}, v{X+6}, v{X+7}")
    a(f"v_min_u32 v{X}, v{X}, v{X+3}")
    a(f"v_cmp_gt_u32 vcc, s{S_RND}, v{X}")
    a(f"s_cbranch_vccnz {tag}")

def set_flag(a, off):
    a(f"s_lshl_b32 s{S_T0}, s{S_W}, 2")
    a(f"v_add_u32 v{V_T3}, s{S_T0}, v{V_FLG}")
    a(f"v_mov_b32 v{V_T2}, s{S_RND}")
    a(f"ds_write_b32 v{V_T3}, v{V_T2} offset:{off}")

def body(a: Asm, NG: int):
    tag = f"B{NG}"
    VSPLIT = VSPLIT1 if NG == 1 else VSPLIT2
    a.c(f"---- body NG={NG}")
    VS = [V_X + 8, V_X + 9]
    VM = [V_X + 10, V_X + 11]
    EX = [S_EX, S_EX + 2]
    EM = [S_EM, S_EM + 2]
    for g in range(NG):
        if NG == 1:
            a(f"s_lshl_b32 s{S_T0}, s{S_GRP}, 4")
            a(f"s_add_u32 s{S_T0}, s{S_T0}, 0x{LDS_PLAN+4:x}")
        else:
            a(f"s_mov_b32 s{S_T0}, 0x{LDS_PLAN+4+16*g:x}")
        a(f"v_lshl_add_u32 v{VS[g]}, v{V_G}, 2, s{S_T0}")
        a(f"v_lshl_add_u32 v{VM[g]}, v{V_CB}, 2, s{S_T0}")
        a(f"ds_read_b32 v{VS[g]}, v{VS[g]}")
        a(f"ds_read_b32 v{VM[g]}, v{VM[g]}")
    if NG == 1:
        a(f"s_lshl_b32 s{S_T0}, s{S_GRP}, 12")
        for j in range(4):
            a(f"v_add_u32 v{V_X+j}, s{S_T0}, v{V_LJ+j}")
        for j in range(4):
            a(f"ds_read_b128 v[{V_Q+4*j}:{V_Q+4*j+3}], v{V_X+j}")
    else:
        for g in range(2):
            for j in range(4):
                a(f"ds_read_b128 v[{V_Q+16*g+4*j}:{V_Q+16*g+4*j+3}], v{V_LJ+j} offset:{g*4096}")
    a(f"s_cmp_lt_u32 s{S_IT}, s{S_NSH}")
    a(f"s_cselect_b32 s{S_T1}, 0, -1")
    a("s_waitcnt lgkmcnt(0)")
    for g in range(NG):
        for V in (VS[g], VM[g]):
            a(f"v_and_b32 v{V}, s{S_T1}, v{V}")
            a(f"v_sub_u32 v{V}, s{S_IT}, v{V}")
        a(f"v_lshl_add_u32 v{VS[g]}, v{VS[g]}, 11, v{V_OOFF}")
        a(f"v_lshl_add_u32 v{VM[g]}, v{VM[g]}, 4, v{V_MLOFF}")
        if NG == 1:
            a(f"s_lshl_b32 s{S_T0}, s{S_GRP}, 2")
            a(f"s_lshr_b32 s{S_T0}, s{S_PM}, s{S_T0}")
        else:
            a(f"s_lshr_b32 s{S_T0}, s{S_PM}, {4*g}")
        a(f"v_lshrrev_b32 v{V_T3}, v{V_G}, s{S_T0}")
        a(f"v_and_b32 v{V_T3}, 1, v{V_T3}")
        a(f"v_cmp_ne_u32 s[{EX[g]}:{EX[g]+1}], 0, v{V_T3}")
        a(f"v_lshrrev_b32 v{V_T3}, v{V_CB}, s{S_T0}")
        a(f"v_and_b32 v{V_T3}, 1, v{V_T3}")
        a(f"v_cmp_ne_u32 s[{EM[g]}:{EM[g]+1}], 0, v{V_T3}")
        a(f"s_and_b32 s{EM[g]}, s{EM[g]}, 0xffff")
        a(f"s_mov_b32 s{EM[g]+1}, 0")
    a(f"s_lshl_b32 s{S_DO[0]}, s{S_KVH}, 16")
    a(f"s_lshl_b32 s{S_T2}, s{S_W}, 8")
    a(f"s_add_u32 s{S_DO[0]}, s{S_DO[0]}, s{S_T2}")
    if NG == 1:
        a(f"s_lshl_b32 s{S_T2}, s{S_GRP}, 21")
        a(f"s_add_u32 s{S_DO[0]}, s{S_DO[0]}, s{S_T2}")
    a(f"s_add_u32 s{S_DO[1]}, s{S_DO[0]}, 32768")
    a(f"s_add_u32 s{S_DO[2]}, s{S_DO[0]}, {4*524288}")
    a(f"s_add_u32 s{S_DO[3]}, s{S_DO[1]}, {4*524288}")
    stamp(a, 5)
    for i in range(4):
        a(f"s_waitcnt vmcnt({12 - 4*i})")
        if i == 0: stamp(a, 6)
        if i == 3: stamp(a, 7)
        for j in range(4):
            a(f"ds_read_b128 v[{V_KF+4*j}:{V_KF+4*j+3}], v{V_KRD+j} offset:{i*4096}")
        a("s_waitcnt lgkmcnt(0)")
        for g in range(NG):
            s = V_S + 16 * g + 4 * i
            for j in range(4):
                c = "0" if j == 0 else f"v[{s}:{s+3}]"
                a(f"v_mfma_f32_16x16x32_bf16 v[{s}:{s+3}], v[{V_KF+4*j}:{V_KF+4*j+3}], v[{V_Q+16*g+4*j}:{V_Q+16*g+4*j+3}], {c}")
    a.nop(8)
    for i in range(4):
        a(f"s_cmp_lt_i32 s{S_REM+i}, 16")
        a(f"s_cbranch_scc1 {tag}_DM{i}")
        a(f"s_cmp_eq_u32 s{S_MIXED}, 0")
        a(f"s_cbranch_scc1 {tag}_NM{i}")
        a(f"s_cmp_eq_u32 s{S_OWN+i}, -1")
        a(f"s_cbranch_scc1 {tag}_NM{i}")
        a.label(f"{tag}_DM{i}")
        for r in range(4):
            a(f"v_cmp_gt_i32 s[{S_MSK+2*r}:{S_MSK+2*r+1}], s{S_REM+i}, v{V_TOK+r}")
        for g in range(NG):
            if NG == 1:
                a(f"s_lshl_b32 s{S_T0}, s{S_GRP}, 2")
                a(f"s_sub_u32 s{S_T0}, s{S_OWN+i}, s{S_T0}")
            else:
                a(f"s_sub_u32 s{S_T0}, s{S_OWN+i}, {4*g}")
            a(f"v_cmp_eq_u32 s[{S_OM+2*g}:{S_OM+2*g+1}], s{S_T0}, v{V_CB}")
            a(f"s_cmp_eq_u32 s{S_OWN+i}, -1")
            a(f"s_cselect_b64 s[{S_OM+2*g}:{S_OM+2*g+1}], -1, s[{S_OM+2*g}:{S_OM+2*g+1}]")
        for g in range(NG):
            for r in range(4):
                s = V_S + 16 * g + 4 * i + r
                a(f"s_and_b64 vcc, s[{S_MSK+2*r}:{S_MSK+2*r+1}], s[{S_OM+2*g}:{S_OM+2*g+1}]")
                a(f"v_cndmask_b32 v{s}, v{V_NEG}, v{s}, vcc")
        a.label(f"{tag}_NM{i}")
    for g in range(NG):
        s = V_S + 16 * g
        x = V_X + 1 + 2 * g
        a(f"v_max3_f32 v{x}, v{s}, v{s+1}, v{s+2}")
        for k in range(3, 15, 2):
            a(f"v_max3_f32 v{x}, v{x}, v{s+k}, v{s+k+1}")
        a(f"v_max_f32 v{x}, v{x}, v{s+15}")
    def xreduce(op):
        for swap in ("v_permlane16_swap_b32", "v_permlane32_swap_b32"):
            for g in range(NG):
                x = V_X + 1 + 2 * g
                a(f"v_mov_b32 v{x+1}, v{x}")
            a.nop(2)
            for g in range(NG):
                x = V_X + 1 + 2 * g
                a(f"{swap} v{x}, v{x+1}")
            a.nop(1)
            for g in range(NG):
                x = V_X + 1 + 2 * g
                a(f"{op} v{x}, v{x}, v{x+1}")
    xreduce("v_max_f32")
    a(f"s_lshl_b32 s{S_T0}, s{S_W}, 2")
    a(f"v_add_u32 v{V_T0}, s{S_T0}, v{V_MADDR}")
    for g in range(NG):
        a(f"ds_write_b32 v{V_T0}, v{V_X+1+2*g} offset:{g*512}")
    set_flag(a, 0)
    def vissue(lo=0, hi=4):
        for ii in range(lo, hi):
            a(f"s_add_u32 m0, s{S_M0B}, {ii*4096}")
            a.nop(1)
            for j in range(4):
                a(f"buffer_load_dwordx4 v{V_VOFF+j}, s[{SRD_V}:{SRD_V+3}], s{S_SOFF+ii} offen offset:{1024*j} {POL} lds")
    vissue(0, VSPLIT)
    a(f"s_cmp_ge_u32 s{S_W}, 4")
    a(f"s_cbranch_scc1 {tag}_V1")
    vissue(VSPLIT, 4)
    a.label(f"{tag}_V1")
    a(f"s_load_dword s{S_NON}, s[{S_DBG}:{S_DBG+1}], 0")
    poll_flags(a, f"{tag}_PM", 0)
    stamp(a, 8)
    for g in range(NG):
        k = V_KF + 8 * g
        a(f"ds_read_b128 v[{k}:{k+3}], v{V_MADDR} offset:{g*512}")
        a(f"ds_read_b128 v[{k+4}:{k+7}], v{V_MADDR} offset:{g*512+16}")
    a("s_waitcnt lgkmcnt(0)")
    for g in range(NG):
        k = V_KF + 8 * g
        a(f"v_max3_f32 v{k}, v{k}, v{k+1}, v{k+2}")
        a(f"v_max3_f32 v{k+3}, v{k+3}, v{k+4}, v{k+5}")
        a(f"v_max3_f32 v{k}, v{k}, v{k+6}, v{k+7}")
        a(f"v_max_f32 v{k}, v{k}, v{k+3}")
        a(f"v_mul_f32 v{V_MC+g}, s{S_C}, v{k}")
    for g in range(NG):
        for k in range(16):
            s = V_S + 16 * g + k
            a(f"v_fma_f32 v{s}, v{s}, s{S_C}, -v{V_MC+g}")
        for k in range(16):
            s = V_S + 16 * g + k
            a(f"v_exp_f32 v{s}, v{s}")
    a.nop(1)
    for g in range(NG):
        for i in range(4):
            s = V_S + 16 * g + 4 * i
            p = V_P + 8 * g + 2 * i
            a(f"v_cvt_pk_bf16_f32 v{p}, v{s}, v{s+1}")
            a(f"v_cvt_pk_bf16_f32 v{p+1}, v{s+2}, v{s+3}")
    def prow_off(i, g):
        if NG == 1:
            return i * 4096
        return (i % 3) * 8192 + g * 4096
    nrows0 = 4 if NG == 1 else 3
    for i in range(nrows0):
        for g in range(NG):
            p = V_P + 8 * g + 2 * i
            a(f"ds_write_b64 v{V_PWR}, v[{p}:{p+1}] offset:{prow_off(i, g)}")
    for g in range(NG):
        s = V_S + 16 * g
        x = V_X + 1 + 2 * g
        for k in range(0, 16, 2):
            a(f"v_add_f32 v{s+k}, v{s+k}, v{s+k+1}")
        for k in range(0, 16, 4):
            a(f"v_add_f32 v{s+k}, v{s+k}, v{s+k+2}")
        a(f"v_add_f32 v{s}, v{s}, v{s+4}")
        a(f"v_add_f32 v{s+8}, v{s+8}, v{s+12}")
        a(f"v_add_f32 v{x}, v{s}, v{s+8}")
    xreduce("v_add_f32")
    a(f"v_add_u32 v{V_T0}, 1024, v{V_T0}")
    for g in range(NG):
        a(f"ds_write_b32 v{V_T0}, v{V_X+1+2*g} offset:{g*512}")
    set_flag(a, 32)
    def v2():
        a(f"s_cmp_lt_u32 s{S_W}, 4")
        a(f"s_cbranch_scc1 {tag}_V2")
        vissue(VSPLIT, 4)
        a.label(f"{tag}_V2")
    if not PFIRST:
        v2()
    poll_flags(a, f"{tag}_PP", 32)
    def preg(i, g, u):
        return PREG[(i * 4 + u) * NG + g]
    def pread(i):
        for u in range(4):
            for g in range(NG):
                A = preg(i, g, u)
                a(f"ds_read_b128 v[{A}:{A+3}], v{V_PRD} offset:{prow_off(i, g) + u*1024}")
    for i in range(nrows0):
        pread(i)
        if NG == 2:
            a("s_waitcnt lgkmcnt(0)")
        elif i == 2:
            a("s_waitcnt lgkmcnt(4)")
    if PFIRST:
        v2()
    MLR = [V_X + 4, V_X + 12]
    def mlprep():
        a(f"s_cmp_lg_u32 s{S_W}, {MLWAVE}")
        a(f"s_cbranch_scc1 {tag}_NOMLP")
        for g in range(NG):
            X = V_B
            R = MLR[g]
            a(f"ds_read_b128 v[{X}:{X+3}], v{V_MADDR} offset:{1024+g*512}")
            a(f"ds_read_b128 v[{X+4}:{X+7}], v{V_MADDR} offset:{1024+g*512+16}")
            a("s_waitcnt lgkmcnt(0)")
            for t in range(4):
                a(f"v_add_f32 v{X+t}, v{X+t}, v{X+t+4}")
            a(f"v_add_f32 v{X}, v{X}, v{X+1}")
            a(f"v_add_f32 v{X+2}, v{X+2}, v{X+3}")
            a(f"v_add_f32 v{R+2}, v{X}, v{X+2}")
            a(f"v_mov_b32 v{R}, v{V_MC+g}")
            a(f"v_mov_b32 v{R+1}, v{V_N}")
            a(f"v_mov_b32 v{R+3}, v{V_N}")
        a.label(f"{tag}_NOMLP")
    def mlpub():
        a(f"s_cmp_lg_u32 s{S_W}, {MLWAVE}")
        a(f"s_cbranch_scc1 {tag}_NOML")
        a(f"s_lshl_b32 s{S_T1}, s{S_KVH}, 10")
        a(f"s_add_u32 s{S_T1}, s{S_T1}, 0x{WS_ML:x}")
        if NG == 1:
            a(f"s_lshl_b32 s{S_T2}, s{S_GRP}, 15")
            a(f"s_add_u32 s{S_T1}, s{S_T1}, s{S_T2}")
        for g in range(NG):
            R = MLR[g]
            if g == 1:
                a(f"s_add_u32 s{S_T1}, s{S_T1}, 32768")
            a(f"s_mov_b64 exec, s[{EM[g]}:{EM[g]+1}]")
            a(f"buffer_store_dwordx4 v[{R}:{R+3}], v{VM[g]}, s[{SRD_WS}:{SRD_WS+3}], s{S_T1} offen sc1")
        a("s_mov_b64 exec, -1")
        a.label(f"{tag}_NOML")
    a(f"v_mov_b32 v{V_N}, s{S_NON}")
    get_nonce(a, tag)
    for g in range(NG):
        for rho in range(2):
            G = V_G0 + 8 * g + 4 * rho
            a(f"v_mov_b32 v{G+1}, v{V_N}")
            a(f"v_mov_b32 v{G+3}, v{V_N}")
    a("s_waitcnt lgkmcnt(0)")
    mlprep()
    if MLROW < 0:
        mlpub()
    for i in range(4):
        a(f"s_waitcnt vmcnt({12-4*i}) lgkmcnt(0)")
        a("s_barrier")
        stamp(a, 9 + i)
        for u in range(4):
            B = V_B + 4 * u
            for h in range(2):
                wv = 2 * u + h
                base = V_VTLO if wv < 4 else V_VTHI
                off = (wv & 3) * 16384 + i * 4096
                a(f"ds_read_b64_tr_b16 v[{B+2*h}:{B+2*h+1}], v{base} offset:{off}")
        extra = 0
        if NG == 2 and i == 0:
            for g in range(NG):
                p = V_P + 8 * g + 6
                a(f"ds_write_b64 v{V_PWR}, v[{p}:{p+1}] offset:{prow_off(3, g)}")
            extra = 2
        for u in range(4):
            n = 2 * (3 - u) + extra
            assert n <= 15
            a(f"s_waitcnt lgkmcnt({n})")
            B = V_B + 4 * u
            for g in range(NG):
                A = preg(i, g, u)
                acc = V_ACC + 4 * g
                c = "0" if (i == 0 and u == 0) else f"v[{acc}:{acc+3}]"
                a(f"v_mfma_f32_16x16x32_bf16 v[{acc}:{acc+3}], v[{A}:{A+3}], v[{B}:{B+3}], {c}")
            if NG == 2 and i == 1 and u == 0:
                pread(3)
                extra = 8
        if i == MLROW:
            mlpub()
    a.nop(8)
    for g in range(NG):
        for rho in range(2):
            G = V_G0 + 8 * g + 4 * rho
            a(f"v_bfi_b32 v{G}, s{S_FF}, v{V_N}, v{V_ACC+4*g+2*rho}")
            a(f"v_bfi_b32 v{G+2}, s{S_FF}, v{V_N}, v{V_ACC+4*g+2*rho+1}")
    for g in range(NG):
        a(f"s_mov_b64 exec, s[{EX[g]}:{EX[g]+1}]")
        for rho in range(2):
            G = V_G0 + 8 * g + 4 * rho
            a(f"buffer_store_dwordx4 v[{G}:{G+3}], v{VS[g]}, s[{SRD_WS}:{SRD_WS+3}], s{S_DO[2*g+rho]} offen sc1")
    a("s_mov_b64 exec, -1")

HEADER = """; Kernarg layout for this problem (64 bytes, ptrs only, base s[0:1]):
;
; @launch grid=(256,1,1) block=(512,1,1) lds={lds}
.amdgcn_target "amdgcn-amd-amdhsa--gfx950"
.text
"""

def kd(name, vgpr, sgpr):
    acc = (vgpr + 3) // 4 * 4
    return f""".amdhsa_kernel {name}
  .amdhsa_next_free_vgpr {vgpr}
  .amdhsa_next_free_sgpr {sgpr}
  .amdhsa_accum_offset {acc}
  .amdhsa_group_segment_fixed_size 0
  .amdhsa_kernarg_size 64
  .amdhsa_user_sgpr_count 2
  .amdhsa_user_sgpr_kernarg_segment_ptr 1
  .amdhsa_system_sgpr_workgroup_id_x 1
.end_amdhsa_kernel
"""

def main(out):
    t = HEADER.format(lds=LDS_TOTAL)
    a = Asm()
    kernelA(a)
    t += f".globl {KNAME}\n.p2align 8\n.type {KNAME},@function\n" + a.text()
    t += '.section .rodata,"a"\n.p2align 6\n' + kd(KNAME, V_END, 102)
    open(out, "w").write(t)

if __name__ == "__main__":
    main(sys.argv[1] if len(sys.argv) > 1 else f"cdna_kernels/{NAME}.s")
```
